```python
import torch

def _softmax(x, axis=-1):
    return torch.softmax(x, dim=axis)
def _gelu(x):
    return torch.nn.functional.gelu(x, approximate="tanh")
def _silu(x):
    return torch.nn.functional.silu(x)
def _sigmoid(x):
    return torch.sigmoid(x)
def _layernorm(x, axis=-1, eps=1e-5):
    m = x.mean(dim=axis, keepdim=True)
    v = x.var(dim=axis, keepdim=True, unbiased=False)
    return (x - m) / torch.sqrt(v + eps)
def _scatter_add(tgt, idx, src, axis=0):
    return tgt.clone().index_add_(axis, idx, src)
def _segment_sum(src, seg, n):
    out = torch.zeros((n,) + src.shape[1:], dtype=src.dtype)
    return out.index_add_(0, seg, src)
def _pad(x, pw):
    flat = tuple(v for pair in reversed(pw) for v in pair)
    return torch.nn.functional.pad(x, flat)

kernel_name = 'standalone__seq2seq_rnn_t_joint__speech'

def setup_inputs():

    _w = (lambda a: (lambda t: t.to(torch.bfloat16) if t.is_floating_point() else t)(torch.as_tensor(a)))
    B, T, D, K = 2, 16000, 256, 3
    U = 8
    sc = (1.0 / (K * D)) ** 0.5
    sd = (1.0 / D) ** 0.5
    return {
        "x": _w((lambda *s: torch.randn(*s, dtype=torch.bfloat16) * 0.2)(B, T, D) * 0.5),
        "w1": _w((lambda *s: torch.randn(*s, dtype=torch.bfloat16) * 3.2)(K, D, D) * sc),
        "w2": _w((lambda *s: torch.randn(*s, dtype=torch.bfloat16) * 3.2)(K, D, D) * sc),
        "g": _w((lambda *s: torch.randn(*s, dtype=torch.bfloat16) * 3.2)(B, U, D) * 0.5),
        "w_f": _w((lambda *s: torch.randn(*s, dtype=torch.bfloat16) * 3.2)(D, D) * sd),
        "w_g": _w((lambda *s: torch.randn(*s, dtype=torch.bfloat16) * 3.2)(D, D) * sd),
        "w_o": _w((lambda *s: torch.randn(*s, dtype=torch.bfloat16) * 3.2)(D, D) * sd),
    }

def reference(x, w1, w2, g, w_f, w_g, w_o):
    B, T, D = x.shape
    K = w1.shape[0]
    pad = K // 2
    xp = _pad(x, ((0,0),(pad,pad),(0,0)))
    h = torch.zeros_like(x)
    for i in range(K):
        h = h + torch.einsum("btc,cd->btd", xp[:, i:i+T, :], w1[i])
    h = _gelu(h)[:, ::2, :]
    T1 = h.shape[1]
    hp = _pad(h, ((0,0),(pad,pad),(0,0)))
    f = torch.zeros_like(h)
    for i in range(K):
        f = f + torch.einsum("btc,cd->btd", hp[:, i:i+T1, :], w2[i])
    f = _gelu(f)[:, ::2, :]
    fe = torch.einsum("btd,de->bte", f, w_f)
    ge = torch.einsum("bud,de->bue", g, w_g)
    j = torch.tanh(fe[:, :, None, :] + ge[:, None, :, :])
    return torch.einsum("btud,dv->btuv", j, w_o)
```

```python
import sys, os, struct

DEBUG = os.environ.get("DBG", "")

KN = "standalone__seq2seq_rnn_t_joint__speech_kernel"

XPP = 1056
XB = 0
EXB = 73728
EX1S = 18432
EX2S = 8192
HB = 0
HP = 528
FB = 36864
FP = 544
FLG = 114688
EAB = 122368
EAP = 1040
EBB = 155648
LDS_TOTAL = 163840

V_OFF16, V_OFF32, V_OFFB = 1, 2, 3
V_A0, V_A1, V_A2 = 4, 5, 6
V_EXW, V_EXR = 7, 8
V_W0, V_W1 = 9, 10
V_MASK = 11
V_C0 = 12
V_LANE = 14
V_T0, V_T1 = 15, 16
V_Z = 16
TMP = 20
RING = 64

S_PTR = 4
S_X, S_W1, S_W2, S_G, S_WF, S_WG, S_WO, S_OUT = 4, 6, 8, 10, 12, 14, 16, 18
SRD_X, SRD_G, SRD_O = 20, 24, 28
S_P, S_Q = 32, 44
S_W, S_NH, S_KH, S_B, S_T0, S_CNT = 56, 57, 58, 59, 60, 61
S_SELLO, S_SELHI = 62, 63
S_C1 = 64
S_ONE = 66
S_FLAG = 68
S_T = 69
S_SCL = 76
S_PASS = 78
S_OBASE = 79
S_WSP = 80
S_SO = 82

A_ACC1 = 0
A_AF = 160
A_ACCG = 200
A_GF = 232
A_ACC2 = 64
A_ACC3 = 0


def f32bits(x):
    return struct.unpack("<I", struct.pack("<f", x))[0]

LOG2E = 1.4426950408889634
GC0 = -2.0 * 0.7978845608028654 * LOG2E
GC1 = GC0 * 0.044715
TSC = 2.0 * LOG2E


class A:
    def __init__(self):
        self.l = []

    def e(self, s):
        self.l.append("  " + s)

    def lab(self, s):
        self.l.append(s + ":")

    def c(self, s):
        self.l.append("  ; " + s)


a = A()
e = a.e


def vr(b, n=4):
    return "v[%d:%d]" % (b, b + n - 1)


def ar(b, n=4):
    return "a[%d:%d]" % (b, b + n - 1)


def sr(b, n=2):
    return "s[%d:%d]" % (b, b + n - 1)


def slot(s):
    return RING + 32 * s


def perms(slot_i, j, dst):
    R = slot(slot_i)
    d = j >> 1
    sel = S_SELHI if (j & 1) else S_SELLO
    out = []
    for p in range(4):
        out.append("v_perm_b32 v%d, v%d, v%d, s%d" % (dst + p, R + 4 * (2 * p + 1) + d, R + 4 * (2 * p) + d, sel))
    return out


def unit_loads(slot_i, voff, sp):
    R = slot(slot_i)
    return ["global_load_dwordx4 %s, v%d, %s offset:%d" % (vr(R + 4 * i), voff, sr(sp), i * 512) for i in range(8)]


def set_ptr(dst, base, off_const, add_sgprs=()):
    e("s_add_u32 s%d, s%d, 0x%x" % (dst, base, off_const))
    e("s_addc_u32 s%d, s%d, 0" % (dst + 1, base + 1))
    for s in add_sgprs:
        e("s_add_u32 s%d, s%d, s%d" % (dst, dst, s))
        e("s_addc_u32 s%d, s%d, 0" % (dst + 1, dst + 1))


FBUF = TMP


def prime(slot_i, vm):
    e("s_waitcnt vmcnt(%d)" % vm)
    for j in (0, 1):
        for s in perms(slot_i, j, FBUF + 4 * j):
            e(s)


def emit_units(units, nM, acc):
    for ui, u in enumerate(units):
        for s in u.get("pre", []):
            e(s)
        e("s_waitcnt lgkmcnt(0)")
        areads = list(u.get("areads", []))
        for j in range(8):
            fill = []
            jt = j + 2
            if jt < 8:
                fill += perms(u["slot"], jt, FBUF + 4 * (jt & 3))
            elif u.get("nxt") is not None:
                if j == 6:
                    fill.append("s_waitcnt vmcnt(%d)" % u["vm"])
                fill += perms(u["nxt"], jt - 8, FBUF + 4 * (jt & 3))
            if j >= 6 and u.get("loads"):
                fill += u["loads"][(j - 6) * 4:(j - 6) * 4 + 4]
            if areads and j < 6:
                fill.append(areads.pop(0))
            fb = FBUF + 4 * (j & 3)
            k = 0
            for sl in range(nM):
                d = acc(sl, j)
                e("v_mfma_f32_16x16x32_bf16 %s, %s, %s, %s" % (ar(d), ar(u["aset"][sl]), vr(fb), ar(d)))
                take = 2 if sl < nM - 1 else len(fill) - k
                for s in fill[k:k + take]:
                    e(s)
                k += take
        assert not areads


def zero_acc(base, n, zreg):
    for b in range(base, base + n, 16):
        e("v_mfma_f32_32x32x16_bf16 %s, %s, %s, 0" % (ar(b, 16), vr(zreg), vr(zreg)))


def gelu_pairs(xs, ts):
    for x, t in zip(xs, ts):
        e("v_pk_mul_f32 %s, %s, %s" % (vr(t, 2), vr(x, 2), vr(x, 2)))
    for x, t in zip(xs, ts):
        e("v_pk_fma_f32 %s, %s, %s, %s" % (vr(t, 2), vr(t, 2), sr(S_C1), vr(V_C0, 2)))
    for x, t in zip(xs, ts):
        e("v_pk_mul_f32 %s, %s, %s" % (vr(t, 2), vr(x, 2), vr(t, 2)))
    for x, t in zip(xs, ts):
        e("v_exp_f32 v%d, v%d" % (t, t))
        e("v_exp_f32 v%d, v%d" % (t + 1, t + 1))
    for x, t in zip(xs, ts):
        e("v_pk_add_f32 %s, %s, %s" % (vr(t, 2), vr(t, 2), sr(S_ONE)))
    for x, t in zip(xs, ts):
        e("v_rcp_f32 v%d, v%d" % (t, t))
        e("v_rcp_f32 v%d, v%d" % (t + 1, t + 1))
    for x, t in zip(xs, ts):
        e("v_pk_mul_f32 %s, %s, %s" % (vr(t, 2), vr(x, 2), vr(t, 2)))


def dump_lds(tag, start, nbytes, wsoff):
    if tag not in DEBUG.split(","):
        return
    e("s_waitcnt vmcnt(0) lgkmcnt(0)")
    e("s_barrier")
    e("v_lshlrev_b32 v%d, 4, v0" % V_T0)
    e("s_lshl_b32 s%d, s2, 18" % S_T)
    e("s_add_u32 s%d, s%d, 0x%x" % (S_T, S_T, wsoff))
    for off in range(0, nbytes, 4096):
        e("v_add_u32 v%d, 0x%x, v%d" % (V_T1, start + off, V_T0))
        e("ds_read_b128 %s, v%d" % (vr(TMP + 40), V_T1))
        e("v_add_u32 v%d, 0x%x, v%d" % (V_T1, off, V_T0))
        e("v_add_u32 v%d, s%d, v%d" % (V_T1, S_T, V_T1))
        e("s_waitcnt lgkmcnt(0)")
        e("global_store_dwordx4 v%d, %s, %s" % (V_T1, vr(TMP + 40), sr(S_WSP)))
        e("s_waitcnt vmcnt(0)")
    e("s_barrier")


def prologue():
    e("s_cmp_ge_u32 s2, 250")
    e("s_cbranch_scc1 L_end")
    e("s_load_dwordx16 s[4:19], s[0:1], 0")
    e("s_load_dwordx2 %s, s[0:1], 72" % sr(S_WSP))
    e("v_lshrrev_b32 v20, 6, v0")
    e("v_and_b32 v%d, 63, v0" % V_LANE)
    e("s_cmp_ge_u32 s2, 125")
    e("v_readfirstlane_b32 s%d, v20" % S_W)
    e("s_cselect_b32 s%d, 1, 0" % S_B)
    e("s_mul_i32 s%d, s%d, 125" % (S_T, S_B))
    e("s_sub_u32 s%d, s2, s%d" % (S_T0, S_T))
    e("s_lshl_b32 s%d, s%d, 5" % (S_T0, S_T0))
    e("s_and_b32 s%d, s%d, 1" % (S_NH, S_W))
    e("s_lshr_b32 s%d, s%d, 1" % (S_KH, S_W))
    e("s_mov_b32 s%d, 0x05040100" % S_SELLO)
    e("s_mov_b32 s%d, 0x07060302" % S_SELHI)
    e("s_mov_b32 s%d, 0x%x" % (S_C1, f32bits(GC1)))
    e("s_mov_b32 s%d, 0x%x" % (S_C1 + 1, f32bits(GC1)))
    e("s_mov_b32 s%d, 1.0" % S_ONE)
    e("s_mov_b32 s%d, 1.0" % (S_ONE + 1))
    e("s_mov_b32 s%d, 0x%x" % (S_SCL, f32bits(TSC)))
    e("s_mov_b32 s%d, 0" % S_FLAG)
    e("v_mov_b32 v%d, 0x%x" % (V_C0, f32bits(GC0)))
    e("v_mov_b32 v%d, 0x%x" % (V_C0 + 1, f32bits(GC0)))
    e("v_lshrrev_b32 v21, 4, v%d" % V_LANE)
    e("v_and_b32 v22, 15, v%d" % V_LANE)
    e("v_lshrrev_b32 v23, 5, v%d" % V_LANE)
    e("v_and_b32 v24, 31, v%d" % V_LANE)
    e("s_lshl_b32 s%d, s%d, 8" % (S_T, S_NH))
    e("v_lshlrev_b32 v25, 12, v21")
    e("v_lshl_add_u32 v25, v22, 4, v25")
    e("v_add_u32 v%d, s%d, v25" % (V_OFF16, S_T))
    e("v_mov_b32 v%d, v%d" % (V_OFFB, V_OFF16))
    e("v_lshlrev_b32 v25, 12, v23")
    e("v_lshl_add_u32 v%d, v24, 4, v25" % V_OFF32)
    e("s_lshl_b32 s%d, s%d, 12" % (S_T, S_B))
    e("s_lshl_b32 s%d, s%d, 6" % (S_T + 1, S_KH))
    e("s_add_u32 s%d, s%d, s%d" % (S_T, S_T, S_T + 1))
    e("v_lshlrev_b32 v25, 9, v22")
    e("v_lshl_add_u32 v25, v21, 4, v25")
    e("v_add_u32 v25, s%d, v25" % S_T)
    e("v_lshlrev_b32 v26, 9, v23")
    e("v_lshl_add_u32 v26, v24, 4, v26")
    e("s_lshl_b32 s%d, s%d, 14" % (S_T + 2, S_KH))
    e("s_waitcnt lgkmcnt(0)")
    e("s_mul_i32 s%d, s%d, 8192000" % (S_T, S_B))
    e("s_add_u32 s%d, s%d, s%d" % (SRD_X, S_X, S_T))
    e("s_addc_u32 s%d, s%d, 0" % (SRD_X + 1, S_X + 1))
    e("s_and_b32 s%d, s%d, 0xffff" % (SRD_X + 1, SRD_X + 1))
    e("s_mov_b32 s%d, 8192000" % (SRD_X + 2))
    e("s_mov_b32 s%d, 0x00020000" % (SRD_X + 3))
    e("s_mov_b32 s%d, s%d" % (SRD_G, S_G))
    e("s_and_b32 s%d, s%d, 0xffff" % (SRD_G + 1, S_G + 1))
    e("s_mov_b32 s%d, 8192" % (SRD_G + 2))
    e("s_mov_b32 s%d, 0x00020000" % (SRD_G + 3))
    e("s_mov_b32 s%d, s%d" % (SRD_O, S_OUT))
    e("s_and_b32 s%d, s%d, 0xffff" % (SRD_O + 1, S_OUT + 1))
    e("s_mov_b32 s%d, 32768000" % (SRD_O + 2))
    e("s_mov_b32 s%d, 0x00020000" % (SRD_O + 3))
    for u in range(4):
        e("buffer_load_dwordx4 %s, v25, %s, 0 offen offset:%d" % (ar(A_GF + 4 * u), sr(SRD_G, 4), u * 128))
    for u in range(4):
        set_ptr(S_P + 2 * u, S_WG, u * 32768, (S_T + 2,))
        for s in unit_loads(u, V_OFF16, S_P + 2 * u):
            e(s)
    e("s_lshl_b32 s%d, s%d, 11" % (S_T, S_T0))
    e("s_sub_u32 s%d, s%d, 1536" % (S_T, S_T))
    e("s_lshl_b32 s%d, s%d, 10" % (S_T + 1, S_W))
    e("s_add_u32 s%d, s%d, s%d" % (S_T, S_T, S_T + 1))
    e("s_mul_i32 s%d, s%d, %d" % (S_T + 1, S_W, XPP))
    for i in range(17):
        e("v_add_u32 v%d, s%d, v26" % (27 + (i & 1), S_T))
        e("s_mov_b32 m0, s%d" % (S_T + 1))
        e("s_add_u32 s%d, s%d, 4096" % (S_T, S_T))
        e("buffer_load_dwordx4 v%d, %s, 0 offen lds" % (27 + (i & 1), sr(SRD_X, 4)))
        e("s_add_u32 s%d, s%d, %d" % (S_T + 1, S_T + 1, 4 * XPP))
    for u in range(2):
        set_ptr(S_P + 8 + 2 * u, S_W1, u * 32768, (S_T + 2,))
        for s in unit_loads(4 + u, V_OFF16, S_P + 8 + 2 * u):
            e(s)
    for u in range(2, 6):
        set_ptr(S_P + 2 * (u - 2), S_W1, (u >> 1) * 131072 + (u & 1) * 32768, (S_T + 2,))
    for i in range(4):
        e("v_mov_b32 v%d, 0" % (28 + i))
    e("s_nop 1")
    zero_acc(A_ACC1, 160, 28)
    zero_acc(A_ACCG, 32, 28)
    e("v_lshlrev_b32 v25, 4, v%d" % V_LANE)
    e("s_mul_i32 s%d, s%d, %d" % (S_T, S_W, EX1S))
    e("s_add_u32 s%d, s%d, %d" % (S_T, S_T, EXB))
    e("v_add_u32 v%d, s%d, v25" % (V_EXW, S_T))
    e("s_xor_b32 s%d, s%d, 2" % (S_T + 1, S_W))
    e("s_mul_i32 s%d, s%d, %d" % (S_T, S_T + 1, EX1S))
    e("s_add_u32 s%d, s%d, %d" % (S_T, S_T, EXB))
    e("v_add_u32 v%d, s%d, v25" % (V_EXR, S_T))
    e("s_or_b32 s%d, s%d, s%d" % (S_T, S_T0, S_KH))
    e("v_or_b32 v25, s%d, v21" % S_T)
    e("v_cmp_eq_u32 vcc, 0, v25")
    e("v_mov_b32 v25, 1.0")
    e("s_nop 1")
    e("v_cndmask_b32 v%d, v25, 0, vcc" % V_MASK)
    e("s_lshl_b32 s%d, s%d, 6" % (S_T, S_KH))
    e("v_mul_u32_u24 v25, %d, v22" % XPP)
    e("v_lshl_add_u32 v25, v21, 4, v25")
    e("v_add_u32 v25, s%d, v25" % S_T)
    e("s_mul_i32 s%d, s%d, 33792" % (S_T, S_KH))
    e("v_add_u32 v%d, s%d, v25" % (V_A0, S_T))
    e("s_sub_u32 s%d, 33792, s%d" % (S_T, S_T))
    e("v_add_u32 v%d, s%d, v25" % (V_A1, S_T))
    e("v_add_u32 v%d, 0x%x, v25" % (V_A2, 67584))


def phase_g():
    a.c("---- G phase ----")
    prime(0, 57)
    units = []
    for u in range(4):
        units.append(dict(slot=u, aset=[A_GF + 4 * u], nxt=(u + 1 if u < 3 else None), vm=49,
                          loads=unit_loads(u, V_OFF16, S_P + 2 * u)))
    emit_units(units, 1, lambda sl, j: A_ACCG + 4 * j)
    e("s_nop 7")
    e("s_nop 1")
    for j in range(8):
        e("ds_write_b128 v%d, %s offset:%d" % (V_EXW, ar(A_ACCG + 4 * j), j * 1024))
    e("v_lshrrev_b32 v20, 4, v%d" % V_LANE)
    e("v_and_b32 v21, 15, v%d" % V_LANE)
    e("v_lshlrev_b32 v20, 12, v20")
    e("v_lshl_add_u32 v20, v21, 5, v20")
    e("s_lshl_b32 s%d, s%d, 9" % (S_T, S_NH))
    e("s_add_u32 s%d, s%d, %d" % (S_T, S_T, EBB))
    e("v_add_u32 v%d, s%d, v20" % (V_W0, S_T))
    e("v_mov_b32 v%d, 0" % V_W1)
    e("s_waitcnt lgkmcnt(0)")
    e("s_barrier")
    for j in range(8):
        e("ds_read_b128 %s, v%d offset:%d" % (vr(TMP + 4 * j), V_EXR, j * 1024))
    e("s_mov_b32 exec_hi, 0")
    for j in range(8):
        P = TMP + 4 * j
        T = TMP + 32
        e("s_waitcnt lgkmcnt(%d)" % (7 - j))
        for r in range(4):
            e("v_accvgpr_read_b32 v%d, a%d" % (T + r, A_ACCG + 4 * j + r))
        for r in range(4):
            e("v_add_f32 v%d, v%d, v%d" % (P + r, P + r, T + r))
        e("v_cvt_pk_bf16_f32 v%d, v%d, v%d" % (T, P, P + 1))
        e("v_cvt_pk_bf16_f32 v%d, v%d, v%d" % (T + 1, P + 2, P + 3))
        e("v_lshlrev_b32 v%d, 16, v%d" % (P, T))
        e("v_and_b32 v%d, 0xffff0000, v%d" % (P + 1, T))
        e("v_lshlrev_b32 v%d, 16, v%d" % (P + 2, T + 1))
        e("v_and_b32 v%d, 0xffff0000, v%d" % (P + 3, T + 1))
        for r in range(4):
            e("v_mul_f32 v%d, s%d, v%d" % (P + r, S_SCL, P + r))
        e("v_max3_f32 v%d, |v%d|, |v%d|, v%d" % (V_W1, P, P + 1, V_W1))
        e("v_max3_f32 v%d, |v%d|, |v%d|, v%d" % (V_W1, P + 2, P + 3, V_W1))
        for r in range(4):
            e("v_accvgpr_write_b32 a%d, v%d" % (A_ACCG + 4 * j + r, P + r))
        for r in range(4):
            e("v_exp_f32 v%d, v%d" % (T + r, P + r))
        e("s_nop 0")
        for r in range(4):
            e("ds_write_b32 v%d, v%d offset:%d" % (V_W0, T + r, r * 1024 + j * 4))
    e("v_mov_b32 v20, 0x42fa0000")
    e("v_cmp_nle_f32 vcc, v%d, v20" % V_W1)
    e("s_mov_b64 exec, -1")
    e("s_nop 1")
    e("s_or_b32 s%d, vcc_lo, vcc_hi" % S_FLAG)
    e("s_waitcnt vmcnt(48) lgkmcnt(0)")
    e("s_barrier")


TAPX = [0, 512, XPP]
TAPH = [0, HP, 2 * HP]


def c1_areads(nu, aset):
    tap, x8 = nu >> 1, nu & 1
    out = []
    for sl in range(5):
        base = V_A0 if sl < 2 else (V_A1 if sl < 4 else V_A2)
        off = ((sl & 1) * 16896 if sl < 4 else 0) + TAPX[tap] + x8 * 128
        out.append("ds_read_b128 %s, v%d offset:%d" % (ar(aset + 4 * sl), base, off))
    return out


def c2_areads(nu, aset):
    tap, x8 = nu >> 1, nu & 1
    out = []
    for sl in range(2):
        base = V_A0 + sl
        off = HB + TAPH[tap] + x8 * 128
        out.append("ds_read_b128 %s, v%d offset:%d" % (ar(aset + 4 * sl), base, off))
    return out


def conv_loop(name, nM, acc, areads_fn, nbase):
    for s in areads_fn(0, A_AF):
        e(s)
    prime(4, 40)
    e("s_mov_b32 s%d, 0" % S_CNT)
    a.lab("L_%s" % name)
    units = []
    for u in range(6):
        sl_ = (4 + u) % 6
        nxt = (4 + u + 1) % 6
        pre = []
        if u == 5:
            pre = ["v_add_u32 v%d, 0x100, v%d" % (V_A0 + i, V_A0 + i) for i in range(nbase)]
        voff = V_OFFB if u >= 4 else V_OFF16
        units.append(dict(slot=sl_, aset=[A_AF + 20 * (u & 1) + 4 * s for s in range(nM)], nxt=nxt, vm=32,
                          loads=unit_loads(sl_, voff, S_P + 2 * u),
                          areads=areads_fn((u + 1) % 6, A_AF + 20 * ((u + 1) & 1)), pre=pre))
    emit_units(units, nM, acc)
    for i in range(12):
        e("s_mov_b32 s%d, s%d" % (S_P + i, S_Q + i))
    if name == "c2":
        e("v_mov_b32 v%d, v%d" % (V_OFFB, V_OFF32))
    e("s_add_u32 s%d, s%d, 1" % (S_CNT, S_CNT))
    e("s_cmp_lt_u32 s%d, 2" % S_CNT)
    e("s_cbranch_scc1 L_%s" % name)


def conv_off(u):
    return (u >> 1) * 131072 + (u & 1) * 32768


def phase_c1():
    a.c("---- conv1 ----")
    e("s_lshl_b32 s%d, s%d, 14" % (S_T + 2, S_KH))
    for u in range(6):
        set_ptr(S_P + 2 * u, S_W1, conv_off(u) + 65536, (S_T + 2,))
        set_ptr(S_Q + 2 * u, S_W2, conv_off(u), (S_T + 2,))
    conv_loop("c1", 5, lambda sl, j: A_ACC1 + (sl * 8 + j) * 4, c1_areads, 3)


def lane_fields():
    e("v_lshrrev_b32 v16, 4, v%d" % V_LANE)
    e("v_and_b32 v17, 15, v%d" % V_LANE)


P0, P1 = TMP, TMP + 8
TT = TMP + 16
OWN = TMP + 24
OUTR = TMP + 28


def add_own(P, accbase):
    for i in range(0, 8, 4):
        for k in range(4):
            e("v_accvgpr_read_b32 v%d, a%d" % (OWN + k, accbase + i + k))
        e("v_pk_add_f32 %s, %s, %s" % (vr(P + i, 2), vr(P + i, 2), vr(OWN, 2)))
        e("v_pk_add_f32 %s, %s, %s" % (vr(P + i + 2, 2), vr(P + i + 2, 2), vr(OWN + 2, 2)))


def epi_gelu_slot(accbase, rdoff, nblocks_after, wr, mask):
    for jp in range(4):
        P = P0 if (jp & 1) == 0 else P1
        Pn = P1 if (jp & 1) == 0 else P0
        nxt = rdoff + (2 * jp + 2) * 1024
        more = jp < 3 or nblocks_after
        if more:
            e("ds_read_b128 %s, v%d offset:%d" % (vr(Pn), V_EXR, nxt))
            e("ds_read_b128 %s, v%d offset:%d" % (vr(Pn + 4), V_EXR, nxt + 1024))
            e("s_waitcnt lgkmcnt(2)")
        else:
            e("s_waitcnt lgkmcnt(0)")
        add_own(P, accbase + 8 * jp)
        gelu_pairs([P, P + 2, P + 4, P + 6], [TT, TT + 2, TT + 4, TT + 6])
        if mask:
            e("v_mul_f32 v%d, v%d, v%d" % (TT, V_MASK, TT))
            e("v_mul_f32 v%d, v%d, v%d" % (TT + 4, V_MASK, TT + 4))
        for r in range(4):
            e("v_cvt_pk_bf16_f32 v%d, v%d, v%d" % (OUTR + 4 * r + jp, TT + r, TT + 4 + r))
    for r in range(4):
        e(wr(r))


def epi1():
    a.c("---- epilogue conv1 ----")
    e("s_nop 7")
    e("s_nop 1")
    for j in range(8):
        e("v_accvgpr_read_b32 v%d, a%d" % (TMP + j, A_ACC1 + 128 + 4 * j))
    for i in range(16):
        e("ds_write_b128 v%d, %s offset:%d" % (V_EXW, ar(A_ACC1 + 64 + 4 * i), i * 1024))
    e("ds_write_b128 v%d, %s offset:%d" % (V_EXW, vr(TMP), 16384))
    e("ds_write_b128 v%d, %s offset:%d" % (V_EXW, vr(TMP + 4), 17408))
    lane_fields()
    e("s_mul_i32 s%d, s%d, %d" % (S_T, S_KH, 32 * HP))
    e("s_lshl_b32 s%d, s%d, 8" % (S_T + 1, S_NH))
    e("v_mul_u32_u24 v16, %d, v16" % (4 * HP))
    e("v_lshl_add_u32 v17, v17, 4, s%d" % (S_T + 1))
    e("v_add3_u32 v%d, v16, v17, s%d" % (V_W0, S_T))
    e("v_add_u32 v%d, 0x%x, v17" % (V_W1, HB + 64 * HP))
    for i in range(4):
        e("v_mov_b32 v%d, 0" % (TT + i))
    e("s_waitcnt lgkmcnt(0)")
    e("s_nop 1")
    zero_acc(A_ACC2, 64, TT)
    e("s_barrier")
    e("ds_read_b128 %s, v%d offset:0" % (vr(P0), V_EXR))
    e("ds_read_b128 %s, v%d offset:1024" % (vr(P0 + 4), V_EXR))
    for sl in range(2):
        epi_gelu_slot(A_ACC1 + 32 * sl, sl * 8192, True,
                      lambda r, sl=sl: "ds_write_b128 v%d, %s offset:%d" % (V_W0, vr(OUTR + 4 * r), HB + (16 * sl + r) * HP),
                      sl == 0)
    e("s_waitcnt lgkmcnt(0)")
    for j in range(8):
        e("v_accvgpr_read_b32 v%d, a%d" % (TT + j, A_ACC1 + 128 + 4 * j))
    for i in range(0, 8, 2):
        e("v_pk_add_f32 %s, %s, %s" % (vr(P0 + i, 2), vr(P0 + i, 2), vr(TT + i, 2)))
    gelu_pairs([P0, P0 + 2, P0 + 4, P0 + 6], [TT, TT + 2, TT + 4, TT + 6])
    for i in range(4):
        e("v_cvt_pk_bf16_f32 v%d, v%d, v%d" % (P1 + i, TT + 2 * i, TT + 2 * i + 1))
    e("s_mov_b32 exec_lo, 0xffff")
    e("s_mov_b32 exec_hi, 0")
    e("ds_write_b128 v%d, %s" % (V_W1, vr(P1)))
    e("s_mov_b64 exec, -1")
    lane_fields()
    e("s_lshl_b32 s%d, s%d, 6" % (S_T, S_KH))
    e("v_mul_u32_u24 v17, %d, v17" % (2 * HP))
    e("v_lshl_add_u32 v17, v16, 4, v17")
    e("v_add_u32 v17, s%d, v17" % S_T)
    e("s_mul_i32 s%d, s%d, %d" % (S_T, S_KH, 32 * HP))
    e("v_add_u32 v%d, s%d, v17" % (V_A0, S_T))
    e("s_sub_u32 s%d, %d, s%d" % (S_T, 32 * HP, S_T))
    e("v_add_u32 v%d, s%d, v17" % (V_A1, S_T))
    e("v_lshlrev_b32 v16, 4, v%d" % V_LANE)
    e("s_lshl_b32 s%d, s%d, 13" % (S_T, S_W))
    e("s_add_u32 s%d, s%d, %d" % (S_T, S_T, EXB))
    e("v_add_u32 v%d, s%d, v16" % (V_EXW, S_T))
    e("s_xor_b32 s%d, s%d, 2" % (S_T, S_W))
    e("s_lshl_b32 s%d, s%d, 13" % (S_T, S_T))
    e("s_add_u32 s%d, s%d, %d" % (S_T, S_T, EXB))
    e("v_add_u32 v%d, s%d, v16" % (V_EXR, S_T))
    e("s_waitcnt lgkmcnt(0)")
    e("s_barrier")


def phase_c2():
    a.c("---- conv2 ----")
    e("s_lshl_b32 s%d, s%d, 14" % (S_T + 2, S_KH))
    e("s_lshl_b32 s%d, s%d, 13" % (S_T + 3, S_W))
    for u in range(6):
        set_ptr(S_P + 2 * u, S_W2, conv_off(u) + 65536, (S_T + 2,))
    for u in range(4):
        set_ptr(S_Q + 2 * u, S_WF, u * 32768, (S_T + 2,))
    set_ptr(S_Q + 8, S_WO, 0, (S_T + 3,))
    set_ptr(S_Q + 10, S_WO, 4 * 8192, (S_T + 3,))
    conv_loop("c2", 2, lambda sl, j: A_ACC2 + (sl * 8 + j) * 4, c2_areads, 2)


def epi2():
    a.c("---- epilogue conv2 ----")
    e("s_nop 7")
    e("s_nop 1")
    for i in range(8):
        e("ds_write_b128 v%d, %s offset:%d" % (V_EXW, ar(A_ACC2 + 32 + 4 * i), i * 1024))
    lane_fields()
    e("s_mul_i32 s%d, s%d, %d" % (S_T, S_KH, 16 * FP))
    e("s_lshl_b32 s%d, s%d, 8" % (S_T + 1, S_NH))
    e("v_mul_u32_u24 v16, %d, v16" % (4 * FP))
    e("v_lshl_add_u32 v17, v17, 4, s%d" % (S_T + 1))
    e("v_add3_u32 v%d, v16, v17, s%d" % (V_W0, S_T))
    for i in range(4):
        e("v_mov_b32 v%d, 0" % (TT + i))
    e("s_nop 1")
    zero_acc(A_ACC3, 64, TT)
    e("s_waitcnt lgkmcnt(0)")
    e("s_barrier")
    e("ds_read_b128 %s, v%d offset:0" % (vr(P0), V_EXR))
    e("ds_read_b128 %s, v%d offset:1024" % (vr(P0 + 4), V_EXR))
    epi_gelu_slot(A_ACC2, 0, False,
                  lambda r: "ds_write_b128 v%d, %s offset:%d" % (V_W0, vr(OUTR + 4 * r), FB + r * FP), False)
    lane_fields()
    e("s_lshl_b32 s%d, s%d, 6" % (S_T, S_KH))
    e("s_add_u32 s%d, s%d, %d" % (S_T, S_T, FB))
    e("v_mul_u32_u24 v17, %d, v17" % FP)
    e("v_lshl_add_u32 v17, v16, 4, v17")
    e("v_add_u32 v17, s%d, v17" % S_T)
    e("s_mul_i32 s%d, s%d, %d" % (S_T, S_KH, 16 * FP))
    e("v_add_u32 v%d, s%d, v17" % (V_A0, S_T))
    e("s_sub_u32 s%d, %d, s%d" % (S_T, 16 * FP, S_T))
    e("v_add_u32 v%d, s%d, v17" % (V_A1, S_T))
    e("s_waitcnt lgkmcnt(0)")
    e("s_barrier")


def f_areads(u, aset):
    return ["ds_read_b128 %s, v%d offset:%d" % (ar(aset + 4 * sl), V_A0 + sl, u * 128) for sl in range(2)]


def phase_f():
    a.c("---- fe ----")
    e("s_lshl_b32 s%d, s%d, 13" % (S_T + 3, S_W))
    set_ptr(S_P + 0, S_WO, 8 * 8192, (S_T + 3,))
    set_ptr(S_P + 2, S_WO, 12 * 8192, (S_T + 3,))
    set_ptr(S_P + 4, S_WO, 14 * 8192)
    set_ptr(S_P + 6, S_WO, 15 * 8192)
    for s in f_areads(0, A_AF):
        e(s)
    prime(4, 40)
    units = []
    for u in range(4):
        sl_ = (4 + u) % 6
        units.append(dict(slot=sl_, aset=[A_AF + 20 * (u & 1) + 4 * s for s in range(2)],
                          nxt=((4 + u + 1) % 6 if u < 3 else None), vm=32,
                          loads=unit_loads(sl_, V_OFF32, S_P + 2 * u),
                          areads=(f_areads(u + 1, A_AF + 20 * ((u + 1) & 1)) if u < 3 else [])))
    emit_units(units, 2, lambda sl, j: A_ACC3 + (sl * 8 + j) * 4)


def epi3_body(raw):
    e("ds_read_b128 %s, v%d offset:0" % (vr(P0), V_EXR))
    e("ds_read_b128 %s, v%d offset:1024" % (vr(P0 + 4), V_EXR))
    for jp in range(4):
        P = P0 if (jp & 1) == 0 else P1
        Pn = P1 if (jp & 1) == 0 else P0
        if jp < 3:
            e("ds_read_b128 %s, v%d offset:%d" % (vr(Pn), V_EXR, (2 * jp + 2) * 1024))
            e("ds_read_b128 %s, v%d offset:%d" % (vr(Pn + 4), V_EXR, (2 * jp + 3) * 1024))
            e("s_waitcnt lgkmcnt(2)")
        else:
            e("s_waitcnt lgkmcnt(0)")
        add_own(P, A_ACC3 + 8 * jp)
        for i in range(4):
            e("v_cvt_pk_bf16_f32 v%d, v%d, v%d" % (TT + i, P + 2 * i, P + 2 * i + 1))
        for i in range(4):
            e("v_lshlrev_b32 v%d, 16, v%d" % (P + 2 * i, TT + i))
            e("v_and_b32 v%d, 0xffff0000, v%d" % (P + 2 * i + 1, TT + i))
        for i in range(8):
            e("v_mul_f32 v%d, s%d, v%d" % (P + i, S_SCL, P + i))
        if not raw:
            for i in range(4):
                e("v_max3_f32 v%d, |v%d|, |v%d|, v%d" % (V_W1, P + 2 * i, P + 2 * i + 1, V_W1))
        for jj in range(2):
            for r in range(4):
                d = OUTR + 4 * r + (jp & 1) * 2 + jj
                if raw:
                    e("v_mov_b32 v%d, v%d" % (d, P + 4 * jj + r))
                else:
                    e("v_exp_f32 v%d, v%d" % (d, P + 4 * jj + r))
        if jp & 1:
            e("s_nop 0")
            for r in range(4):
                e("ds_write_b128 v%d, %s offset:%d" % (V_W0, vr(OUTR + 4 * r), r * EAP + (jp >> 1) * 16))


def epi3():
    a.c("---- epilogue fe ----")
    e("s_nop 7")
    e("s_nop 1")
    for i in range(8):
        e("ds_write_b128 v%d, %s offset:%d" % (V_EXW, ar(A_ACC3 + 32 + 4 * i), i * 1024))
    lane_fields()
    e("s_mul_i32 s%d, s%d, %d" % (S_T, S_KH, 16 * EAP))
    e("s_add_u32 s%d, s%d, %d" % (S_T, S_T, EAB))
    e("s_lshl_b32 s%d, s%d, 9" % (S_T + 1, S_NH))
    e("v_mul_u32_u24 v16, %d, v16" % (4 * EAP))
    e("v_lshl_add_u32 v17, v17, 5, s%d" % (S_T + 1))
    e("v_add3_u32 v%d, v16, v17, s%d" % (V_W0, S_T))
    e("v_mov_b32 v%d, 0" % V_W1)
    e("s_waitcnt lgkmcnt(0)")
    e("s_barrier")
    epi3_body(False)
    e("v_mov_b32 v16, 0x42fa0000")
    e("v_cmp_nle_f32 vcc, v%d, v16" % V_W1)
    e("s_lshl_b32 s%d, s%d, 2" % (S_T, S_W))
    e("s_add_u32 s%d, s%d, %d" % (S_T, S_T, FLG))
    e("s_or_b32 s%d, s%d, vcc_lo" % (S_FLAG, S_FLAG))
    e("s_or_b32 s%d, s%d, vcc_hi" % (S_FLAG, S_FLAG))
    e("v_mov_b32 v16, s%d" % S_T)
    e("v_mov_b32 v17, s%d" % S_FLAG)
    e("ds_write_b32 v16, v17")
    e("s_waitcnt lgkmcnt(0)")
    e("s_barrier")
    e("v_mov_b32 v16, 0x%x" % FLG)
    e("ds_read_b128 %s, v16" % vr(TMP))
    e("s_waitcnt lgkmcnt(0)")
    e("v_or3_b32 v16, v%d, v%d, v%d" % (TMP, TMP + 1, TMP + 2))
    e("v_or_b32 v16, v16, v%d" % (TMP + 3))
    e("s_nop 0")
    e("v_readfirstlane_b32 s%d, v16" % S_FLAG)
    e("s_nop 3")
    e("s_cmp_eq_u32 s%d, 0" % S_FLAG)
    e("s_cbranch_scc1 L_fast1")
    epi3_body(True)
    lane_fields()
    e("v_lshlrev_b32 v16, 12, v16")
    e("v_lshl_add_u32 v16, v17, 5, v16")
    e("s_lshl_b32 s%d, s%d, 9" % (S_T, S_NH))
    e("s_add_u32 s%d, s%d, %d" % (S_T, S_T, EBB))
    e("v_add_u32 v16, s%d, v16" % S_T)
    e("s_mov_b32 exec_hi, 0")
    for j in range(8):
        for r in range(4):
            e("ds_write_b32 v16, a%d offset:%d" % (A_ACCG + 4 * j + r, r * 1024 + j * 4))
    e("s_mov_b64 exec, -1")
    e("s_waitcnt lgkmcnt(0)")
    e("s_barrier")
    a.lab("L_fast1")


def phase_wo():
    a.c("---- w_o fragments ----")
    e("v_lshlrev_b32 v16, 4, v%d" % V_LANE)
    e("s_lshl_b32 s%d, s%d, 13" % (S_T, S_W))
    e("v_add_u32 v16, s%d, v16" % S_T)
    slots = [2, 3, 4, 5, 0, 1]
    vms = [40, 32, 24, 16, 8, 0]
    for i in range(4):
        if i == 3:
            e("s_cmp_ge_u32 s%d, 2" % S_W)
            e("s_cbranch_scc1 L_wo_skip")
        e("s_waitcnt vmcnt(%d)" % vms[i])
        for n in range(8):
            for s in perms(slots[i], n, TMP + 4 * n):
                e(s)
        for n in range(8):
            e("ds_write_b128 v16, %s offset:%d" % (vr(TMP + 4 * n), n * 1024))
        if i < 3:
            e("v_add_u32 v16, 0x8000, v16")
            e("s_waitcnt lgkmcnt(0)")
    a.lab("L_wo_skip")
    for i in (4, 5):
        e("s_waitcnt vmcnt(%d)" % vms[i])
        for n in range(8):
            for s in perms(slots[i], n, 192 + 32 * (i - 4) + 4 * n):
                e(s)
    e("s_waitcnt lgkmcnt(0)")
    e("s_barrier")


OACC = 64
EA = [20, 28]
EB = [36, 44]
JF = [52, 56]
V_EA, V_EB, V_B, V_ST = 4, 5, 6, 7
BB = [0, 32]
STG = [20, 24, 28, 32]


def out_valu(par, slow):
    ea, eb, jf = EA[par], EB[par], JF[par]
    v = []
    if slow:
        for i in range(8):
            v.append("v_add_f32 v%d, v%d, v%d" % (ea + i, ea + i, eb + i))
        for i in range(8):
            v.append("v_exp_f32 v%d, v%d" % (ea + i, ea + i))
        for i in range(8):
            v.append("v_add_f32 v%d, 1.0, v%d" % (ea + i, ea + i))
    else:
        for i in range(8):
            v.append("v_fma_f32 v%d, v%d, v%d, 1.0" % (ea + i, ea + i, eb + i))
    for i in range(8):
        v.append("v_rcp_f32 v%d, v%d" % (ea + i, ea + i))
    for i in range(8):
        v.append("v_fma_f32 v%d, v%d, -2.0, 1.0" % (ea + i, ea + i))
    for i in range(4):
        v.append("v_cvt_pk_bf16_f32 v%d, v%d, v%d" % (jf + i, ea + 2 * i, ea + 2 * i + 1))
    return v


def out_eloads(par, off):
    return ["ds_read_b128 %s, v%d offset:%d" % (vr(EA[par]), V_EA, off),
            "ds_read_b128 %s, v%d offset:%d" % (vr(EA[par] + 4), V_EA, off + 16),
            "ds_read_b128 %s, v%d offset:%d" % (vr(EB[par]), V_EB, off),
            "ds_read_b128 %s, v%d offset:%d" % (vr(EB[par] + 4), V_EB, off + 16)]


def out_bloads(par, off):
    return ["ds_read_b128 %s, v%d offset:%d" % (ar(BB[par] + 4 * n), V_B, off + n * 1024) for n in range(8)]


def out_kstep(par, bsrc, valu, loads):
    e("s_waitcnt lgkmcnt(0)")
    e("s_nop 0")
    fill = []
    li = 0
    step = max(1, len(valu) // max(1, len(loads))) if loads else 1
    vi = 0
    while vi < len(valu) or li < len(loads):
        if li < len(loads):
            fill.append(loads[li]); li += 1
        for _ in range(step):
            if vi < len(valu):
                fill.append(valu[vi]); vi += 1
    per = (len(fill) + 7) // 8
    for n in range(8):
        d = OACC + 16 * n
        e("v_mfma_f32_32x32x16_bf16 %s, %s, %s, %s" % (vr(d, 16), vr(JF[par]), bsrc(n), vr(d, 16)))
        for s in fill[n * per:(n + 1) * per]:
            e(s)


def phase_out(slow):
    tag = "s" if slow else "f"
    a.c("---- out phase (%s) ----" % tag)
    e("v_lshrrev_b32 v16, 5, v%d" % V_LANE)
    e("v_and_b32 v17, 31, v%d" % V_LANE)
    e("v_lshlrev_b32 v%d, 14, v16" % V_ST)
    e("v_lshl_add_u32 v%d, v17, 4, v%d" % (V_ST, V_ST))
    e("s_mul_i32 s%d, s%d, 4000" % (S_T, S_B))
    e("s_add_u32 s%d, s%d, s%d" % (S_T, S_T, S_T0))
    e("s_lshl_b32 s%d, s%d, 12" % (S_OBASE, S_T))
    e("s_lshl_b32 s%d, s%d, 10" % (S_T, S_W))
    e("s_add_u32 s%d, s%d, s%d" % (S_OBASE, S_OBASE, S_T))
    e("s_mov_b32 s%d, 0" % S_PASS)
    a.lab("L_pass_%s" % tag)
    e("v_lshrrev_b32 v16, 5, v%d" % V_LANE)
    e("v_and_b32 v17, 31, v%d" % V_LANE)
    e("v_mul_u32_u24 v%d, %d, v17" % (V_EA, EAP))
    e("v_lshl_add_u32 v%d, v16, 5, v%d" % (V_EA, V_EA))
    e("v_add_u32 v%d, 0x%x, v%d" % (V_EA, EAB, V_EA))
    e("s_lshl_b32 s%d, s%d, 1" % (S_T, S_W))
    e("s_add_u32 s%d, s%d, s%d" % (S_T, S_T, S_PASS))
    e("s_lshl_b32 s%d, s%d, 10" % (S_T, S_T))
    e("s_add_u32 s%d, s%d, %d" % (S_T, S_T, EBB))
    e("v_lshlrev_b32 v%d, 5, v16" % V_EB)
    e("v_add_u32 v%d, s%d, v%d" % (V_EB, S_T, V_EB))
    e("v_lshlrev_b32 v%d, 4, v%d" % (V_B, V_LANE))
    for s in out_eloads(0, 0) + out_eloads(1, 64) + out_bloads(0, 0):
        e(s)
    for i in range(4):
        e("v_mov_b32 v%d, 0" % (60 + i))
    e("s_nop 1")
    for n in range(8):
        e("v_mfma_f32_32x32x16_bf16 %s, %s, %s, 0" % (vr(OACC + 16 * n, 16), vr(60), vr(60)))
    e("s_waitcnt lgkmcnt(12)")
    for s in out_valu(0, slow):
        e(s)
    e("s_mov_b32 s%d, 0" % S_CNT)
    a.lab("L_ok_%s" % tag)
    out_kstep(0, lambda n: ar(BB[0] + 4 * n), out_valu(1, slow), out_bloads(1, 8192) + out_eloads(0, 128))
    out_kstep(1, lambda n: ar(BB[1] + 4 * n), out_valu(0, slow), out_bloads(0, 16384) + out_eloads(1, 192))
    e("v_add_u32 v%d, 0x80, v%d" % (V_EA, V_EA))
    e("v_add_u32 v%d, 0x80, v%d" % (V_EB, V_EB))
    e("v_add_u32 v%d, 0x4000, v%d" % (V_B, V_B))
    e("s_add_u32 s%d, s%d, 1" % (S_CNT, S_CNT))
    e("s_cmp_lt_u32 s%d, 7" % S_CNT)
    e("s_cbranch_scc1 L_ok_%s" % tag)
    out_kstep(0, lambda n: vr(192 + 4 * n), out_valu(1, slow), [])
    out_kstep(1, lambda n: vr(224 + 4 * n), [], [])
    e("s_nop 7")
    e("s_nop 3")
    e("s_lshl_b32 s%d, s%d, 9" % (S_T, S_PASS))
    e("s_add_u32 s%d, s%d, s%d" % (S_T, S_T, S_OBASE))
    for r in range(16):
        st = STG[r & 3]
        t = 8 * (r >> 2) + (r & 3)
        for i in range(4):
            e("v_cvt_pk_bf16_f32 v%d, v%d, v%d" % (st + i, OACC + 16 * (2 * i) + r, OACC + 16 * (2 * i + 1) + r))
        e("s_add_u32 s%d, s%d, %d" % (S_SO, S_T, t * 4096))
        e("buffer_store_dwordx4 %s, v%d, %s, s%d offen" % (vr(st), V_ST, sr(SRD_O, 4), S_SO))
    e("s_add_u32 s%d, s%d, 1" % (S_PASS, S_PASS))
    e("s_cmp_lt_u32 s%d, 2" % S_PASS)
    e("s_cbranch_scc1 L_pass_%s" % tag)
    e("s_endpgm")


def main():
    prologue()
    phase_g()
    dump_lds("eb", EBB, 8192, 0)
    dump_lds("x", XB, 73728, 0x10000)
    phase_c1()
    epi1()
    dump_lds("h", HB, 36864, 0)
    phase_c2()
    epi2()
    dump_lds("f", FB, 20480, 0x10000)
    phase_f()
    epi3()
    dump_lds("ea", EAB, 36864, 0x20000)
    phase_wo()
    e("s_cmp_lg_u32 s%d, 0" % S_FLAG)
    e("s_cbranch_scc1 L_slow")
    phase_out(False)
    a.lab("L_slow")
    phase_out(True)
    a.lab("L_end")
    e("s_endpgm")

    hdr = open("standalone__seq2seq_rnn_t_joint__speech.s.ref").read().split("\n")
    top = [l for l in hdr if l.startswith(";") and "@launch" not in l and "Override" not in l and "grid=ceil" not in l]
    out = "\n".join(top) + "\n"
    out += "; @launch grid=(250,1,1) block=(256,1,1) lds=%d\n" % LDS_TOTAL
    out += '.amdgcn_target "amdgcn-amd-amdhsa--gfx950"\n.text\n.globl %s\n.p2align 8\n.type %s,@function\n%s:\n' % (KN, KN, KN)
    out += "\n".join(a.l) + "\n"
    out += """.section .rodata,"a"
.p2align 6
.amdhsa_kernel %s
  .amdhsa_next_free_vgpr 512
  .amdhsa_next_free_sgpr 102
  .amdhsa_accum_offset 256
  .amdhsa_group_segment_fixed_size 0
  .amdhsa_kernarg_size 80
  .amdhsa_user_sgpr_count 2
  .amdhsa_user_sgpr_kernarg_segment_ptr 1
  .amdhsa_system_sgpr_workgroup_id_x 1
.end_amdhsa_kernel
""" % KN
    dst = sys.argv[1] if len(sys.argv) > 1 else "standalone__seq2seq_rnn_t_joint__speech.s"
    open(dst, "w").write(out)


main()
```

```python
import sys, os, struct

DEBUG = os.environ.get("DBG", "")
PROF = os.environ.get("PROF", "")
PACE = int(os.environ.get("PACE", "72"))
STARTF = int(os.environ.get("STARTF", "2"))
NSTAMP = [0]

KN = "standalone__seq2seq_rnn_t_joint__speech_kernel"

XPP = 1056
XB = 0
EXB = 73728
EX1S = 18432
HB = 0
HP = 528
FB = 36864
FP = 544
FLG = 114688
EAB = 122368
EAP = 1040
EBB = 155648
LDS_TOTAL = 163840

V_OFF16, V_OFF32, V_LD = 1, 2, 3
V_A0, V_A1, V_A2 = 4, 5, 6
V_EXW, V_EXR = 7, 8
V_W0, V_W1 = 9, 10
V_MASK = 11
V_C0 = 12
V_LANE = 14
V_T0, V_T1 = 15, 16
V_OFF32W = 18
TMP = 20
RING = 64

S_X, S_W1, S_W2, S_G, S_WF, S_WG, S_WO, S_OUT = 4, 6, 8, 10, 12, 14, 16, 18
SRD_X, SRD_G, SRD_O = 20, 24, 28
S_W, S_NH, S_KH, S_B, S_T0, S_CNT = 56, 57, 58, 59, 60, 61
S_SELLO, S_SELHI = 62, 63
S_C1 = 64
S_ONE = 66
S_FLAG = 68
S_T = 69
S_SCL = 76
S_OBASE = 79
S_WSP = 80
S_SO = 82
S_R = 83
S_DBG = 84
SRD_WS = 88
S_TILE = 86

A_ACC1 = 0
A_AF = 160
A_ACCG = 200
A_GF = 232
A_ACC2 = 64
A_ACC3 = 0


def f32bits(x):
    return struct.unpack("<I", struct.pack("<f", x))[0]


LOG2E = 1.4426950408889634
GC0 = -2.0 * 0.7978845608028654 * LOG2E
GC1 = GC0 * 0.044715
TSC = 2.0 * LOG2E


class A:
    def __init__(self):
        self.l = []
        self.noins = 0

    def cost(self, s):
        op = s.split()[0]
        if op.startswith("v_mfma_f32_16x16"):
            return 10
        if op.startswith("v_mfma"):
            return 32
        if op in ("v_exp_f32", "v_rcp_f32"):
            return 8
        if op.startswith("v_"):
            return 4
        if op.startswith("ds_write_b128"):
            return 12
        if op.startswith("ds_"):
            return 4
        if op.startswith("buffer_") or op.startswith("global_"):
            return 8
        if op == "s_barrier":
            return 60
        if op == "s_nop":
            return 4 * (int(s.split()[1]) + 1)
        return 2

    def e(self, s):
        self.l.append(["i", s, self.cost(s), self.noins])

    def vm(self, s):
        self.l.append(["v", s, 8, 1])

    def lab(self, s):
        self.l.append(["l", s, 0, 1])

    def c(self, s):
        self.l.append(["c", s, 0, self.noins])

    def op(self, kind, arg):
        self.l.append([kind, arg, 0, self.noins])


a = A()
e = a.e


def vr(b, n=4):
    return "v[%d:%d]" % (b, b + n - 1)


def ar(b, n=4):
    return "a[%d:%d]" % (b, b + n - 1)


def sr(b, n=2):
    return "s[%d:%d]" % (b, b + n - 1)


def slot(u):
    return RING + 32 * (u % 6)


def conv_off(it, u):
    return (u >> 1) * 131072 + (u & 1) * 32768 + it * 65536


UNITS = []
for it in range(2):
    for u in range(6):
        UNITS.append((S_W1, V_OFF16, conv_off(it, u)))
for it in range(2):
    for u in range(6):
        UNITS.append((S_W2, V_OFF16, conv_off(it, u)))
for u in range(4):
    UNITS.append((S_WF, V_OFF16, u * 32768))
for i in range(4):
    UNITS.append((S_WO, V_OFF32W, i * 32768))
UNITS.append((S_WO, V_OFF32, 14 * 8192))
UNITS.append((S_WO, V_OFF32, 15 * 8192))
U_C1, U_C2, U_F, U_O = 0, 12, 24, 28


def perms(unit, j, dst):
    R = slot(unit)
    d = j >> 1
    sel = S_SELHI if (j & 1) else S_SELLO
    return ["v_perm_b32 v%d, v%d, v%d, s%d" % (dst + p, R + 4 * (2 * p + 1) + d, R + 4 * (2 * p) + d, sel)
            for p in range(4)]


FBUF = TMP


def prime(unit):
    a.op("need", unit)
    for j in (0, 1):
        for s in perms(unit, j, FBUF + 4 * j):
            e(s)


def emit_units(units, nM, acc):
    for ui, u in enumerate(units):
        e("s_waitcnt lgkmcnt(0)")
        areads = list(u.get("areads", []))
        un = u["unit"]
        for j in range(8):
            fill = []
            jt = j + 2
            if jt < 8:
                fill += perms(un, jt, FBUF + 4 * (jt & 3))
                if jt == 7:
                    fill.append(("free", un))
            elif not u["last"]:
                if j == 6:
                    fill.append(("need", un + 1))
                fill += perms(un + 1, jt - 8, FBUF + 4 * (jt & 3))
            if areads and j < 6:
                fill.append(areads.pop(0))
            fb = FBUF + 4 * (j & 3)
            k = 0
            for sl in range(nM):
                d = acc(sl, j)
                e("v_mfma_f32_16x16x32_bf16 %s, %s, %s, %s" % (ar(d), ar(u["aset"][sl]), vr(fb), ar(d)))
                take = 2 if sl < nM - 1 else len(fill) - k
                for s in fill[k:k + take]:
                    if isinstance(s, tuple):
                        a.op(s[0], s[1])
                    else:
                        e(s)
                k += take
        assert not areads


def zero_acc(base, n, zreg):
    for b in range(base, base + n, 16):
        e("v_mfma_f32_32x32x16_bf16 %s, %s, %s, 0" % (ar(b, 16), vr(zreg), vr(zreg)))


def gelu_pairs(xs, ts):
    for x, t in zip(xs, ts):
        e("v_pk_mul_f32 %s, %s, %s" % (vr(t, 2), vr(x, 2), vr(x, 2)))
    for x, t in zip(xs, ts):
        e("v_pk_fma_f32 %s, %s, %s, %s" % (vr(t, 2), vr(t, 2), sr(S_C1), vr(V_C0, 2)))
    for x, t in zip(xs, ts):
        e("v_pk_mul_f32 %s, %s, %s" % (vr(t, 2), vr(x, 2), vr(t, 2)))
    for x, t in zip(xs, ts):
        e("v_exp_f32 v%d, v%d" % (t, t))
        e("v_exp_f32 v%d, v%d" % (t + 1, t + 1))
    for x, t in zip(xs, ts):
        e("v_pk_add_f32 %s, %s, %s" % (vr(t, 2), vr(t, 2), sr(S_ONE)))
    for x, t in zip(xs, ts):
        e("v_rcp_f32 v%d, v%d" % (t, t))
        e("v_rcp_f32 v%d, v%d" % (t + 1, t + 1))
    for x, t in zip(xs, ts):
        e("v_pk_mul_f32 %s, %s, %s" % (vr(t, 2), vr(x, 2), vr(t, 2)))


def stamp():
    if not PROF:
        return
    i = NSTAMP[0]
    NSTAMP[0] += 1
    assert i < 60
    e("s_memtime s[98:99]")
    e("s_waitcnt lgkmcnt(0)")
    e("v_writelane_b32 v19, s98, %d" % i)


def stamp_store():
    if not PROF:
        return
    e("s_waitcnt vmcnt(0)")
    stamp()
    e("s_lshl_b32 s98, s2, 10")
    e("s_lshl_b32 s99, s%d, 8" % S_W)
    e("s_add_u32 s98, s98, s99")
    e("s_add_u32 s98, s98, 0x10000")
    e("v_lshlrev_b32 v17, 2, v%d" % V_LANE)
    e("v_add_u32 v17, s98, v17")
    e("global_store_dword v17, v19, %s" % sr(S_WSP))


def prologue():
    a.noins = 1
    e("s_cmp_ge_u32 s2, 252")
    e("s_cbranch_scc1 L_end")
    stamp()
    e("s_load_dwordx16 s[4:19], s[0:1], 0")
    e("s_load_dwordx2 %s, s[0:1], 64" % sr(S_DBG))
    e("s_load_dwordx2 %s, s[0:1], 72" % sr(S_WSP))
    e("v_lshrrev_b32 v20, 6, v0")
    e("v_and_b32 v%d, 63, v0" % V_LANE)
    e("s_sub_u32 s%d, s2, 2" % S_TILE)
    e("s_cmp_ge_u32 s%d, 125" % S_TILE)
    e("v_readfirstlane_b32 s%d, v20" % S_W)
    e("s_cselect_b32 s%d, 1, 0" % S_B)
    e("s_mul_i32 s%d, s%d, 125" % (S_T, S_B))
    e("s_sub_u32 s%d, s%d, s%d" % (S_T0, S_TILE, S_T))
    e("s_lshl_b32 s%d, s%d, 5" % (S_T0, S_T0))
    e("s_and_b32 s%d, s%d, 1" % (S_NH, S_W))
    e("s_lshr_b32 s%d, s%d, 1" % (S_KH, S_W))
    e("s_mov_b32 s%d, 0x05040100" % S_SELLO)
    e("s_mov_b32 s%d, 0x07060302" % S_SELHI)
    e("s_mov_b32 s%d, 0x%x" % (S_SCL, f32bits(TSC)))
    e("v_lshrrev_b32 v21, 4, v%d" % V_LANE)
    e("v_and_b32 v22, 15, v%d" % V_LANE)
    e("v_lshrrev_b32 v23, 5, v%d" % V_LANE)
    e("v_and_b32 v24, 31, v%d" % V_LANE)
    e("s_lshl_b32 s%d, s%d, 8" % (S_T, S_NH))
    e("s_lshl_b32 s%d, s%d, 14" % (S_T + 1, S_KH))
    e("s_add_u32 s%d, s%d, s%d" % (S_T, S_T, S_T + 1))
    e("v_lshlrev_b32 v25, 12, v21")
    e("v_lshl_add_u32 v25, v22, 4, v25")
    e("v_add_u32 v%d, s%d, v25" % (V_OFF16, S_T))
    e("v_lshlrev_b32 v26, 9, v23")
    e("v_lshl_add_u32 v26, v24, 4, v26")
    e("v_lshlrev_b32 v25, 4, v%d" % V_LANE)
    e("s_mul_i32 s%d, s%d, %d" % (S_T, S_W, EX1S))
    e("s_add_u32 s%d, s%d, %d" % (S_T, S_T, EXB))
    e("v_add_u32 v%d, s%d, v25" % (V_EXW, S_T))
    e("s_xor_b32 s%d, s%d, 2" % (S_T + 1, S_W))
    e("s_mul_i32 s%d, s%d, %d" % (S_T, S_T + 1, EX1S))
    e("s_add_u32 s%d, s%d, %d" % (S_T, S_T, EXB))
    e("v_add_u32 v%d, s%d, v25" % (V_EXR, S_T))
    e("s_cmp_lt_u32 s2, 2")
    e("s_cbranch_scc1 L_prod")
    e("s_lshl_b32 s%d, s%d, 11" % (S_T, S_T0))
    e("s_sub_u32 s%d, s%d, 1536" % (S_T, S_T))
    e("s_lshl_b32 s%d, s%d, 10" % (S_T + 1, S_W))
    e("s_add_u32 s%d, s%d, s%d" % (S_T, S_T, S_T + 1))
    e("s_mul_i32 s%d, s%d, %d" % (S_T + 1, S_W, XPP))
    e("s_mul_i32 s%d, s%d, 8192000" % (S_T + 2, S_B))
    e("s_waitcnt lgkmcnt(0)")
    e("s_add_u32 s%d, s%d, s%d" % (SRD_X, S_X, S_T + 2))
    e("s_addc_u32 s%d, s%d, 0" % (SRD_X + 1, S_X + 1))
    e("s_and_b32 s%d, s%d, 0xffff" % (SRD_X + 1, SRD_X + 1))
    e("s_mov_b32 s%d, 8192000" % (SRD_X + 2))
    e("s_mov_b32 s%d, 0x00020000" % (SRD_X + 3))
    stamp()
    for i in range(17):
        e("v_add_u32 v%d, s%d, v26" % (27 + (i & 1), S_T))
        e("s_mov_b32 m0, s%d" % (S_T + 1))
        e("s_add_u32 s%d, s%d, 4096" % (S_T, S_T))
        a.vm("buffer_load_dwordx4 v%d, %s, 0 offen lds" % (27 + (i & 1), sr(SRD_X, 4)))
        e("s_add_u32 s%d, s%d, %d" % (S_T + 1, S_T + 1, 4 * XPP))
    a.op("mark", "x")
    stamp()
    a.op("flush", 1)
    a.noins = 0
    e("s_mov_b32 s%d, s%d" % (SRD_O, S_OUT))
    e("s_and_b32 s%d, s%d, 0xffff" % (SRD_O + 1, S_OUT + 1))
    e("s_mov_b32 s%d, 32768000" % (SRD_O + 2))
    e("s_mov_b32 s%d, 0x00020000" % (SRD_O + 3))
    e("s_mov_b32 s%d, s%d" % (SRD_WS, S_WSP))
    e("s_and_b32 s%d, s%d, 0xffff" % (SRD_WS + 1, S_WSP + 1))
    e("s_mov_b32 s%d, 32768" % (SRD_WS + 2))
    e("s_mov_b32 s%d, 0x00020000" % (SRD_WS + 3))
    e("s_mov_b32 s%d, 0x%x" % (S_C1, f32bits(GC1)))
    e("s_mov_b32 s%d, 0x%x" % (S_C1 + 1, f32bits(GC1)))
    e("s_mov_b32 s%d, 1.0" % S_ONE)
    e("s_mov_b32 s%d, 1.0" % (S_ONE + 1))
    e("s_mov_b32 s%d, 0" % S_FLAG)
    e("v_mov_b32 v%d, 0x%x" % (V_C0, f32bits(GC0)))
    e("v_mov_b32 v%d, 0x%x" % (V_C0 + 1, f32bits(GC0)))
    e("v_lshlrev_b32 v25, 12, v23")
    e("v_lshl_add_u32 v%d, v24, 4, v25" % V_OFF32)
    e("s_lshl_b32 s%d, s%d, 13" % (S_T, S_W))
    e("v_add_u32 v%d, s%d, v%d" % (V_OFF32W, S_T, V_OFF32))
    for i in range(4):
        e("v_mov_b32 v%d, 0" % (28 + i))
    e("s_nop 1")
    zero_acc(A_ACC1, 160, 28)
    e("s_or_b32 s%d, s%d, s%d" % (S_T, S_T0, S_KH))
    e("v_or_b32 v25, s%d, v21" % S_T)
    e("v_cmp_eq_u32 vcc, 0, v25")
    e("v_mov_b32 v25, 1.0")
    e("s_nop 1")
    e("v_cndmask_b32 v%d, v25, 0, vcc" % V_MASK)
    e("s_lshl_b32 s%d, s%d, 6" % (S_T, S_KH))
    e("v_mul_u32_u24 v25, %d, v22" % XPP)
    e("v_lshl_add_u32 v25, v21, 4, v25")
    e("v_add_u32 v25, s%d, v25" % S_T)
    e("s_mul_i32 s%d, s%d, 33792" % (S_T, S_KH))
    e("v_add_u32 v%d, s%d, v25" % (V_A0, S_T))
    e("s_sub_u32 s%d, 33792, s%d" % (S_T, S_T))
    e("v_add_u32 v%d, s%d, v25" % (V_A1, S_T))
    e("v_add_u32 v%d, 0x%x, v25" % (V_A2, 67584))
    a.op("flush", STARTF)
    a.op("needmark", "x")
    e("s_barrier")


def producer():
    a.lab("L_prod")
    e("s_lshl_b32 s%d, s2, 12" % S_T)
    e("s_lshl_b32 s%d, s%d, 6" % (S_T + 1, S_KH))
    e("s_add_u32 s%d, s%d, s%d" % (S_T, S_T, S_T + 1))
    e("v_lshlrev_b32 v25, 9, v22")
    e("v_lshl_add_u32 v25, v21, 4, v25")
    e("v_add_u32 v25, s%d, v25" % S_T)
    e("s_waitcnt lgkmcnt(0)")
    e("s_mov_b32 s%d, s%d" % (SRD_G, S_G))
    e("s_and_b32 s%d, s%d, 0xffff" % (SRD_G + 1, S_G + 1))
    e("s_mov_b32 s%d, 8192" % (SRD_G + 2))
    e("s_mov_b32 s%d, 0x00020000" % (SRD_G + 3))
    for u in range(4):
        e("buffer_load_dwordx4 %s, v25, %s, 0 offen offset:%d" % (ar(A_GF + 4 * u), sr(SRD_G, 4), u * 128))
    for u in range(4):
        e("v_add_u32 v%d, 0x%x, v%d" % (V_LD, u * 32768, V_OFF16))
        for i in range(8):
            e("global_load_dwordx4 %s, v%d, %s offset:%d" % (vr(slot(u) + 4 * i), V_LD, sr(S_WG), i * 512))
    for i in range(4):
        e("v_mov_b32 v%d, 0" % (28 + i))
    e("s_nop 1")
    zero_acc(A_ACCG, 32, 28)
    e("s_waitcnt vmcnt(0)")
    for u in range(4):
        for j in range(8):
            for s_ in perms(u, j, FBUF + 4 * (j & 3)):
                e(s_)
            e("s_nop 1")
            d = A_ACCG + 4 * j
            e("v_mfma_f32_16x16x32_bf16 %s, %s, %s, %s" % (ar(d), ar(A_GF + 4 * u), vr(FBUF + 4 * (j & 3)), ar(d)))
    e("s_nop 7")
    e("s_nop 1")
    for j in range(8):
        e("ds_write_b128 v%d, %s offset:%d" % (V_EXW, ar(A_ACCG + 4 * j), j * 1024))
    e("v_lshrrev_b32 v20, 4, v%d" % V_LANE)
    e("v_and_b32 v21, 15, v%d" % V_LANE)
    e("v_and_b32 v20, 1, v20")
    e("v_lshlrev_b32 v20, 12, v20")
    e("v_lshl_add_u32 v20, v21, 5, v20")
    e("s_lshl_b32 s%d, s%d, 9" % (S_T, S_NH))
    e("s_lshl_b32 s%d, s2, 14" % (S_T + 1))
    e("s_add_u32 s%d, s%d, s%d" % (S_T, S_T, S_T + 1))
    e("v_add_u32 v%d, s%d, v20" % (V_W0, S_T))
    e("v_add_u32 v%d, 0x2000, v%d" % (V_A0, V_W0))
    e("v_mov_b32 v%d, 0" % V_W1)
    e("s_waitcnt lgkmcnt(0)")
    e("s_barrier")
    for j in range(8):
        e("ds_read_b128 %s, v%d offset:%d" % (vr(TMP + 4 * j), V_EXR, j * 1024))
    T = TMP + 32
    R = RING
    e("s_waitcnt lgkmcnt(0)")
    for j in range(8):
        P = TMP + 4 * j
        for r in range(4):
            e("v_accvgpr_read_b32 v%d, a%d" % (T + r, A_ACCG + 4 * j + r))
        e("v_pk_add_f32 %s, %s, %s" % (vr(P, 2), vr(P, 2), vr(T, 2)))
        e("v_pk_add_f32 %s, %s, %s" % (vr(P + 2, 2), vr(P + 2, 2), vr(T + 2, 2)))
        e("v_cvt_pk_bf16_f32 v%d, v%d, v%d" % (T, P, P + 1))
        e("v_cvt_pk_bf16_f32 v%d, v%d, v%d" % (T + 1, P + 2, P + 3))
        e("v_lshlrev_b32 v%d, 16, v%d" % (P, T))
        e("v_and_b32 v%d, 0xffff0000, v%d" % (P + 1, T))
        e("v_lshlrev_b32 v%d, 16, v%d" % (P + 2, T + 1))
        e("v_and_b32 v%d, 0xffff0000, v%d" % (P + 3, T + 1))
        for r in range(4):
            e("v_mul_f32 v%d, s%d, v%d" % (R + 8 * r + j, S_SCL, P + r))
        e("v_max3_f32 v%d, |v%d|, |v%d|, v%d" % (V_W1, R + j, R + 8 + j, V_W1))
        e("v_max3_f32 v%d, |v%d|, |v%d|, v%d" % (V_W1, R + 16 + j, R + 24 + j, V_W1))
        for r in range(4):
            e("v_exp_f32 v%d, v%d" % (R + 32 + 8 * r + j, R + 8 * r + j))
    e("v_mov_b32 v%d, 0x42fa0000" % T)
    e("s_mov_b32 exec_hi, 0")
    e("v_cmp_nle_f32 vcc, v%d, v%d" % (V_W1, T))
    for r in range(4):
        for hh in range(2):
            e("global_store_dwordx4 v%d, %s, %s offset:%d sc0 sc1" % (V_W0, vr(R + 32 + 8 * r + 4 * hh), sr(S_WSP), r * 1024 + hh * 16))
            e("global_store_dwordx4 v%d, %s, %s offset:%d sc0 sc1" % (V_A0, vr(R + 8 * r + 4 * hh), sr(S_WSP), r * 1024 + hh * 16))
    e("s_mov_b64 exec, -1")
    e("s_or_b32 s%d, vcc_lo, vcc_hi" % S_FLAG)
    e("s_cmp_lg_u32 s%d, 0" % S_FLAG)
    e("s_cselect_b32 s%d, 3, 1" % S_FLAG)
    e("s_lshl_b32 s%d, s2, 4" % S_T)
    e("s_lshl_b32 s%d, s%d, 2" % (S_T + 1, S_W))
    e("s_add_u32 s%d, s%d, s%d" % (S_T, S_T, S_T + 1))
    e("v_mov_b32 v20, s%d" % S_T)
    e("v_mov_b32 v21, s%d" % S_FLAG)
    e("s_waitcnt vmcnt(0)")
    e("s_mov_b32 exec_lo, 1")
    e("s_mov_b32 exec_hi, 0")
    e("global_store_dword v20, v21, %s sc0 sc1" % sr(S_DBG))
    e("s_endpgm")


def flag_issue():
    e("s_lshl_b32 s%d, s%d, 4" % (S_T, S_B))
    e("v_mov_b32 v15, s%d" % S_T)
    a.vm("global_load_dwordx4 v[60:63], v15, %s sc0 sc1" % sr(S_DBG))
    a.op("mark", "flag")


def eb_dma(wsoff):
    e("s_lshl_b32 s%d, s%d, 14" % (S_T, S_B))
    e("s_lshl_b32 s%d, s%d, 11" % (S_T + 1, S_W))
    e("s_add_u32 s%d, s%d, s%d" % (S_T, S_T, S_T + 1))
    e("s_add_u32 s%d, s%d, %d" % (S_T, S_T, wsoff))
    e("v_lshlrev_b32 v16, 4, v%d" % V_LANE)
    e("v_add_u32 v16, s%d, v16" % S_T)
    e("s_add_u32 s%d, s%d, %d" % (S_T + 1, S_T + 1, EBB))
    e("s_mov_b32 m0, s%d" % (S_T + 1))
    e("s_nop 0")


def flag_check():
    a.op("needmark", "flag")
    sv = a.noins
    a.noins = 1
    a.lab("L_flag_chk")
    e("v_min_u32 v16, v60, v61")
    e("v_min3_u32 v16, v62, v63, v16")
    e("v_or3_b32 v17, v60, v61, v62")
    e("v_or_b32 v17, v17, v63")
    e("v_readfirstlane_b32 s%d, v16" % (S_T))
    e("v_readfirstlane_b32 s%d, v17" % (S_T + 1))
    e("s_nop 3")
    e("s_cmp_lg_u32 s%d, 0" % S_T)
    e("s_cbranch_scc1 L_flag_ok")
    a.op("rare", 1)
    e("s_sleep 4")
    e("global_load_dwordx4 v[60:63], v15, %s sc0 sc1" % sr(S_DBG))
    e("s_waitcnt vmcnt(0)")
    e("s_branch L_flag_chk")
    a.op("rare", 0)
    a.lab("L_flag_ok")
    e("s_and_b32 s%d, s%d, 2" % (S_FLAG, S_T + 1))
    eb_dma(0)
    a.vm("buffer_load_dwordx4 v16, %s, 0 offen sc0 sc1 lds" % sr(SRD_WS, 4))
    a.vm("buffer_load_dwordx4 v16, %s, 0 offen offset:1024 sc0 sc1 lds" % sr(SRD_WS, 4))
    a.op("mark", "eb")
    a.noins = sv


TAPX = [0, 512, XPP]
TAPH = [0, HP, 2 * HP]


def c1_areads(it, nu, aset):
    tap, x8 = nu >> 1, nu & 1
    out = []
    for sl in range(5):
        base = V_A0 if sl < 2 else (V_A1 if sl < 4 else V_A2)
        off = ((sl & 1) * 16896 if sl < 4 else 0) + TAPX[tap] + x8 * 128 + it * 256
        out.append("ds_read_b128 %s, v%d offset:%d" % (ar(aset + 4 * sl), base, off))
    return out


def c2_areads(it, nu, aset):
    tap, x8 = nu >> 1, nu & 1
    return ["ds_read_b128 %s, v%d offset:%d" % (ar(aset + 4 * sl), V_A0 + sl, HB + TAPH[tap] + x8 * 128 + it * 256)
            for sl in range(2)]


def conv_phase(u0, nM, acc, areads_fn):
    for s in areads_fn(0, 0, A_AF):
        e(s)
    prime(u0)
    units = []
    for k in range(12):
        nk = k + 1
        units.append(dict(unit=u0 + k, aset=[A_AF + 20 * (k & 1) + 4 * s for s in range(nM)], last=(k == 11),
                          areads=(areads_fn(nk // 6, nk % 6, A_AF + 20 * (nk & 1)) if k < 11 else [])))
    emit_units(units, nM, acc)


def lane_fields():
    e("v_lshrrev_b32 v16, 4, v%d" % V_LANE)
    e("v_and_b32 v17, 15, v%d" % V_LANE)


P0, P1 = TMP, TMP + 8
TT = TMP + 16
OWN = TMP + 24
OUTR = TMP + 28


def add_own(P, accbase):
    for i in range(0, 8, 4):
        for k in range(4):
            e("v_accvgpr_read_b32 v%d, a%d" % (OWN + k, accbase + i + k))
        e("v_pk_add_f32 %s, %s, %s" % (vr(P + i, 2), vr(P + i, 2), vr(OWN, 2)))
        e("v_pk_add_f32 %s, %s, %s" % (vr(P + i + 2, 2), vr(P + i + 2, 2), vr(OWN + 2, 2)))


def epi_gelu_slot(accbase, rdoff, nblocks_after, wr, mask):
    for jp in range(4):
        P = P0 if (jp & 1) == 0 else P1
        Pn = P1 if (jp & 1) == 0 else P0
        nxt = rdoff + (2 * jp + 2) * 1024
        more = jp < 3 or nblocks_after
        if more:
            e("ds_read_b128 %s, v%d offset:%d" % (vr(Pn), V_EXR, nxt))
            e("ds_read_b128 %s, v%d offset:%d" % (vr(Pn + 4), V_EXR, nxt + 1024))
            e("s_waitcnt lgkmcnt(2)")
        else:
            e("s_waitcnt lgkmcnt(0)")
        add_own(P, accbase + 8 * jp)
        gelu_pairs([P, P + 2, P + 4, P + 6], [TT, TT + 2, TT + 4, TT + 6])
        if mask:
            e("v_mul_f32 v%d, v%d, v%d" % (TT, V_MASK, TT))
            e("v_mul_f32 v%d, v%d, v%d" % (TT + 4, V_MASK, TT + 4))
        for r in range(4):
            e("v_cvt_pk_bf16_f32 v%d, v%d, v%d" % (OUTR + 4 * r + jp, TT + r, TT + 4 + r))
    for r in range(4):
        e(wr(r))


def epi1():
    a.c("---- epilogue conv1 ----")
    e("s_nop 7")
    e("s_nop 1")
    for j in range(8):
        e("v_accvgpr_read_b32 v%d, a%d" % (TMP + j, A_ACC1 + 128 + 4 * j))
    for i in range(16):
        e("ds_write_b128 v%d, %s offset:%d" % (V_EXW, ar(A_ACC1 + 64 + 4 * i), i * 1024))
    e("ds_write_b128 v%d, %s offset:%d" % (V_EXW, vr(TMP), 16384))
    e("ds_write_b128 v%d, %s offset:%d" % (V_EXW, vr(TMP + 4), 17408))
    lane_fields()
    e("s_mul_i32 s%d, s%d, %d" % (S_T, S_KH, 32 * HP))
    e("s_lshl_b32 s%d, s%d, 8" % (S_T + 1, S_NH))
    e("v_mul_u32_u24 v16, %d, v16" % (4 * HP))
    e("v_lshl_add_u32 v17, v17, 4, s%d" % (S_T + 1))
    e("v_add3_u32 v%d, v16, v17, s%d" % (V_W0, S_T))
    e("v_add_u32 v%d, 0x%x, v17" % (V_W1, HB + 64 * HP))
    for i in range(4):
        e("v_mov_b32 v%d, 0" % (TT + i))
    e("s_waitcnt lgkmcnt(0)")
    e("s_nop 1")
    zero_acc(A_ACC2, 64, TT)
    e("s_barrier")
    e("ds_read_b128 %s, v%d offset:0" % (vr(P0), V_EXR))
    e("ds_read_b128 %s, v%d offset:1024" % (vr(P0 + 4), V_EXR))
    for sl in range(2):
        epi_gelu_slot(A_ACC1 + 32 * sl, sl * 8192, True,
                      lambda r, sl=sl: "ds_write_b128 v%d, %s offset:%d" % (V_W0, vr(OUTR + 4 * r), HB + (16 * sl + r) * HP),
                      sl == 0)
    e("s_waitcnt lgkmcnt(0)")
    for j in range(8):
        e("v_accvgpr_read_b32 v%d, a%d" % (TT + j, A_ACC1 + 128 + 4 * j))
    for i in range(0, 8, 2):
        e("v_pk_add_f32 %s, %s, %s" % (vr(P0 + i, 2), vr(P0 + i, 2), vr(TT + i, 2)))
    gelu_pairs([P0, P0 + 2, P0 + 4, P0 + 6], [TT, TT + 2, TT + 4, TT + 6])
    for i in range(4):
        e("v_cvt_pk_bf16_f32 v%d, v%d, v%d" % (P1 + i, TT + 2 * i, TT + 2 * i + 1))
    a.noins = 1
    e("s_mov_b32 exec_lo, 0xffff")
    e("s_mov_b32 exec_hi, 0")
    e("ds_write_b128 v%d, %s" % (V_W1, vr(P1)))
    e("s_mov_b64 exec, -1")
    a.noins = 0
    lane_fields()
    e("s_lshl_b32 s%d, s%d, 6" % (S_T, S_KH))
    e("v_mul_u32_u24 v17, %d, v17" % (2 * HP))
    e("v_lshl_add_u32 v17, v16, 4, v17")
    e("v_add_u32 v17, s%d, v17" % S_T)
    e("s_mul_i32 s%d, s%d, %d" % (S_T, S_KH, 32 * HP))
    e("v_add_u32 v%d, s%d, v17" % (V_A0, S_T))
    e("s_sub_u32 s%d, %d, s%d" % (S_T, 32 * HP, S_T))
    e("v_add_u32 v%d, s%d, v17" % (V_A1, S_T))
    e("v_lshlrev_b32 v16, 4, v%d" % V_LANE)
    e("s_lshl_b32 s%d, s%d, 13" % (S_T, S_W))
    e("s_add_u32 s%d, s%d, %d" % (S_T, S_T, EXB))
    e("v_add_u32 v%d, s%d, v16" % (V_EXW, S_T))
    e("s_xor_b32 s%d, s%d, 2" % (S_T, S_W))
    e("s_lshl_b32 s%d, s%d, 13" % (S_T, S_T))
    e("s_add_u32 s%d, s%d, %d" % (S_T, S_T, EXB))
    e("v_add_u32 v%d, s%d, v16" % (V_EXR, S_T))
    e("s_waitcnt lgkmcnt(0)")
    e("s_barrier")


def epi2():
    a.c("---- epilogue conv2 ----")
    flag_check()
    for i in range(8):
        e("ds_write_b128 v%d, %s offset:%d" % (V_EXW, ar(A_ACC2 + 32 + 4 * i), i * 1024))
    lane_fields()
    e("s_mul_i32 s%d, s%d, %d" % (S_T, S_KH, 16 * FP))
    e("s_lshl_b32 s%d, s%d, 8" % (S_T + 1, S_NH))
    e("v_mul_u32_u24 v16, %d, v16" % (4 * FP))
    e("v_lshl_add_u32 v17, v17, 4, s%d" % (S_T + 1))
    e("v_add3_u32 v%d, v16, v17, s%d" % (V_W0, S_T))
    for i in range(4):
        e("v_mov_b32 v%d, 0" % (TT + i))
    e("s_nop 1")
    zero_acc(A_ACC3, 64, TT)
    e("s_waitcnt lgkmcnt(0)")
    e("s_barrier")
    e("ds_read_b128 %s, v%d offset:0" % (vr(P0), V_EXR))
    e("ds_read_b128 %s, v%d offset:1024" % (vr(P0 + 4), V_EXR))
    epi_gelu_slot(A_ACC2, 0, False,
                  lambda r: "ds_write_b128 v%d, %s offset:%d" % (V_W0, vr(OUTR + 4 * r), FB + r * FP), False)
    lane_fields()
    e("s_lshl_b32 s%d, s%d, 6" % (S_T, S_KH))
    e("s_add_u32 s%d, s%d, %d" % (S_T, S_T, FB))
    e("v_mul_u32_u24 v17, %d, v17" % FP)
    e("v_lshl_add_u32 v17, v16, 4, v17")
    e("v_add_u32 v17, s%d, v17" % S_T)
    e("s_mul_i32 s%d, s%d, %d" % (S_T, S_KH, 16 * FP))
    e("v_add_u32 v%d, s%d, v17" % (V_A0, S_T))
    e("s_sub_u32 s%d, %d, s%d" % (S_T, 16 * FP, S_T))
    e("v_add_u32 v%d, s%d, v17" % (V_A1, S_T))
    e("s_waitcnt lgkmcnt(0)")
    e("s_barrier")


def f_areads(u, aset):
    return ["ds_read_b128 %s, v%d offset:%d" % (ar(aset + 4 * sl), V_A0 + sl, u * 128) for sl in range(2)]


def phase_f():
    a.c("---- fe ----")
    for s in f_areads(0, A_AF):
        e(s)
    prime(U_F)
    units = []
    for u in range(4):
        units.append(dict(unit=U_F + u, aset=[A_AF + 20 * (u & 1) + 4 * s for s in range(2)], last=(u == 3),
                          areads=(f_areads(u + 1, A_AF + 20 * ((u + 1) & 1)) if u < 3 else [])))
    emit_units(units, 2, lambda sl, j: A_ACC3 + (sl * 8 + j) * 4)


def epi3_body(raw):
    e("ds_read_b128 %s, v%d offset:0" % (vr(P0), V_EXR))
    e("ds_read_b128 %s, v%d offset:1024" % (vr(P0 + 4), V_EXR))
    for jp in range(4):
        P = P0 if (jp & 1) == 0 else P1
        Pn = P1 if (jp & 1) == 0 else P0
        if jp < 3:
            e("ds_read_b128 %s, v%d offset:%d" % (vr(Pn), V_EXR, (2 * jp + 2) * 1024))
            e("ds_read_b128 %s, v%d offset:%d" % (vr(Pn + 4), V_EXR, (2 * jp + 3) * 1024))
            e("s_waitcnt lgkmcnt(2)")
        else:
            e("s_waitcnt lgkmcnt(0)")
        add_own(P, A_ACC3 + 8 * jp)
        for i in range(4):
            e("v_cvt_pk_bf16_f32 v%d, v%d, v%d" % (TT + i, P + 2 * i, P + 2 * i + 1))
        for i in range(4):
            e("v_lshlrev_b32 v%d, 16, v%d" % (P + 2 * i, TT + i))
            e("v_and_b32 v%d, 0xffff0000, v%d" % (P + 2 * i + 1, TT + i))
        for i in range(8):
            e("v_mul_f32 v%d, s%d, v%d" % (P + i, S_SCL, P + i))
        if not raw:
            for i in range(4):
                e("v_max3_f32 v%d, |v%d|, |v%d|, v%d" % (V_W1, P + 2 * i, P + 2 * i + 1, V_W1))
        for jj in range(2):
            for r in range(4):
                d = OUTR + 4 * r + (jp & 1) * 2 + jj
                if raw:
                    e("v_mov_b32 v%d, v%d" % (d, P + 4 * jj + r))
                else:
                    e("v_exp_f32 v%d, v%d" % (d, P + 4 * jj + r))
        if jp & 1:
            e("s_nop 0")
            for r in range(4):
                e("ds_write_b128 v%d, %s offset:%d" % (V_W0, vr(OUTR + 4 * r), r * EAP + (jp >> 1) * 16))


def epi3():
    a.c("---- epilogue fe ----")
    e("s_nop 7")
    e("s_nop 1")
    for i in range(8):
        e("ds_write_b128 v%d, %s offset:%d" % (V_EXW, ar(A_ACC3 + 32 + 4 * i), i * 1024))
    lane_fields()
    e("s_mul_i32 s%d, s%d, %d" % (S_T, S_KH, 16 * EAP))
    e("s_add_u32 s%d, s%d, %d" % (S_T, S_T, EAB))
    e("s_lshl_b32 s%d, s%d, 9" % (S_T + 1, S_NH))
    e("v_mul_u32_u24 v16, %d, v16" % (4 * EAP))
    e("v_lshl_add_u32 v17, v17, 5, s%d" % (S_T + 1))
    e("v_add3_u32 v%d, v16, v17, s%d" % (V_W0, S_T))
    e("v_mov_b32 v%d, 0" % V_W1)
    e("s_waitcnt lgkmcnt(0)")
    e("s_barrier")
    epi3_body(False)
    e("v_mov_b32 v16, 0x42fa0000")
    e("v_cmp_nle_f32 vcc, v%d, v16" % V_W1)
    e("s_lshl_b32 s%d, s%d, 2" % (S_T, S_W))
    e("s_add_u32 s%d, s%d, %d" % (S_T, S_T, FLG))
    e("s_or_b32 s%d, s%d, vcc_lo" % (S_FLAG, S_FLAG))
    e("s_or_b32 s%d, s%d, vcc_hi" % (S_FLAG, S_FLAG))
    e("v_mov_b32 v16, s%d" % S_T)
    e("v_mov_b32 v17, s%d" % S_FLAG)
    e("ds_write_b32 v16, v17")
    e("s_waitcnt lgkmcnt(0)")
    e("s_barrier")
    e("v_mov_b32 v16, 0x%x" % FLG)
    e("ds_read_b128 %s, v16" % vr(TMP))
    e("s_waitcnt lgkmcnt(0)")
    e("v_or3_b32 v16, v%d, v%d, v%d" % (TMP, TMP + 1, TMP + 2))
    e("v_or_b32 v16, v16, v%d" % (TMP + 3))
    e("s_nop 0")
    e("v_readfirstlane_b32 s%d, v16" % S_FLAG)
    e("s_nop 3")
    e("s_cmp_eq_u32 s%d, 0" % S_FLAG)
    e("s_cbranch_scc1 L_fast1")
    a.noins = 1
    a.op("rare", 1)
    epi3_body(True)
    e("s_waitcnt vmcnt(0)")
    e("s_barrier")
    eb_dma(8192)
    e("buffer_load_dwordx4 v16, %s, 0 offen sc0 sc1 lds" % sr(SRD_WS, 4))
    e("buffer_load_dwordx4 v16, %s, 0 offen offset:1024 sc0 sc1 lds" % sr(SRD_WS, 4))
    e("s_waitcnt vmcnt(0) lgkmcnt(0)")
    e("s_barrier")
    a.op("rare", 0)
    a.lab("L_fast1")
    a.noins = 0


OACC = 64


def phase_wo():
    a.c("---- w_o fragments ----")
    e("v_lshlrev_b32 v16, 4, v%d" % V_LANE)
    e("s_lshl_b32 s%d, s%d, 13" % (S_T, S_W))
    e("v_add_u32 v16, s%d, v16" % S_T)
    for i in range(4):
        e("v_mov_b32 v%d, 0" % (60 + i))
    zl = ["v_mfma_f32_32x32x16_bf16 %s, %s, %s, 0" % (ar(OACC + 16 * n, 16), vr(60), vr(60)) for n in range(8)]
    for i in range(4):
        if i == 3:
            a.op("flush", len(UNITS) - 1)
            a.noins = 1
            e("s_cmp_ge_u32 s%d, 2" % S_W)
            e("s_cbranch_scc1 L_wo_skip")
        a.op("need", U_O + i)
        for n in range(8):
            for s in perms(U_O + i, n, TMP + 4 * n):
                e(s)
            if zl and i < 2 and (n & 1):
                e(zl.pop(0))
        for n in range(8):
            e("ds_write_b128 v16, %s offset:%d" % (vr(TMP + 4 * n), n * 1024))
        if i < 3:
            e("v_add_u32 v16, 0x8000, v16")
            e("s_waitcnt lgkmcnt(0)")
    a.lab("L_wo_skip")
    for i in (4, 5):
        a.op("need", U_O + i)
        for n in range(8):
            for s in perms(U_O + i, n, 192 + 32 * (i - 4) + 4 * n):
                e(s)
    for n in range(8):
        e("v_mfma_f32_32x32x16_bf16 %s, %s, %s, 0" % (vr(OACC + 16 * n, 16), vr(60), vr(60)))
    e("s_waitcnt lgkmcnt(0)")
    e("s_barrier")


EA = [20, 28]
EB = [36, 44]
JF = [52, 56]
V_EA, V_EB, V_B, V_ST = 4, 5, 6, 7
BB = [0, 32]
STG = [8, 60]


def out_valu(par, slow):
    ea, eb, jf = EA[par], EB[par], JF[par]
    v = []
    if slow:
        for i in range(8):
            v.append("v_add_f32 v%d, v%d, v%d" % (ea + i, ea + i, eb + i))
        for i in range(8):
            v.append("v_exp_f32 v%d, v%d" % (ea + i, ea + i))
        for i in range(8):
            v.append("v_add_f32 v%d, 1.0, v%d" % (ea + i, ea + i))
    else:
        for i in range(8):
            v.append("v_fma_f32 v%d, v%d, v%d, 1.0" % (ea + i, ea + i, eb + i))
    for i in range(8):
        v.append("v_rcp_f32 v%d, v%d" % (ea + i, ea + i))
    for i in range(8):
        v.append("v_fma_f32 v%d, v%d, -2.0, 1.0" % (ea + i, ea + i))
    for i in range(4):
        v.append("v_cvt_pk_bf16_f32 v%d, v%d, v%d" % (jf + i, ea + 2 * i, ea + 2 * i + 1))
    return v


def out_eloads(par, off):
    return ["ds_read_b128 %s, v%d offset:%d" % (vr(EA[par]), V_EA, off),
            "ds_read_b128 %s, v%d offset:%d" % (vr(EA[par] + 4), V_EA, off + 16),
            "ds_read_b128 %s, v%d offset:%d" % (vr(EB[par]), V_EB, off),
            "ds_read_b128 %s, v%d offset:%d" % (vr(EB[par] + 4), V_EB, off + 16)]


def out_bloads(par, off):
    return ["ds_read_b128 %s, v%d offset:%d" % (ar(BB[par] + 4 * n), V_B, off + n * 1024) for n in range(8)]


def store_group(par, rstatic=None):
    st = STG[par]
    g = []
    if rstatic is None:
        g.append("s_set_gpr_idx_on s%d, 0x3" % S_R)
        g.append("s_nop 0")
        r = 0
    else:
        r = rstatic
    for i in range(4):
        g.append("v_cvt_pk_bf16_f32 v%d, v%d, v%d" % (st + i, OACC + 16 * (2 * i) + r, OACC + 16 * (2 * i + 1) + r))
    if rstatic is None:
        g.append("s_set_gpr_idx_off")
        g.append("s_add_u32 s%d, s%d, 1" % (S_R, S_R))
    g.append("buffer_store_dwordx4 %s, v%d, %s, s%d offen" % (vr(st), V_ST, sr(SRD_O, 4), S_SO))
    return g


def out_kstep(par, bsrc, accf, valu, loads, stg=None):
    e("s_waitcnt lgkmcnt(0)")
    e("s_nop 0")
    gaps = [[] for _ in range(8)]
    li = 0
    for n in range(4):
        for _ in range(3):
            if li < len(loads):
                gaps[n].append(loads[li]); li += 1
    target = [8, 8, 8, 8, 24, 24, 24, 24] if loads else [24] * 8
    if stg:
        gaps[5] = list(stg) + gaps[5]
        target[5] = 4
    vi = 0
    for n in range(8):
        c = 0
        while vi < len(valu) and (c < target[n] or n == 7):
            gaps[n].append(valu[vi]); c += a.cost(valu[vi]); vi += 1
    for n in range(8):
        d = accf(n)
        e("v_mfma_f32_32x32x16_bf16 %s, %s, %s, %s" % (d, vr(JF[par]), bsrc(n), d))
        for s in gaps[n]:
            e(s)


def out_pass(tag, slow, second):
    accf = (lambda n: ar(OACC + 16 * n, 16)) if second else (lambda n: vr(OACC + 16 * n, 16))
    e("v_lshrrev_b32 v16, 5, v%d" % V_LANE)
    e("v_and_b32 v17, 31, v%d" % V_LANE)
    e("v_mul_u32_u24 v%d, %d, v17" % (V_EA, EAP))
    e("v_lshl_add_u32 v%d, v16, 5, v%d" % (V_EA, V_EA))
    e("v_add_u32 v%d, 0x%x, v%d" % (V_EA, EAB, V_EA))
    e("s_lshl_b32 s%d, s%d, 11" % (S_T, S_W))
    e("s_add_u32 s%d, s%d, %d" % (S_T, S_T, EBB + (1024 if second else 0)))
    e("v_lshlrev_b32 v%d, 5, v16" % V_EB)
    e("v_add_u32 v%d, s%d, v%d" % (V_EB, S_T, V_EB))
    e("v_lshlrev_b32 v%d, 4, v%d" % (V_B, V_LANE))
    for s in out_eloads(0, 0) + out_eloads(1, 64):
        e(s)
    e("s_waitcnt lgkmcnt(4)")
    for s in out_bloads(0, 0):
        e(s)
    for s in out_valu(0, slow):
        e(s)
    e("s_mov_b32 s%d, 0" % S_CNT)
    if second:
        e("s_mov_b32 s%d, 0" % S_R)
        e("s_mov_b32 s%d, s%d" % (S_SO, S_OBASE))
    lab = "L_ok_%s%d" % (tag, int(second))
    a.lab(lab)
    sg0 = sg1 = None
    if second:
        sg0 = store_group(0) + ["s_add_u32 s%d, s%d, 4096" % (S_SO, S_SO)]
        sg1 = store_group(1) + ["s_and_b32 s%d, s%d, 1" % (S_T, S_CNT), "s_lshl_b32 s%d, s%d, 14" % (S_T, S_T),
                                "s_add_u32 s%d, s%d, s%d" % (S_SO, S_SO, S_T), "s_add_u32 s%d, s%d, 4096" % (S_SO, S_SO)]
    out_kstep(0, lambda n: ar(BB[0] + 4 * n), accf, out_valu(1, slow), out_bloads(1, 8192) + out_eloads(0, 128), sg0)
    out_kstep(1, lambda n: ar(BB[1] + 4 * n), accf, out_valu(0, slow), out_bloads(0, 16384) + out_eloads(1, 192), sg1)
    e("v_add_u32 v%d, 0x80, v%d" % (V_EA, V_EA))
    e("v_add_u32 v%d, 0x80, v%d" % (V_EB, V_EB))
    e("v_add_u32 v%d, 0x4000, v%d" % (V_B, V_B))
    e("s_add_u32 s%d, s%d, 1" % (S_CNT, S_CNT))
    e("s_cmp_lt_u32 s%d, 7" % S_CNT)
    e("s_cbranch_scc1 %s" % lab)
    if second:
        sg0 = store_group(0, 14) + ["s_add_u32 s%d, s%d, 4096" % (S_SO, S_SO)]
        sg1 = store_group(1, 15)
    out_kstep(0, lambda n: vr(192 + 4 * n), accf, out_valu(1, slow), [], sg0)
    out_kstep(1, lambda n: vr(224 + 4 * n), accf, [], [], sg1)
    if not second:
        e("s_nop 7")


def phase_out(slow):
    tag = "s" if slow else "f"
    a.c("---- out phase (%s) ----" % tag)
    e("v_lshrrev_b32 v16, 5, v%d" % V_LANE)
    e("v_and_b32 v17, 31, v%d" % V_LANE)
    e("v_lshlrev_b32 v%d, 14, v16" % V_ST)
    e("v_lshl_add_u32 v%d, v17, 4, v%d" % (V_ST, V_ST))
    e("s_mul_i32 s%d, s%d, 4000" % (S_T, S_B))
    e("s_add_u32 s%d, s%d, s%d" % (S_T, S_T, S_T0))
    e("s_lshl_b32 s%d, s%d, 12" % (S_OBASE, S_T))
    e("s_lshl_b32 s%d, s%d, 10" % (S_T, S_W))
    e("s_add_u32 s%d, s%d, s%d" % (S_OBASE, S_OBASE, S_T))
    out_pass(tag, slow, False)
    if not slow:
        stamp()
    out_pass(tag, slow, True)
    if not slow:
        stamp()
    e("s_nop 7")
    e("s_nop 3")
    e("s_add_u32 s%d, s%d, 512" % (S_T, S_OBASE))
    stq = [20, 36]
    for r in range(16):
        tq = stq[r & 1]
        st = tq + 8 + 4 * ((r >> 1) & 1)
        t = 8 * (r >> 2) + (r & 3)
        for n in range(8):
            e("v_accvgpr_read_b32 v%d, a%d" % (tq + n, OACC + 16 * n + r))
        for i in range(4):
            e("v_cvt_pk_bf16_f32 v%d, v%d, v%d" % (st + i, tq + 2 * i, tq + 2 * i + 1))
        e("s_add_u32 s%d, s%d, %d" % (S_SO, S_T, t * 4096))
        e("buffer_store_dwordx4 %s, v%d, %s, s%d offen" % (vr(st), V_ST, sr(SRD_O, 4), S_SO))
    if not slow:
        stamp()
        stamp_store()
    e("s_endpgm")


def schedule(entries):
    out = []
    pend = [(u, i) for u in range(len(UNITS)) for i in range(8)]
    pi = 0
    freed = set()
    vcount = 0
    last = {}
    marks = {}
    t = 0
    next_t = 0
    rare = 0
    forced = {}

    def can(u):
        return u < 6 or (u - 6) in freed

    def issue():
        nonlocal pi, vcount, t, next_t
        u, i = pend[pi]
        sb, vo, cst = UNITS[u]
        if i == 0:
            out.append("  v_add_u32 v%d, 0x%x, v%d" % (V_LD, cst, vo))
            t += 4
        out.append("  global_load_dwordx4 %s, v%d, %s offset:%d" % (vr(slot(u) + 4 * i), V_LD, sr(sb), i * 512))
        vcount += 1
        last[u] = vcount
        pi += 1
        t += 8
        next_t = max(next_t, t - 8) + PACE

    for k, arg, cost, noins in entries:
        if not noins and k in ("i",):
            while pi < len(pend) and t >= next_t and can(pend[pi][0]):
                issue()
        if k == "i":
            out.append("  " + arg)
            if not rare:
                t += cost
        elif k == "v":
            out.append("  " + arg)
            vcount += 1
            t += PACE
            next_t = max(next_t, t)
        elif k == "l":
            out.append(arg + ":")
        elif k == "c":
            out.append("  ; %s  [t=%d, loads issued %d]" % (arg, t, pi))
        elif k == "free":
            freed.add(arg)
        elif k == "rare":
            rare = arg
        elif k in ("need", "flush"):
            while pi < len(pend) and pend[pi][0] <= arg:
                assert can(pend[pi][0]), ("slot not free", pend[pi], arg)
                if k == "need":
                    forced[arg] = forced.get(arg, 0) + 1
                t = max(t, next_t)
                issue()
            if k == "need":
                n = vcount - last[arg]
                out.append("  s_waitcnt vmcnt(%d)" % min(n, 63))
        elif k == "mark":
            marks[arg] = vcount
        elif k == "needmark":
            out.append("  s_waitcnt vmcnt(%d)" % min(vcount - marks[arg], 63))
    assert pi == len(pend)
    sys.stderr.write("est front cycles %d, forced: %s\n" % (t, forced))
    return out


def main():
    prologue()
    stamp()
    a.c("---- conv1 ----")
    conv_phase(U_C1, 5, lambda sl, j: A_ACC1 + (sl * 8 + j) * 4, c1_areads)
    stamp()
    epi1()
    stamp()
    a.c("---- conv2 ----")
    flag_issue()
    conv_phase(U_C2, 2, lambda sl, j: A_ACC2 + (sl * 8 + j) * 4, c2_areads)
    stamp()
    epi2()
    stamp()
    phase_f()
    stamp()
    epi3()
    stamp()
    phase_wo()
    stamp()
    a.noins = 1
    front = schedule(a.l)
    a.l = []
    e("s_cmp_lg_u32 s%d, 0" % S_FLAG)
    e("s_cbranch_scc1 L_slow")
    phase_out(False)
    a.lab("L_slow")
    phase_out(True)
    producer()
    a.lab("L_end")
    e("s_endpgm")
    back = []
    for k, arg, cost, noins in a.l:
        back.append(arg + ":" if k == "l" else ("  ; " + arg if k == "c" else "  " + arg))

    hdr = open("standalone__seq2seq_rnn_t_joint__speech.s.ref").read().split("\n")
    top = [l for l in hdr if l.startswith(";") and "@launch" not in l and "Override" not in l and "grid=ceil" not in l]
    out = "\n".join(top) + "\n"
    out += "; @launch grid=(252,1,1) block=(256,1,1) lds=%d\n" % LDS_TOTAL
    out += '.amdgcn_target "amdgcn-amd-amdhsa--gfx950"\n.text\n.globl %s\n.p2align 8\n.type %s,@function\n%s:\n' % (KN, KN, KN)
    out += "\n".join(front + back) + "\n"
    out += """.section .rodata,"a"
.p2align 6
.amdhsa_kernel %s
  .amdhsa_next_free_vgpr 512
  .amdhsa_next_free_sgpr 102
  .amdhsa_accum_offset 256
  .amdhsa_group_segment_fixed_size 0
  .amdhsa_kernarg_size 80
  .amdhsa_user_sgpr_count 2
  .amdhsa_user_sgpr_kernarg_segment_ptr 1
  .amdhsa_system_sgpr_workgroup_id_x 1
.end_amdhsa_kernel
""" % KN
    dst = sys.argv[1] if len(sys.argv) > 1 else "standalone__seq2seq_rnn_t_joint__speech.s"
    open(dst, "w").write(out)
    if PROF:
        sys.stderr.write("stamps %d\n" % NSTAMP[0])


main()
```

```python
import sys, os, struct

DEBUG = os.environ.get("DBG", "")
PROF = os.environ.get("PROF", "")
PACE = int(os.environ.get("PACE", "72"))
PACE0 = int(os.environ.get("PACE0", "30"))
NFAST = int(os.environ.get("NFAST", "60"))
PK = int(os.environ.get("PK", "0"))
STMOD = os.environ.get("STMOD", " nt")
WUPOS = int(os.environ.get("WUPOS", "8"))
XPOS = [int(v) for v in os.environ.get("XPOS", "2,5,7").split(",")]
XS2 = int(os.environ.get("XS2", "0"))
XS3 = int(os.environ.get("XS3", "1"))
XWU = int(os.environ.get("XWU", "3"))
WARM = int(os.environ.get("WARM", "1"))
NSTAMP = [0]

KN = "standalone__seq2seq_rnn_t_joint__speech_kernel"

XBP = 1152
XS = 17 * XBP
XB = 0
EXB = 78848
EX1S = 18432
HB = 0
HP = 528
FB = 36864
FP = 544
FLG = 114688
EAB = 122368
EAP = 1040
EBB = 155648
LDS_TOTAL = 163840

V_OFF16, V_OFF32, V_LD = 1, 2, 3
V_A0, V_A1, V_A2 = 4, 5, 6
V_EXW, V_EXR = 7, 8
V_W0, V_W1 = 9, 10
V_MASK = 11
V_C0 = 12
V_LANE = 14
V_T0, V_T1 = 15, 16
V_OFF32W = 18
TMP = 20
RING = 64

S_X, S_W1, S_W2, S_G, S_WF, S_WG, S_WO, S_OUT = 4, 6, 8, 10, 12, 14, 16, 18
SRD_X, SRD_G, SRD_O = 20, 24, 28
S_W, S_NH, S_KH, S_B, S_T0, S_CNT = 56, 57, 58, 59, 60, 61
S_SELLO, S_SELHI = 62, 63
S_C1 = 64
S_ONE = 66
S_FLAG = 68
S_T = 69
S_SCL = 76
S_OBASE = 79
S_WSP = 80
S_SO = 82
S_R = 83
S_DBG = 84
SRD_WS = 88
S_TILE = 86

A_ACC1 = 0
A_AF = 160
A_ACCG = 200
A_GF = 232
A_ACC2 = 64
A_ACC3 = 0


def f32bits(x):
    return struct.unpack("<I", struct.pack("<f", x))[0]


LOG2E = 1.4426950408889634
GC0 = -2.0 * 0.7978845608028654 * LOG2E
GC1 = GC0 * 0.044715
TSC = 2.0 * LOG2E


class A:
    def __init__(self):
        self.l = []
        self.noins = 0

    def cost(self, s):
        op = s.split()[0]
        if op.startswith("v_mfma_f32_16x16"):
            return 10
        if op.startswith("v_mfma"):
            return 32
        if op in ("v_exp_f32", "v_rcp_f32"):
            return 8
        if op.startswith("v_"):
            return 4
        if op.startswith("ds_write_b128"):
            return 12
        if op.startswith("ds_"):
            return 4
        if op.startswith("buffer_") or op.startswith("global_"):
            return 8
        if op == "s_barrier":
            return 60
        if op == "s_nop":
            return 4 * (int(s.split()[1]) + 1)
        return 2

    def e(self, s):
        self.l.append(["i", s, self.cost(s), self.noins])

    def vm(self, s):
        self.l.append(["v", s, 8, 1])

    def lab(self, s):
        self.l.append(["l", s, 0, 1])

    def c(self, s):
        self.l.append(["c", s, 0, self.noins])

    def op(self, kind, arg):
        self.l.append([kind, arg, 0, self.noins])


a = A()
e = a.e


def vr(b, n=4):
    return "v[%d:%d]" % (b, b + n - 1)


def ar(b, n=4):
    return "a[%d:%d]" % (b, b + n - 1)


def sr(b, n=2):
    return "s[%d:%d]" % (b, b + n - 1)


def slot(u):
    return RING + 32 * (u % 6)


def conv_off(it, u):
    return (u >> 1) * 131072 + (u & 1) * 32768 + it * 65536


UNITS = []
for k in range(12):
    UNITS.append((S_W1, V_OFF16, (k % 3) * 131072 + (k // 3) * 32768))
for k in range(12):
    UNITS.append((S_W2, V_OFF16, (k % 3) * 131072 + (k // 3) * 32768))
for u in range(4):
    UNITS.append((S_WF, V_OFF16, u * 32768))
for i in range(4):
    UNITS.append((S_WO, V_OFF32W, i * 32768))
UNITS.append((S_WO, V_OFF32, 14 * 8192))
UNITS.append((S_WO, V_OFF32, 15 * 8192))
U_C1, U_C2, U_F, U_O = 0, 12, 24, 28


def perms(unit, j, dst):
    R = slot(unit)
    d = j >> 1
    sel = S_SELHI if (j & 1) else S_SELLO
    return ["v_perm_b32 v%d, v%d, v%d, s%d" % (dst + p, R + 4 * (2 * p + 1) + d, R + 4 * (2 * p) + d, sel)
            for p in range(4)]


FBUF = TMP


def prime(unit):
    a.op("need", unit)
    for j in (0, 1):
        for s in perms(unit, j, FBUF + 4 * j):
            e(s)


def emit_units(units, nM, acc):
    for ui, u in enumerate(units):
        for s in u.get("pre", []):
            if isinstance(s, tuple) and s[0] == "call":
                s[1]()
            elif isinstance(s, tuple):
                a.op(s[0], s[1])
            else:
                e(s)
        e("s_waitcnt lgkmcnt(0)")
        areads = list(u.get("areads", []))
        un = u["unit"]
        for j in range(8):
            fill = []
            jt = j + 2
            if jt < 8:
                fill += perms(un, jt, FBUF + 4 * (jt & 3))
                if jt == 7:
                    fill.append(("free", un))
            elif not u["last"]:
                if j == 6:
                    fill.append(("need", un + 1))
                fill += perms(un + 1, jt - 8, FBUF + 4 * (jt & 3))
            if areads and j < 6:
                fill.append(areads.pop(0))
            fb = FBUF + 4 * (j & 3)
            k = 0
            for sl in range(nM):
                d = acc(sl, j)
                e("v_mfma_f32_16x16x32_bf16 %s, %s, %s, %s" % (ar(d), ar(u["aset"][sl]), vr(fb), ar(d)))
                take = 2 if sl < nM - 1 else len(fill) - k
                for s in fill[k:k + take]:
                    if isinstance(s, tuple):
                        a.op(s[0], s[1])
                    else:
                        e(s)
                k += take
        assert not areads


def zero_acc(base, n, zreg):
    for b in range(base, base + n, 16):
        e("v_mfma_f32_32x32x16_bf16 %s, %s, %s, 0" % (ar(b, 16), vr(zreg), vr(zreg)))


def gelu_pairs(xs, ts):
    for x, t in zip(xs, ts):
        e("v_pk_mul_f32 %s, %s, %s" % (vr(t, 2), vr(x, 2), vr(x, 2)))
    for x, t in zip(xs, ts):
        e("v_pk_fma_f32 %s, %s, %s, %s" % (vr(t, 2), vr(t, 2), sr(S_C1), vr(V_C0, 2)))
    for x, t in zip(xs, ts):
        e("v_pk_mul_f32 %s, %s, %s" % (vr(t, 2), vr(x, 2), vr(t, 2)))
    for x, t in zip(xs, ts):
        e("v_exp_f32 v%d, v%d" % (t, t))
        e("v_exp_f32 v%d, v%d" % (t + 1, t + 1))
    for x, t in zip(xs, ts):
        e("v_pk_add_f32 %s, %s, %s" % (vr(t, 2), vr(t, 2), sr(S_ONE)))
    for x, t in zip(xs, ts):
        e("v_rcp_f32 v%d, v%d" % (t, t))
        e("v_rcp_f32 v%d, v%d" % (t + 1, t + 1))
    for x, t in zip(xs, ts):
        e("v_pk_mul_f32 %s, %s, %s" % (vr(t, 2), vr(x, 2), vr(t, 2)))


def stamp():
    if not PROF:
        return
    i = NSTAMP[0]
    NSTAMP[0] += 1
    assert i < 60
    e("s_memtime s[98:99]")
    e("s_waitcnt lgkmcnt(0)")
    e("v_writelane_b32 v19, s98, %d" % i)


def stamp_store():
    if not PROF:
        return
    e("s_waitcnt vmcnt(0)")
    stamp()
    e("s_lshl_b32 s98, s2, 10")
    e("s_lshl_b32 s99, s%d, 8" % S_W)
    e("s_add_u32 s98, s98, s99")
    e("s_add_u32 s98, s98, 0x10000")
    e("v_lshlrev_b32 v17, 2, v%d" % V_LANE)
    e("v_add_u32 v17, s98, v17")
    e("global_store_dword v17, v19, %s" % sr(S_WSP))


V_XL = 13


def x_slice(sl_):
    sv = a.noins
    a.noins = 1
    for i in range(4):
        e("s_add_u32 s94, s92, %d" % (sl_ * 128 + i * 16384))
        e("s_add_u32 s95, s93, %d" % (sl_ * XS + i * 4 * XBP))
        e("v_add_u32 v%d, s94, v%d" % (V_W0 + (i & 1), V_XL))
        e("s_mov_b32 m0, s95")
        e("s_nop 0")
        a.vm("buffer_load_dwordx4 v%d, %s, 0 offen nt lds" % (V_W0 + (i & 1), sr(SRD_X, 4)))
    a.op("mark", "x%d" % sl_)
    a.noins = sv


def prologue():
    a.noins = 1
    e("s_cmp_ge_u32 s2, 252")
    e("s_cbranch_scc1 L_end")
    stamp()
    e("s_load_dwordx16 s[4:19], s[0:1], 0")
    e("s_load_dwordx2 %s, s[0:1], 64" % sr(S_DBG))
    e("s_load_dwordx2 %s, s[0:1], 72" % sr(S_WSP))
    e("v_lshrrev_b32 v20, 6, v0")
    e("v_and_b32 v%d, 63, v0" % V_LANE)
    e("s_sub_u32 s%d, s2, 2" % S_TILE)
    e("s_cmp_ge_u32 s%d, 125" % S_TILE)
    e("v_readfirstlane_b32 s%d, v20" % S_W)
    e("s_cselect_b32 s%d, 1, 0" % S_B)
    e("s_mul_i32 s%d, s%d, 125" % (S_T, S_B))
    e("s_sub_u32 s%d, s%d, s%d" % (S_T0, S_TILE, S_T))
    e("s_lshl_b32 s%d, s%d, 5" % (S_T0, S_T0))
    e("s_and_b32 s%d, s%d, 1" % (S_NH, S_W))
    e("s_lshr_b32 s%d, s%d, 1" % (S_KH, S_W))
    e("s_mov_b32 s%d, 0x05040100" % S_SELLO)
    e("s_mov_b32 s%d, 0x07060302" % S_SELHI)
    e("s_mov_b32 s%d, 0x%x" % (S_SCL, f32bits(TSC)))
    e("v_lshrrev_b32 v21, 4, v%d" % V_LANE)
    e("v_and_b32 v22, 15, v%d" % V_LANE)
    e("v_lshrrev_b32 v23, 5, v%d" % V_LANE)
    e("v_and_b32 v24, 31, v%d" % V_LANE)
    e("s_lshl_b32 s%d, s%d, 8" % (S_T, S_NH))
    e("s_lshl_b32 s%d, s%d, 14" % (S_T + 1, S_KH))
    e("s_add_u32 s%d, s%d, s%d" % (S_T, S_T, S_T + 1))
    e("v_lshlrev_b32 v25, 12, v21")
    e("v_lshl_add_u32 v25, v22, 4, v25")
    e("v_add_u32 v%d, s%d, v25" % (V_OFF16, S_T))
    e("v_lshrrev_b32 v26, 3, v%d" % V_LANE)
    e("v_and_b32 v25, 6, v26")
    e("v_and_b32 v27, 7, v%d" % V_LANE)
    e("v_xor_b32 v25, v25, v27")
    e("v_lshlrev_b32 v26, 9, v26")
    e("v_lshl_add_u32 v26, v25, 4, v26")
    e("v_lshlrev_b32 v25, 4, v%d" % V_LANE)
    e("s_mul_i32 s%d, s%d, %d" % (S_T, S_W, EX1S))
    e("s_add_u32 s%d, s%d, %d" % (S_T, S_T, EXB))
    e("v_add_u32 v%d, s%d, v25" % (V_EXW, S_T))
    e("s_xor_b32 s%d, s%d, 2" % (S_T + 1, S_W))
    e("s_mul_i32 s%d, s%d, %d" % (S_T, S_T + 1, EX1S))
    e("s_add_u32 s%d, s%d, %d" % (S_T, S_T, EXB))
    e("v_add_u32 v%d, s%d, v25" % (V_EXR, S_T))
    e("s_cmp_lt_u32 s2, 2")
    e("s_cbranch_scc1 L_prod")
    e("s_lshl_b32 s%d, s%d, 11" % (S_T, S_T0))
    e("s_sub_u32 s%d, s%d, 1536" % (S_T, S_T))
    e("s_lshl_b32 s%d, s%d, 7" % (S_T + 3, S_W))
    e("s_add_u32 s%d, s%d, s%d" % (S_T + 3, S_T + 3, S_T))
    e("s_add_u32 s%d, s%d, 65536" % (S_T + 3, S_T + 3))
    e("s_mul_i32 s%d, s%d, %d" % (S_T + 4, S_W, XS))
    e("s_add_u32 s%d, s%d, %d" % (S_T + 4, S_T + 4, 16 * XBP))
    e("s_lshl_b32 s%d, s%d, 12" % (S_T + 1, S_W))
    e("s_add_u32 s%d, s%d, s%d" % (S_T, S_T, S_T + 1))
    e("s_mul_i32 s%d, s%d, %d" % (S_T + 1, S_W, XBP))
    e("s_mul_i32 s%d, s%d, 8192000" % (S_T + 2, S_B))
    e("s_waitcnt lgkmcnt(0)")
    e("s_add_u32 s%d, s%d, s%d" % (SRD_X, S_X, S_T + 2))
    e("s_addc_u32 s%d, s%d, 0" % (SRD_X + 1, S_X + 1))
    e("s_and_b32 s%d, s%d, 0xffff" % (SRD_X + 1, SRD_X + 1))
    e("s_mov_b32 s%d, 8192000" % (SRD_X + 2))
    e("s_mov_b32 s%d, 0x00020000" % (SRD_X + 3))
    stamp()
    e("v_add_u32 v27, s%d, v26" % (S_T + 3))
    e("s_mov_b32 m0, s%d" % (S_T + 4))
    e("s_nop 0")
    a.vm("buffer_load_dwordx4 v27, %s, 0 offen nt lds" % sr(SRD_X, 4))
    e("s_mov_b32 s92, s%d" % S_T)
    e("s_mov_b32 s93, s%d" % (S_T + 1))
    e("v_mov_b32 v%d, v26" % V_XL)
    x_slice(0)
    a.op("flush", 0)
    stamp()
    a.noins = 0
    e("s_mov_b32 s%d, s%d" % (SRD_O, S_OUT))
    e("s_and_b32 s%d, s%d, 0xffff" % (SRD_O + 1, S_OUT + 1))
    e("s_mov_b32 s%d, 32768000" % (SRD_O + 2))
    e("s_mov_b32 s%d, 0x00020000" % (SRD_O + 3))
    e("s_mov_b32 s%d, s%d" % (SRD_WS, S_WSP))
    e("s_and_b32 s%d, s%d, 0xffff" % (SRD_WS + 1, S_WSP + 1))
    e("s_mov_b32 s%d, 32768" % (SRD_WS + 2))
    e("s_mov_b32 s%d, 0x00020000" % (SRD_WS + 3))
    e("s_mov_b32 s%d, 0x%x" % (S_C1, f32bits(GC1)))
    e("s_mov_b32 s%d, 0x%x" % (S_C1 + 1, f32bits(GC1)))
    e("s_mov_b32 s%d, 1.0" % S_ONE)
    e("s_mov_b32 s%d, 1.0" % (S_ONE + 1))
    e("s_mov_b32 s%d, 0" % S_FLAG)
    e("v_lshlrev_b32 v25, 12, v23")
    e("v_lshl_add_u32 v%d, v24, 4, v25" % V_OFF32)
    e("s_lshl_b32 s%d, s%d, 13" % (S_T, S_W))
    e("v_add_u32 v%d, s%d, v%d" % (V_OFF32W, S_T, V_OFF32))
    for i in range(4):
        e("v_mov_b32 v%d, 0" % (28 + i))
    e("s_nop 1")
    zero_acc(A_ACC1, 160, 28)
    e("s_or_b32 s%d, s%d, s%d" % (S_T, S_T0, S_KH))
    e("v_or_b32 v25, s%d, v21" % S_T)
    e("v_cmp_eq_u32 vcc, 0, v25")
    e("v_mov_b32 v25, 1.0")
    e("s_nop 1")
    e("v_cndmask_b32 v%d, v25, 0, vcc" % V_MASK)
    e("s_lshl_b32 s%d, s%d, 2" % (S_T, S_KH))
    e("v_add_u32 v25, s%d, v21" % S_T)
    e("s_mul_i32 s%d, s%d, 9216" % (S_T, S_KH))
    e("s_sub_u32 s%d, 9216, s%d" % (S_T + 1, S_T))
    for cls, dst in ((0, V_A0), (1, 15)):
        e("v_add_u32 v26, %d, v22" % cls)
        e("v_and_b32 v27, 3, v26")
        e("v_lshlrev_b32 v27, 1, v27")
        e("v_lshrrev_b32 v26, 2, v26")
        e("v_mul_u32_u24 v26, %d, v26" % XBP)
        e("v_lshl_add_u32 v26, v27, 7, v26")
        e("v_xor_b32 v27, v27, v25")
        e("v_lshl_add_u32 v26, v27, 4, v26")
        e("v_add_u32 v%d, s%d, v26" % (dst, S_T))
        e("v_add_u32 v%d, s%d, v26" % (dst + 1, S_T + 1))
        e("v_add_u32 v%d, 0x%x, v26" % (dst + 2, 18432))
    a.op("needmark", "x0")
    e("s_barrier")


def warmup():
    if not WARM:
        return
    e("s_lshr_b32 s94, s2, 3")
    e("s_and_b32 s94, s94, 31")
    e("s_lshl_b32 s94, s94, 2")
    e("s_add_u32 s94, s94, s%d" % S_W)
    e("v_lshlrev_b32 v%d, 4, v%d" % (V_W1, V_LANE))
    e("s_mul_i32 s95, s94, 3072")
    e("v_add_u32 v%d, s95, v%d" % (V_W0, V_W1))
    for i in range(3):
        a.vm("global_load_dwordx4 a[200:203], v%d, %s offset:%d" % (V_W0, sr(S_W2), i * 1024))
    e("s_lshl_b32 s95, s94, 10")
    e("v_add_u32 v%d, s95, v%d" % (V_W0, V_W1))
    a.vm("global_load_dwordx4 a[200:203], v%d, %s" % (V_W0, sr(S_WF)))
    a.vm("global_load_dwordx4 a[200:203], v%d, %s" % (V_W0, sr(S_WO)))


def producer():
    a.lab("L_prod")
    e("s_lshl_b32 s%d, s2, 12" % S_T)
    e("s_lshl_b32 s%d, s%d, 6" % (S_T + 1, S_KH))
    e("s_add_u32 s%d, s%d, s%d" % (S_T, S_T, S_T + 1))
    e("v_lshlrev_b32 v25, 9, v22")
    e("v_lshl_add_u32 v25, v21, 4, v25")
    e("v_add_u32 v25, s%d, v25" % S_T)
    e("s_waitcnt lgkmcnt(0)")
    e("s_mov_b32 s%d, s%d" % (SRD_G, S_G))
    e("s_and_b32 s%d, s%d, 0xffff" % (SRD_G + 1, S_G + 1))
    e("s_mov_b32 s%d, 8192" % (SRD_G + 2))
    e("s_mov_b32 s%d, 0x00020000" % (SRD_G + 3))
    for u in range(4):
        e("buffer_load_dwordx4 %s, v25, %s, 0 offen offset:%d" % (ar(A_GF + 4 * u), sr(SRD_G, 4), u * 128))
    for u in range(4):
        e("v_add_u32 v%d, 0x%x, v%d" % (V_LD, u * 32768, V_OFF16))
        for i in range(8):
            e("global_load_dwordx4 %s, v%d, %s offset:%d" % (vr(slot(u) + 4 * i), V_LD, sr(S_WG), i * 512))
    for i in range(4):
        e("v_mov_b32 v%d, 0" % (28 + i))
    e("s_nop 1")
    zero_acc(A_ACCG, 32, 28)
    e("s_waitcnt vmcnt(0)")
    for u in range(4):
        for j in range(8):
            for s_ in perms(u, j, FBUF + 4 * (j & 3)):
                e(s_)
            e("s_nop 1")
            d = A_ACCG + 4 * j
            e("v_mfma_f32_16x16x32_bf16 %s, %s, %s, %s" % (ar(d), ar(A_GF + 4 * u), vr(FBUF + 4 * (j & 3)), ar(d)))
    e("s_nop 7")
    e("s_nop 1")
    for j in range(8):
        e("ds_write_b128 v%d, %s offset:%d" % (V_EXW, ar(A_ACCG + 4 * j), j * 1024))
    e("v_lshrrev_b32 v20, 4, v%d" % V_LANE)
    e("v_and_b32 v21, 15, v%d" % V_LANE)
    e("v_and_b32 v20, 1, v20")
    e("v_lshlrev_b32 v20, 12, v20")
    e("v_lshl_add_u32 v20, v21, 5, v20")
    e("s_lshl_b32 s%d, s%d, 9" % (S_T, S_NH))
    e("s_lshl_b32 s%d, s2, 14" % (S_T + 1))
    e("s_add_u32 s%d, s%d, s%d" % (S_T, S_T, S_T + 1))
    e("v_add_u32 v%d, s%d, v20" % (V_W0, S_T))
    e("v_add_u32 v%d, 0x2000, v%d" % (V_A0, V_W0))
    e("v_mov_b32 v%d, 0" % V_W1)
    e("s_waitcnt lgkmcnt(0)")
    e("s_barrier")
    for j in range(8):
        e("ds_read_b128 %s, v%d offset:%d" % (vr(TMP + 4 * j), V_EXR, j * 1024))
    T = TMP + 32
    R = RING
    e("s_waitcnt lgkmcnt(0)")
    for j in range(8):
        P = TMP + 4 * j
        for r in range(4):
            e("v_accvgpr_read_b32 v%d, a%d" % (T + r, A_ACCG + 4 * j + r))
        e("v_pk_add_f32 %s, %s, %s" % (vr(P, 2), vr(P, 2), vr(T, 2)))
        e("v_pk_add_f32 %s, %s, %s" % (vr(P + 2, 2), vr(P + 2, 2), vr(T + 2, 2)))
        e("v_cvt_pk_bf16_f32 v%d, v%d, v%d" % (T, P, P + 1))
        e("v_cvt_pk_bf16_f32 v%d, v%d, v%d" % (T + 1, P + 2, P + 3))
        e("v_lshlrev_b32 v%d, 16, v%d" % (P, T))
        e("v_and_b32 v%d, 0xffff0000, v%d" % (P + 1, T))
        e("v_lshlrev_b32 v%d, 16, v%d" % (P + 2, T + 1))
        e("v_and_b32 v%d, 0xffff0000, v%d" % (P + 3, T + 1))
        for r in range(4):
            e("v_mul_f32 v%d, s%d, v%d" % (R + 8 * r + j, S_SCL, P + r))
        e("v_max3_f32 v%d, |v%d|, |v%d|, v%d" % (V_W1, R + j, R + 8 + j, V_W1))
        e("v_max3_f32 v%d, |v%d|, |v%d|, v%d" % (V_W1, R + 16 + j, R + 24 + j, V_W1))
        for r in range(4):
            e("v_exp_f32 v%d, v%d" % (R + 32 + 8 * r + j, R + 8 * r + j))
    e("v_mov_b32 v%d, 0x42fa0000" % T)
    e("s_mov_b32 exec_hi, 0")
    e("v_cmp_nle_f32 vcc, v%d, v%d" % (V_W1, T))
    for r in range(4):
        for hh in range(2):
            e("global_store_dwordx4 v%d, %s, %s offset:%d sc0 sc1" % (V_W0, vr(R + 32 + 8 * r + 4 * hh), sr(S_WSP), r * 1024 + hh * 16))
            e("global_store_dwordx4 v%d, %s, %s offset:%d sc0 sc1" % (V_A0, vr(R + 8 * r + 4 * hh), sr(S_WSP), r * 1024 + hh * 16))
    e("s_mov_b64 exec, -1")
    e("s_or_b32 s%d, vcc_lo, vcc_hi" % S_FLAG)
    e("s_cmp_lg_u32 s%d, 0" % S_FLAG)
    e("s_cselect_b32 s%d, 3, 1" % S_FLAG)
    e("s_lshl_b32 s%d, s2, 4" % S_T)
    e("s_lshl_b32 s%d, s%d, 2" % (S_T + 1, S_W))
    e("s_add_u32 s%d, s%d, s%d" % (S_T, S_T, S_T + 1))
    e("v_mov_b32 v20, s%d" % S_T)
    e("v_mov_b32 v21, s%d" % S_FLAG)
    e("s_waitcnt vmcnt(0)")
    e("s_mov_b32 exec_lo, 1")
    e("s_mov_b32 exec_hi, 0")
    e("global_store_dword v20, v21, %s sc0 sc1" % sr(S_DBG))
    e("s_endpgm")


def flag_issue():
    e("s_lshl_b32 s%d, s%d, 4" % (S_T, S_B))
    e("v_mov_b32 v15, s%d" % S_T)
    a.vm("global_load_dwordx4 v[60:63], v15, %s sc0 sc1" % sr(S_DBG))
    a.op("mark", "flag")


def eb_dma(wsoff):
    e("s_lshl_b32 s%d, s%d, 14" % (S_T, S_B))
    e("s_lshl_b32 s%d, s%d, 11" % (S_T + 1, S_W))
    e("s_add_u32 s%d, s%d, s%d" % (S_T, S_T, S_T + 1))
    e("s_add_u32 s%d, s%d, %d" % (S_T, S_T, wsoff))
    e("v_lshlrev_b32 v16, 4, v%d" % V_LANE)
    e("v_add_u32 v16, s%d, v16" % S_T)
    e("s_add_u32 s%d, s%d, %d" % (S_T + 1, S_T + 1, EBB))
    e("s_mov_b32 m0, s%d" % (S_T + 1))
    e("s_nop 0")


def flag_check():
    a.op("needmark", "flag")
    sv = a.noins
    a.noins = 1
    a.lab("L_flag_chk")
    e("v_min_u32 v16, v60, v61")
    e("v_min3_u32 v16, v62, v63, v16")
    e("v_or3_b32 v17, v60, v61, v62")
    e("v_or_b32 v17, v17, v63")
    e("v_readfirstlane_b32 s%d, v16" % (S_T))
    e("v_readfirstlane_b32 s%d, v17" % (S_T + 1))
    e("s_nop 3")
    e("s_cmp_lg_u32 s%d, 0" % S_T)
    e("s_cbranch_scc1 L_flag_ok")
    a.op("rare", 1)
    e("s_sleep 4")
    e("global_load_dwordx4 v[60:63], v15, %s sc0 sc1" % sr(S_DBG))
    e("s_waitcnt vmcnt(0)")
    e("s_branch L_flag_chk")
    a.op("rare", 0)
    a.lab("L_flag_ok")
    e("s_and_b32 s%d, s%d, 2" % (S_FLAG, S_T + 1))
    eb_dma(0)
    a.vm("buffer_load_dwordx4 v16, %s, 0 offen sc0 sc1 lds" % sr(SRD_WS, 4))
    a.vm("buffer_load_dwordx4 v16, %s, 0 offen offset:1024 sc0 sc1 lds" % sr(SRD_WS, 4))
    a.op("mark", "eb")
    a.noins = sv


TAPH = [0, HP, 2 * HP]


def c1_areads(k, aset):
    tap = k % 3
    out = []
    for sl in range(5):
        b0 = V_A0 if tap < 2 else 15
        base = b0 if sl < 2 else (b0 + 1 if sl < 4 else b0 + 2)
        off = ((sl & 1) * 4608 if sl < 4 else 0) + (128 if tap == 1 else 0)
        out.append("ds_read_b128 %s, v%d offset:%d" % (ar(aset + 4 * sl), base, off))
    return out


def c2_areads(k, aset):
    tap, sl_ = k % 3, k // 3
    return ["ds_read_b128 %s, v%d offset:%d" % (ar(aset + 4 * sl), V_A0 + sl, HB + TAPH[tap] + sl_ * 128)
            for sl in range(2)]


def conv_phase(u0, nM, acc, areads_fn, isx):
    for s in areads_fn(0, A_AF):
        e(s)
    prime(u0)
    units = []
    for k in range(12):
        nk = k + 1
        pre = []
        if isx and k % 3 == 2 and k < 11:
            pre = [("needmark", "x%d" % (k // 3 + 1)), "s_barrier"]
            pre += ["v_add_u32 v%d, 0x%x, v%d" % (r, XS, r) for r in (V_A0, V_A1, V_A2)]
        if isx and k % 3 == 0 and k > 0:
            pre = ["v_add_u32 v%d, 0x%x, v%d" % (r, XS, r) for r in (15, 16, 17)]
        if isx and PROF == "2":
            pre = pre + [("call", stamp)]
        units.append(dict(unit=u0 + k, aset=[A_AF + 20 * (k & 1) + 4 * s for s in range(nM)], last=(k == 11), pre=pre,
                          areads=(areads_fn(nk, A_AF + 20 * (nk & 1)) if k < 11 else [])))
    emit_units(units, nM, acc)


def lane_fields():
    e("v_lshrrev_b32 v16, 4, v%d" % V_LANE)
    e("v_and_b32 v17, 15, v%d" % V_LANE)


P0, P1 = TMP, TMP + 8
TT = TMP + 16
OWN = TMP + 24
OUTR = TMP + 28


def add_own(P, accbase):
    for i in range(0, 8, 4):
        for k in range(4):
            e("v_accvgpr_read_b32 v%d, a%d" % (OWN + k, accbase + i + k))
        e("v_pk_add_f32 %s, %s, %s" % (vr(P + i, 2), vr(P + i, 2), vr(OWN, 2)))
        e("v_pk_add_f32 %s, %s, %s" % (vr(P + i + 2, 2), vr(P + i + 2, 2), vr(OWN + 2, 2)))


def epi_gelu_slot(accbase, rdoff, nblocks_after, wr, mask):
    for jp in range(4):
        P = P0 if (jp & 1) == 0 else P1
        Pn = P1 if (jp & 1) == 0 else P0
        nxt = rdoff + (2 * jp + 2) * 1024
        more = jp < 3 or nblocks_after
        if more:
            e("ds_read_b128 %s, v%d offset:%d" % (vr(Pn), V_EXR, nxt))
            e("ds_read_b128 %s, v%d offset:%d" % (vr(Pn + 4), V_EXR, nxt + 1024))
            e("s_waitcnt lgkmcnt(2)")
        else:
            e("s_waitcnt lgkmcnt(0)")
        add_own(P, accbase + 8 * jp)
        gelu_pairs([P, P + 2, P + 4, P + 6], [TT, TT + 2, TT + 4, TT + 6])
        if mask:
            e("v_mul_f32 v%d, v%d, v%d" % (TT, V_MASK, TT))
            e("v_mul_f32 v%d, v%d, v%d" % (TT + 4, V_MASK, TT + 4))
        for r in range(4):
            e("v_cvt_pk_bf16_f32 v%d, v%d, v%d" % (OUTR + 4 * r + jp, TT + r, TT + 4 + r))
    for r in range(4):
        e(wr(r))


def epi1():
    a.c("---- epilogue conv1 ----")
    e("v_mov_b32 v%d, 0x%x" % (V_C0, f32bits(GC0)))
    e("v_mov_b32 v%d, 0x%x" % (V_C0 + 1, f32bits(GC0)))
    e("s_nop 7")
    e("s_nop 1")
    for j in range(8):
        e("v_accvgpr_read_b32 v%d, a%d" % (TMP + j, A_ACC1 + 128 + 4 * j))
    for i in range(16):
        e("ds_write_b128 v%d, %s offset:%d" % (V_EXW, ar(A_ACC1 + 64 + 4 * i), i * 1024))
    e("ds_write_b128 v%d, %s offset:%d" % (V_EXW, vr(TMP), 16384))
    e("ds_write_b128 v%d, %s offset:%d" % (V_EXW, vr(TMP + 4), 17408))
    lane_fields()
    e("s_mul_i32 s%d, s%d, %d" % (S_T, S_KH, 32 * HP))
    e("s_lshl_b32 s%d, s%d, 8" % (S_T + 1, S_NH))
    e("v_mul_u32_u24 v16, %d, v16" % (4 * HP))
    e("v_lshl_add_u32 v17, v17, 4, s%d" % (S_T + 1))
    e("v_add3_u32 v%d, v16, v17, s%d" % (V_W0, S_T))
    e("v_add_u32 v%d, 0x%x, v17" % (V_W1, HB + 64 * HP))
    for i in range(4):
        e("v_mov_b32 v%d, 0" % (TT + i))
    e("s_waitcnt lgkmcnt(0)")
    e("s_nop 1")
    zero_acc(A_ACC2, 64, TT)
    e("s_barrier")
    e("ds_read_b128 %s, v%d offset:0" % (vr(P0), V_EXR))
    e("ds_read_b128 %s, v%d offset:1024" % (vr(P0 + 4), V_EXR))
    for sl in range(2):
        epi_gelu_slot(A_ACC1 + 32 * sl, sl * 8192, True,
                      lambda r, sl=sl: "ds_write_b128 v%d, %s offset:%d" % (V_W0, vr(OUTR + 4 * r), HB + (16 * sl + r) * HP),
                      sl == 0)
    e("s_waitcnt lgkmcnt(0)")
    for j in range(8):
        e("v_accvgpr_read_b32 v%d, a%d" % (TT + j, A_ACC1 + 128 + 4 * j))
    for i in range(0, 8, 2):
        e("v_pk_add_f32 %s, %s, %s" % (vr(P0 + i, 2), vr(P0 + i, 2), vr(TT + i, 2)))
    gelu_pairs([P0, P0 + 2, P0 + 4, P0 + 6], [TT, TT + 2, TT + 4, TT + 6])
    for i in range(4):
        e("v_cvt_pk_bf16_f32 v%d, v%d, v%d" % (P1 + i, TT + 2 * i, TT + 2 * i + 1))
    a.noins = 1
    e("s_mov_b32 exec_lo, 0xffff")
    e("s_mov_b32 exec_hi, 0")
    e("ds_write_b128 v%d, %s" % (V_W1, vr(P1)))
    e("s_mov_b64 exec, -1")
    a.noins = 0
    lane_fields()
    e("s_lshl_b32 s%d, s%d, 6" % (S_T, S_KH))
    e("v_mul_u32_u24 v17, %d, v17" % (2 * HP))
    e("v_lshl_add_u32 v17, v16, 4, v17")
    e("v_add_u32 v17, s%d, v17" % S_T)
    e("s_mul_i32 s%d, s%d, %d" % (S_T, S_KH, 32 * HP))
    e("v_add_u32 v%d, s%d, v17" % (V_A0, S_T))
    e("s_sub_u32 s%d, %d, s%d" % (S_T, 32 * HP, S_T))
    e("v_add_u32 v%d, s%d, v17" % (V_A1, S_T))
    e("v_lshlrev_b32 v16, 4, v%d" % V_LANE)
    e("s_lshl_b32 s%d, s%d, 13" % (S_T, S_W))
    e("s_add_u32 s%d, s%d, %d" % (S_T, S_T, EXB))
    e("v_add_u32 v%d, s%d, v16" % (V_EXW, S_T))
    e("s_xor_b32 s%d, s%d, 2" % (S_T, S_W))
    e("s_lshl_b32 s%d, s%d, 13" % (S_T, S_T))
    e("s_add_u32 s%d, s%d, %d" % (S_T, S_T, EXB))
    e("v_add_u32 v%d, s%d, v16" % (V_EXR, S_T))
    e("s_waitcnt lgkmcnt(0)")
    e("s_barrier")


def epi2():
    a.c("---- epilogue conv2 ----")
    flag_check()
    for i in range(8):
        e("ds_write_b128 v%d, %s offset:%d" % (V_EXW, ar(A_ACC2 + 32 + 4 * i), i * 1024))
    lane_fields()
    e("s_mul_i32 s%d, s%d, %d" % (S_T, S_KH, 16 * FP))
    e("s_lshl_b32 s%d, s%d, 8" % (S_T + 1, S_NH))
    e("v_mul_u32_u24 v16, %d, v16" % (4 * FP))
    e("v_lshl_add_u32 v17, v17, 4, s%d" % (S_T + 1))
    e("v_add3_u32 v%d, v16, v17, s%d" % (V_W0, S_T))
    for i in range(4):
        e("v_mov_b32 v%d, 0" % (TT + i))
    e("s_nop 1")
    zero_acc(A_ACC3, 64, TT)
    e("s_waitcnt lgkmcnt(0)")
    e("s_barrier")
    e("ds_read_b128 %s, v%d offset:0" % (vr(P0), V_EXR))
    e("ds_read_b128 %s, v%d offset:1024" % (vr(P0 + 4), V_EXR))
    epi_gelu_slot(A_ACC2, 0, False,
                  lambda r: "ds_write_b128 v%d, %s offset:%d" % (V_W0, vr(OUTR + 4 * r), FB + r * FP), False)
    lane_fields()
    e("s_lshl_b32 s%d, s%d, 6" % (S_T, S_KH))
    e("s_add_u32 s%d, s%d, %d" % (S_T, S_T, FB))
    e("v_mul_u32_u24 v17, %d, v17" % FP)
    e("v_lshl_add_u32 v17, v16, 4, v17")
    e("v_add_u32 v17, s%d, v17" % S_T)
    e("s_mul_i32 s%d, s%d, %d" % (S_T, S_KH, 16 * FP))
    e("v_add_u32 v%d, s%d, v17" % (V_A0, S_T))
    e("s_sub_u32 s%d, %d, s%d" % (S_T, 16 * FP, S_T))
    e("v_add_u32 v%d, s%d, v17" % (V_A1, S_T))
    e("s_waitcnt lgkmcnt(0)")
    e("s_barrier")


def f_areads(u, aset):
    return ["ds_read_b128 %s, v%d offset:%d" % (ar(aset + 4 * sl), V_A0 + sl, u * 128) for sl in range(2)]


def phase_f():
    a.c("---- fe ----")
    for s in f_areads(0, A_AF):
        e(s)
    prime(U_F)
    units = []
    for u in range(4):
        units.append(dict(unit=U_F + u, aset=[A_AF + 20 * (u & 1) + 4 * s for s in range(2)], last=(u == 3),
                          areads=(f_areads(u + 1, A_AF + 20 * ((u + 1) & 1)) if u < 3 else [])))
    emit_units(units, 2, lambda sl, j: A_ACC3 + (sl * 8 + j) * 4)


def epi3_body(raw):
    e("ds_read_b128 %s, v%d offset:0" % (vr(P0), V_EXR))
    e("ds_read_b128 %s, v%d offset:1024" % (vr(P0 + 4), V_EXR))
    for jp in range(4):
        P = P0 if (jp & 1) == 0 else P1
        Pn = P1 if (jp & 1) == 0 else P0
        if jp < 3:
            e("ds_read_b128 %s, v%d offset:%d" % (vr(Pn), V_EXR, (2 * jp + 2) * 1024))
            e("ds_read_b128 %s, v%d offset:%d" % (vr(Pn + 4), V_EXR, (2 * jp + 3) * 1024))
            e("s_waitcnt lgkmcnt(2)")
        else:
            e("s_waitcnt lgkmcnt(0)")
        add_own(P, A_ACC3 + 8 * jp)
        for i in range(4):
            e("v_cvt_pk_bf16_f32 v%d, v%d, v%d" % (TT + i, P + 2 * i, P + 2 * i + 1))
        for i in range(4):
            e("v_lshlrev_b32 v%d, 16, v%d" % (P + 2 * i, TT + i))
            e("v_and_b32 v%d, 0xffff0000, v%d" % (P + 2 * i + 1, TT + i))
        for i in range(8):
            e("v_mul_f32 v%d, s%d, v%d" % (P + i, S_SCL, P + i))
        if not raw:
            for i in range(4):
                e("v_max3_f32 v%d, |v%d|, |v%d|, v%d" % (V_W1, P + 2 * i, P + 2 * i + 1, V_W1))
        for jj in range(2):
            for r in range(4):
                d = OUTR + 4 * r + (jp & 1) * 2 + jj
                if raw:
                    e("v_mov_b32 v%d, v%d" % (d, P + 4 * jj + r))
                else:
                    e("v_exp_f32 v%d, v%d" % (d, P + 4 * jj + r))
        if jp & 1:
            e("s_nop 0")
            for r in range(4):
                e("ds_write_b128 v%d, %s offset:%d" % (V_W0, vr(OUTR + 4 * r), r * EAP + (jp >> 1) * 16))


def epi3():
    a.c("---- epilogue fe ----")
    e("s_nop 7")
    e("s_nop 1")
    for i in range(8):
        e("ds_write_b128 v%d, %s offset:%d" % (V_EXW, ar(A_ACC3 + 32 + 4 * i), i * 1024))
    lane_fields()
    e("s_mul_i32 s%d, s%d, %d" % (S_T, S_KH, 16 * EAP))
    e("s_add_u32 s%d, s%d, %d" % (S_T, S_T, EAB))
    e("s_lshl_b32 s%d, s%d, 9" % (S_T + 1, S_NH))
    e("v_mul_u32_u24 v16, %d, v16" % (4 * EAP))
    e("v_lshl_add_u32 v17, v17, 5, s%d" % (S_T + 1))
    e("v_add3_u32 v%d, v16, v17, s%d" % (V_W0, S_T))
    e("v_mov_b32 v%d, 0" % V_W1)
    e("s_waitcnt lgkmcnt(0)")
    e("s_barrier")
    epi3_body(False)
    e("v_mov_b32 v16, 0x42fa0000")
    e("v_cmp_nle_f32 vcc, v%d, v16" % V_W1)
    e("s_lshl_b32 s%d, s%d, 2" % (S_T, S_W))
    e("s_add_u32 s%d, s%d, %d" % (S_T, S_T, FLG))
    e("s_or_b32 s%d, s%d, vcc_lo" % (S_FLAG, S_FLAG))
    e("s_or_b32 s%d, s%d, vcc_hi" % (S_FLAG, S_FLAG))
    e("v_mov_b32 v16, s%d" % S_T)
    e("v_mov_b32 v17, s%d" % S_FLAG)
    e("ds_write_b32 v16, v17")
    e("s_waitcnt lgkmcnt(0)")
    e("s_barrier")
    e("v_mov_b32 v16, 0x%x" % FLG)
    e("ds_read_b128 %s, v16" % vr(TMP))
    e("s_waitcnt lgkmcnt(0)")
    e("v_or3_b32 v16, v%d, v%d, v%d" % (TMP, TMP + 1, TMP + 2))
    e("v_or_b32 v16, v16, v%d" % (TMP + 3))
    e("s_nop 0")
    e("v_readfirstlane_b32 s%d, v16" % S_FLAG)
    e("s_nop 3")
    e("s_cmp_eq_u32 s%d, 0" % S_FLAG)
    e("s_cbranch_scc1 L_fast1")
    a.noins = 1
    a.op("rare", 1)
    epi3_body(True)
    e("s_waitcnt vmcnt(0)")
    e("s_barrier")
    eb_dma(8192)
    e("buffer_load_dwordx4 v16, %s, 0 offen sc0 sc1 lds" % sr(SRD_WS, 4))
    e("buffer_load_dwordx4 v16, %s, 0 offen offset:1024 sc0 sc1 lds" % sr(SRD_WS, 4))
    e("s_waitcnt vmcnt(0) lgkmcnt(0)")
    e("s_barrier")
    a.op("rare", 0)
    a.lab("L_fast1")
    a.noins = 0


OACC = 64


def phase_wo():
    a.c("---- w_o fragments ----")
    e("v_lshlrev_b32 v16, 4, v%d" % V_LANE)
    e("s_lshl_b32 s%d, s%d, 13" % (S_T, S_W))
    e("v_add_u32 v16, s%d, v16" % S_T)
    for i in range(4):
        e("v_mov_b32 v%d, 0" % (60 + i))
    zl = ["v_mfma_f32_32x32x16_bf16 %s, %s, %s, 0" % (ar(OACC + 16 * n, 16), vr(60), vr(60)) for n in range(8)]
    for i in range(4):
        if i == 3:
            a.op("flush", len(UNITS) - 1)
            a.noins = 1
            e("s_cmp_ge_u32 s%d, 2" % S_W)
            e("s_cbranch_scc1 L_wo_skip")
        a.op("need", U_O + i)
        for n in range(8):
            for s in perms(U_O + i, n, TMP + 4 * n):
                e(s)
            if zl and i < 2 and (n & 1):
                e(zl.pop(0))
        for n in range(8):
            e("ds_write_b128 v16, %s offset:%d" % (vr(TMP + 4 * n), n * 1024))
        if i < 3:
            e("v_add_u32 v16, 0x8000, v16")
            e("s_waitcnt lgkmcnt(0)")
    a.lab("L_wo_skip")
    for i in (4, 5):
        a.op("need", U_O + i)
        for n in range(8):
            for s in perms(U_O + i, n, 192 + 32 * (i - 4) + 4 * n):
                e(s)
    for n in range(8):
        e("v_mfma_f32_32x32x16_bf16 %s, %s, %s, 0" % (vr(OACC + 16 * n, 16), vr(60), vr(60)))
    e("s_waitcnt lgkmcnt(0)")
    e("s_barrier")


EA = [20, 28]
EB = [36, 44]
JF = [52, 56]
V_EA, V_EB, V_B, V_ST = 4, 5, 6, 7
BB = [0, 32]
STG = [8, 60]


def out_valu(par, slow):
    ea, eb, jf = EA[par], EB[par], JF[par]
    v = []
    if os.environ.get("EXP") == "novalu":
        return ["v_cvt_pk_bf16_f32 v%d, v%d, v%d" % (jf + i, ea + 2 * i, ea + 2 * i + 1) for i in range(4)]
    if slow:
        for i in range(8):
            v.append("v_add_f32 v%d, v%d, v%d" % (ea + i, ea + i, eb + i))
        for i in range(8):
            v.append("v_exp_f32 v%d, v%d" % (ea + i, ea + i))
        for i in range(8):
            v.append("v_add_f32 v%d, 1.0, v%d" % (ea + i, ea + i))
    elif PK:
        for i in range(0, 8, 2):
            v.append("v_pk_fma_f32 %s, %s, %s, %s" % (vr(ea + i, 2), vr(ea + i, 2), vr(eb + i, 2), sr(S_ONE)))
    else:
        for i in range(8):
            v.append("v_fma_f32 v%d, v%d, v%d, 1.0" % (ea + i, ea + i, eb + i))
    for i in range(8):
        v.append("v_rcp_f32 v%d, v%d" % (ea + i, ea + i))
    if PK:
        for i in range(0, 8, 2):
            v.append("v_pk_fma_f32 %s, %s, %s, %s" % (vr(ea + i, 2), vr(ea + i, 2), vr(V_C0, 2), sr(S_ONE)))
    else:
        for i in range(8):
            v.append("v_fma_f32 v%d, v%d, -2.0, 1.0" % (ea + i, ea + i))
    for i in range(4):
        v.append("v_cvt_pk_bf16_f32 v%d, v%d, v%d" % (jf + i, ea + 2 * i, ea + 2 * i + 1))
    return v


def out_eloads(par, off):
    return ["ds_read_b128 %s, v%d offset:%d" % (vr(EA[par]), V_EA, off),
            "ds_read_b128 %s, v%d offset:%d" % (vr(EA[par] + 4), V_EA, off + 16),
            "ds_read_b128 %s, v%d offset:%d" % (vr(EB[par]), V_EB, off),
            "ds_read_b128 %s, v%d offset:%d" % (vr(EB[par] + 4), V_EB, off + 16)]


def out_bloads(par, off):
    if os.environ.get("EXP") == "halfb":
        return ["ds_read_b64 %s, v%d offset:%d" % (ar(BB[par] + 4 * n, 2), V_B, off + n * 1024) for n in range(8)]
    if os.environ.get("EXP") == "vb":
        return ["ds_read_b128 %s, v%d offset:%d" % (vr(192 + 32 * par + 4 * n), V_B, off + n * 1024) for n in range(8)]
    return ["ds_read_b128 %s, v%d offset:%d" % (ar(BB[par] + 4 * n), V_B, off + n * 1024) for n in range(8)]


def store_group(par, rstatic=None):
    st = STG[par]
    g = []
    if rstatic is None:
        g.append("s_set_gpr_idx_on s%d, 0x3" % S_R)
        g.append("s_nop 0")
        r = 0
    else:
        r = rstatic
    for i in range(4):
        g.append("v_cvt_pk_bf16_f32 v%d, v%d, v%d" % (st + i, OACC + 16 * (2 * i) + r, OACC + 16 * (2 * i + 1) + r))
    if rstatic is None:
        g.append("s_set_gpr_idx_off")
        g.append("s_add_u32 s%d, s%d, 1" % (S_R, S_R))
    g.append("buffer_store_dwordx4 %s, v%d, %s, s%d offen%s" % (vr(st), V_ST, sr(SRD_O, 4), S_SO, STMOD))
    return g


def out_kstep(par, bsrc, accf, valu, loads, stg=None, prev_b=8):
    gaps = [[] for _ in range(8)]
    nl = [2, 1, 2, 1, 2, 1, 2, 1]
    li = 0
    issued = [0] * 9
    for n in range(8):
        for _ in range(nl[n]):
            if li < len(loads):
                gaps[n].append(loads[li]); li += 1
        issued[n + 1] = li
    budget = [24 - 4 * len(gaps[n]) for n in range(8)]
    if stg:
        gaps[3] = gaps[3] + list(stg)
        budget[3] = 0
    vi = 0
    for n in range(8):
        c = 0
        while vi < len(valu) and (c < budget[n] or n == 7):
            gaps[n].append(valu[vi]); c += a.cost(valu[vi]); vi += 1
    for n in range(8):
        if n % 2 == 0:
            if prev_b:
                e("s_waitcnt lgkmcnt(%d)" % (prev_b - (n + 2) + issued[n]))
            elif n == 0:
                e("s_waitcnt lgkmcnt(0)")
            if n == 0:
                e("s_nop 0")
        d = accf(n)
        e("v_mfma_f32_32x32x16_bf16 %s, %s, %s, %s" % (d, vr(JF[par]), bsrc(n), d))
        for s in gaps[n]:
            e(s)


def out_pass(tag, slow, second):
    accf = (lambda n: ar(OACC + 16 * n, 16)) if second else (lambda n: vr(OACC + 16 * n, 16))
    e("v_lshrrev_b32 v16, 5, v%d" % V_LANE)
    e("v_and_b32 v17, 31, v%d" % V_LANE)
    e("v_mul_u32_u24 v%d, %d, v17" % (V_EA, EAP))
    e("v_lshl_add_u32 v%d, v16, 5, v%d" % (V_EA, V_EA))
    e("v_add_u32 v%d, 0x%x, v%d" % (V_EA, EAB, V_EA))
    e("s_lshl_b32 s%d, s%d, 11" % (S_T, S_W))
    e("s_add_u32 s%d, s%d, %d" % (S_T, S_T, EBB + (1024 if second else 0)))
    e("v_lshlrev_b32 v%d, 5, v16" % V_EB)
    e("v_add_u32 v%d, s%d, v%d" % (V_EB, S_T, V_EB))
    e("v_lshlrev_b32 v%d, 4, v%d" % (V_B, V_LANE))
    for s in out_eloads(0, 0) + out_eloads(1, 64):
        e(s)
    e("s_waitcnt lgkmcnt(4)")
    for s in out_bloads(0, 0):
        e(s)
    for s in out_valu(0, slow):
        e(s)
    e("s_mov_b32 s%d, 0" % S_CNT)
    if second:
        e("s_mov_b32 s%d, 0" % S_R)
        e("s_mov_b32 s%d, s%d" % (S_SO, S_OBASE))
    lab = "L_ok_%s%d" % (tag, int(second))
    a.lab(lab)
    sg0 = sg1 = None
    if second:
        sg0 = store_group(0) + ["s_add_u32 s%d, s%d, 4096" % (S_SO, S_SO)]
        sg1 = store_group(1) + ["s_and_b32 s%d, s%d, 1" % (S_T, S_CNT), "s_lshl_b32 s%d, s%d, 14" % (S_T, S_T),
                                "s_add_u32 s%d, s%d, s%d" % (S_SO, S_SO, S_T), "s_add_u32 s%d, s%d, 4096" % (S_SO, S_SO)]
    out_kstep(0, lambda n: ar(BB[0] + 4 * n), accf, out_valu(1, slow), out_eloads(0, 128) + out_bloads(1, 8192), sg0)
    out_kstep(1, lambda n: ar(BB[1] + 4 * n), accf, out_valu(0, slow), out_eloads(1, 192) + out_bloads(0, 16384), sg1)
    e("v_add_u32 v%d, 0x80, v%d" % (V_EA, V_EA))
    e("v_add_u32 v%d, 0x80, v%d" % (V_EB, V_EB))
    e("v_add_u32 v%d, 0x4000, v%d" % (V_B, V_B))
    e("s_add_u32 s%d, s%d, 1" % (S_CNT, S_CNT))
    e("s_cmp_lt_u32 s%d, 7" % S_CNT)
    e("s_cbranch_scc1 %s" % lab)
    if second:
        sg0 = store_group(0, 14) + ["s_add_u32 s%d, s%d, 4096" % (S_SO, S_SO)]
        sg1 = store_group(1, 15)
    out_kstep(0, lambda n: vr(192 + 4 * n), accf, out_valu(1, slow), [], sg0, 0)
    out_kstep(1, lambda n: vr(224 + 4 * n), accf, [], [], sg1, 0)
    if not second:
        e("s_nop 7")


def phase_out(slow):
    tag = "s" if slow else "f"
    a.c("---- out phase (%s) ----" % tag)
    e("v_mov_b32 v%d, -2.0" % V_C0)
    e("v_mov_b32 v%d, -2.0" % (V_C0 + 1))
    e("v_lshrrev_b32 v16, 5, v%d" % V_LANE)
    e("v_and_b32 v17, 31, v%d" % V_LANE)
    e("v_lshlrev_b32 v%d, 14, v16" % V_ST)
    e("v_lshl_add_u32 v%d, v17, 4, v%d" % (V_ST, V_ST))
    e("s_mul_i32 s%d, s%d, 4000" % (S_T, S_B))
    e("s_add_u32 s%d, s%d, s%d" % (S_T, S_T, S_T0))
    e("s_lshl_b32 s%d, s%d, 12" % (S_OBASE, S_T))
    e("s_lshl_b32 s%d, s%d, 10" % (S_T, S_W))
    e("s_add_u32 s%d, s%d, s%d" % (S_OBASE, S_OBASE, S_T))
    out_pass(tag, slow, False)
    if not slow:
        stamp()
    out_pass(tag, slow, True)
    if not slow:
        stamp()
    e("s_nop 7")
    e("s_nop 3")
    e("s_add_u32 s%d, s%d, 512" % (S_T, S_OBASE))
    stq = [20, 36]
    for r in range(16):
        tq = stq[r & 1]
        st = tq + 8 + 4 * ((r >> 1) & 1)
        t = 8 * (r >> 2) + (r & 3)
        for n in range(8):
            e("v_accvgpr_read_b32 v%d, a%d" % (tq + n, OACC + 16 * n + r))
        for i in range(4):
            e("v_cvt_pk_bf16_f32 v%d, v%d, v%d" % (st + i, tq + 2 * i, tq + 2 * i + 1))
        e("s_add_u32 s%d, s%d, %d" % (S_SO, S_T, t * 4096))
        e("buffer_store_dwordx4 %s, v%d, %s, s%d offen%s" % (vr(st), V_ST, sr(SRD_O, 4), S_SO, STMOD))
    if not slow:
        stamp()
        stamp_store()
    e("s_endpgm")


def x_item(sl_, i):
    return ["s_add_u32 s94, s92, %d" % (sl_ * 128 + i * 16384),
            "s_add_u32 s95, s93, %d" % (sl_ * XS + i * 4 * XBP),
            "v_add_u32 v%d, s94, v%d" % (V_W0, V_XL),
            "s_mov_b32 m0, s95",
            "s_nop 0",
            "buffer_load_dwordx4 v%d, %s, 0 offen nt lds" % (V_W0, sr(SRD_X, 4))]


def w_item(i):
    if i == 0:
        return ["s_lshr_b32 s94, s2, 3", "s_and_b32 s94, s94, 31", "s_lshl_b32 s94, s94, 2",
                "s_add_u32 s94, s94, s%d" % S_W,
                "v_lshlrev_b32 v%d, 4, v%d" % (V_W1, V_LANE),
                "s_mul_i32 s95, s94, 3072",
                "v_add_u32 v%d, s95, v%d" % (V_W0, V_W1),
                "global_load_dwordx4 a[200:203], v%d, %s" % (V_W0, sr(S_W2))]
    if i < 3:
        return ["global_load_dwordx4 a[200:203], v%d, %s offset:%d" % (V_W0, sr(S_W2), i * 1024)]
    if i == 3:
        return ["s_lshl_b32 s95, s94, 10", "v_add_u32 v%d, s95, v%d" % (V_W0, V_W1),
                "global_load_dwordx4 a[200:203], v%d, %s" % (V_W0, sr(S_WF))]
    return ["global_load_dwordx4 a[200:203], v%d, %s" % (V_W0, sr(S_WO))]


def schedule(entries):
    out = []
    pend = []
    for u in range(len(UNITS)):
        for i in range(8):
            pend.append(("u", u, i))
        for si, pos in enumerate(XPOS):
            if u == pos:
                pend += [("x", si + 1, i) for i in range(4)]
        if u == WUPOS and WARM:
            pend += [("w", 0, i) for i in range(5)]
    pi = 0
    freed = set()
    vcount = 0
    last = {}
    marks = {}
    t = 0
    next_t = 0
    rare = 0
    forced = {}

    def can(it):
        return it[0] != "u" or it[1] < 6 or (it[1] - 6) in freed

    def issue():
        nonlocal pi, vcount, t, next_t
        k, u, i = pend[pi]
        if k == "u":
            sb, vo, cst = UNITS[u]
            if i == 0:
                out.append("  v_add_u32 v%d, 0x%x, v%d" % (V_LD, cst, vo))
                t += 4
            out.append("  global_load_dwordx4 %s, v%d, %s offset:%d" % (vr(slot(u) + 4 * i), V_LD, sr(sb), i * 512))
            vcount += 1
            last[u] = vcount
        else:
            for s_ in (x_item(u, i) if k == "x" else w_item(i)):
                out.append("  " + s_)
            vcount += 1
            if k == "x":
                marks["x%d" % u] = vcount
        pi += 1
        t += 8
        next_t = max(next_t, t - 8) + (PACE0 if pi < NFAST else PACE)

    for k, arg, cost, noins in entries:
        if not noins and k in ("i",):
            while pi < len(pend) and t >= next_t and can(pend[pi]):
                issue()
        if k == "i":
            out.append("  " + arg)
            if not rare:
                t += cost
        elif k == "v":
            out.append("  " + arg)
            vcount += 1
            t += PACE
            next_t = max(next_t, t)
        elif k == "l":
            out.append(arg + ":")
        elif k == "c":
            out.append("  ; %s  [t=%d, loads issued %d]" % (arg, t, pi))
        elif k == "free":
            freed.add(arg)
        elif k == "rare":
            rare = arg
        elif k in ("need", "flush"):
            while pi < len(pend) and not (pend[pi][0] == "u" and pend[pi][1] > arg) and (arg not in last or pend[pi][0] == "u"):
                assert can(pend[pi]), ("slot not free", pend[pi], arg)
                if k == "need":
                    forced[arg] = forced.get(arg, 0) + 1
                t = max(t, next_t)
                issue()
            if k == "need":
                n = vcount - last[arg]
                out.append("  s_waitcnt vmcnt(%d)" % min(n, 63))
        elif k == "mark":
            marks[arg] = vcount
        elif k == "needmark":
            while arg not in marks or (pi < len(pend) and pend[pi][0] == "x" and "x%d" % pend[pi][1] == arg):
                t = max(t, next_t)
                issue()
            out.append("  s_waitcnt vmcnt(%d)" % min(vcount - marks[arg], 63))
    assert pi == len(pend)
    sys.stderr.write("est front cycles %d, forced: %s\n" % (t, forced))
    return out


def main():
    prologue()
    stamp()
    a.c("---- conv1 ----")
    conv_phase(U_C1, 5, lambda sl, j: A_ACC1 + (sl * 8 + j) * 4, c1_areads, True)
    stamp()
    epi1()
    stamp()
    a.c("---- conv2 ----")
    flag_issue()
    conv_phase(U_C2, 2, lambda sl, j: A_ACC2 + (sl * 8 + j) * 4, c2_areads, False)
    stamp()
    epi2()
    stamp()
    phase_f()
    stamp()
    epi3()
    stamp()
    phase_wo()
    stamp()
    a.noins = 1
    front = schedule(a.l)
    a.l = []
    e("s_cmp_lg_u32 s%d, 0" % S_FLAG)
    e("s_cbranch_scc1 L_slow")
    phase_out(False)
    a.lab("L_slow")
    phase_out(True)
    producer()
    a.lab("L_end")
    e("s_endpgm")
    back = []
    for k, arg, cost, noins in a.l:
        back.append(arg + ":" if k == "l" else ("  ; " + arg if k == "c" else "  " + arg))

    hdr = open("standalone__seq2seq_rnn_t_joint__speech.s.ref").read().split("\n")
    top = [l for l in hdr if l.startswith(";") and "@launch" not in l and "Override" not in l and "grid=ceil" not in l]
    out = "\n".join(top) + "\n"
    out += "; @launch grid=(252,1,1) block=(256,1,1) lds=%d\n" % LDS_TOTAL
    out += '.amdgcn_target "amdgcn-amd-amdhsa--gfx950"\n.text\n.globl %s\n.p2align 8\n.type %s,@function\n%s:\n' % (KN, KN, KN)
    out += "\n".join(front + back) + "\n"
    out += """.section .rodata,"a"
.p2align 6
.amdhsa_kernel %s
  .amdhsa_next_free_vgpr 512
  .amdhsa_next_free_sgpr 102
  .amdhsa_accum_offset 256
  .amdhsa_group_segment_fixed_size 0
  .amdhsa_kernarg_size 80
  .amdhsa_user_sgpr_count 2
  .amdhsa_user_sgpr_kernarg_segment_ptr 1
  .amdhsa_system_sgpr_workgroup_id_x 1
.end_amdhsa_kernel
""" % KN
    dst = sys.argv[1] if len(sys.argv) > 1 else "standalone__seq2seq_rnn_t_joint__speech.s"
    open(dst, "w").write(out)
    if PROF:
        sys.stderr.write("stamps %d\n" % NSTAMP[0])


main()
```

```python
import sys, os, struct

DEBUG = os.environ.get("DBG", "")
PROF = os.environ.get("PROF", "")
PACE = int(os.environ.get("PACE", "72"))
PACE0 = int(os.environ.get("PACE0", "30"))
NFAST = int(os.environ.get("NFAST", "60"))
PK = int(os.environ.get("PK", "0"))
STMOD = os.environ.get("STMOD", " nt")
CODEPF = int(os.environ.get("CODEPF", "1"))
WUPOS = int(os.environ.get("WUPOS", "8"))
XPOS = [int(v) for v in os.environ.get("XPOS", "2,5,7").split(",")]
XS2 = int(os.environ.get("XS2", "0"))
XS3 = int(os.environ.get("XS3", "1"))
XWU = int(os.environ.get("XWU", "3"))
WARM = int(os.environ.get("WARM", "1"))
NSTAMP = [0]

KN = "standalone__seq2seq_rnn_t_joint__speech_kernel"

XBP = 1152
XS = 17 * XBP
XB = 0
EXB = 78848
EX1S = 18432
HB = 0
HP = 528
FB = 36864
FP = 544
FLG = 114688
EAB = 122368
EAP = 1040
EBB = 155648
LDS_TOTAL = 163840

V_OFF16, V_OFF32, V_LD = 1, 2, 3
V_A0, V_A1, V_A2 = 4, 5, 6
V_EXW, V_EXR = 7, 8
V_W0, V_W1 = 9, 10
V_MASK = 11
V_C0 = 12
V_LANE = 14
V_T0, V_T1 = 15, 16
V_OFF32W = 18
TMP = 20
RING = 64

S_X, S_W1, S_W2, S_G, S_WF, S_WG, S_WO, S_OUT = 4, 6, 8, 10, 12, 14, 16, 18
SRD_X, SRD_G, SRD_O = 20, 24, 28
S_W, S_NH, S_KH, S_B, S_T0, S_CNT = 56, 57, 58, 59, 60, 61
S_SELLO, S_SELHI = 62, 63
S_C1 = 64
S_ONE = 66
S_FLAG = 68
S_T = 69
S_SCL = 76
S_OBASE = 79
S_WSP = 80
S_SO = 82
S_R = 83
S_DBG = 84
SRD_WS = 88
S_TILE = 86

A_ACC1 = 0
A_AF = 160
A_ACCG = 200
A_GF = 232
A_ACC2 = 64
A_ACC3 = 0


def f32bits(x):
    return struct.unpack("<I", struct.pack("<f", x))[0]


LOG2E = 1.4426950408889634
GC0 = -2.0 * 0.7978845608028654 * LOG2E
GC1 = GC0 * 0.044715
TSC = 2.0 * LOG2E


class A:
    def __init__(self):
        self.l = []
        self.noins = 0

    def cost(self, s):
        op = s.split()[0]
        if op.startswith("v_mfma_f32_16x16"):
            return 10
        if op.startswith("v_mfma"):
            return 32
        if op in ("v_exp_f32", "v_rcp_f32"):
            return 8
        if op.startswith("v_"):
            return 4
        if op.startswith("ds_write_b128"):
            return 12
        if op.startswith("ds_"):
            return 4
        if op.startswith("buffer_") or op.startswith("global_"):
            return 8
        if op == "s_barrier":
            return 60
        if op == "s_nop":
            return 4 * (int(s.split()[1]) + 1)
        return 2

    def e(self, s):
        self.l.append(["i", s, self.cost(s), self.noins])

    def vm(self, s):
        self.l.append(["v", s, 8, 1])

    def lab(self, s):
        self.l.append(["l", s, 0, 1])

    def c(self, s):
        self.l.append(["c", s, 0, self.noins])

    def op(self, kind, arg):
        self.l.append([kind, arg, 0, self.noins])


a = A()
e = a.e


def vr(b, n=4):
    return "v[%d:%d]" % (b, b + n - 1)


def ar(b, n=4):
    return "a[%d:%d]" % (b, b + n - 1)


def sr(b, n=2):
    return "s[%d:%d]" % (b, b + n - 1)


def slot(u):
    return RING + 32 * (u % 6)


def conv_off(it, u):
    return (u >> 1) * 131072 + (u & 1) * 32768 + it * 65536


UNITS = []
for k in range(12):
    UNITS.append((S_W1, V_OFF16, (k % 3) * 131072 + (k // 3) * 32768))
for k in range(12):
    UNITS.append((S_W2, V_OFF16, (k % 3) * 131072 + (k // 3) * 32768))
for u in range(4):
    UNITS.append((S_WF, V_OFF16, u * 32768))
for i in range(4):
    UNITS.append((S_WO, V_OFF32W, i * 32768))
UNITS.append((S_WO, V_OFF32, 14 * 8192))
UNITS.append((S_WO, V_OFF32, 15 * 8192))
U_C1, U_C2, U_F, U_O = 0, 12, 24, 28


def perms(unit, j, dst):
    R = slot(unit)
    d = j >> 1
    sel = S_SELHI if (j & 1) else S_SELLO
    return ["v_perm_b32 v%d, v%d, v%d, s%d" % (dst + p, R + 4 * (2 * p + 1) + d, R + 4 * (2 * p) + d, sel)
            for p in range(4)]


FBUF = TMP


def prime(unit):
    a.op("need", unit)
    for j in (0, 1):
        for s in perms(unit, j, FBUF + 4 * j):
            e(s)


def emit_units(units, nM, acc):
    for ui, u in enumerate(units):
        for s in u.get("pre", []):
            if isinstance(s, tuple) and s[0] == "call":
                s[1]()
            elif isinstance(s, tuple):
                a.op(s[0], s[1])
            else:
                e(s)
        e("s_waitcnt lgkmcnt(0)")
        areads = list(u.get("areads", []))
        un = u["unit"]
        for j in range(8):
            fill = []
            jt = j + 2
            if jt < 8:
                fill += perms(un, jt, FBUF + 4 * (jt & 3))
                if jt == 7:
                    fill.append(("free", un))
            elif not u["last"]:
                if j == 6:
                    fill.append(("need", un + 1))
                fill += perms(un + 1, jt - 8, FBUF + 4 * (jt & 3))
            if areads and j < 6:
                fill.append(areads.pop(0))
            fb = FBUF + 4 * (j & 3)
            k = 0
            for sl in range(nM):
                d = acc(sl, j)
                e("v_mfma_f32_16x16x32_bf16 %s, %s, %s, %s" % (ar(d), ar(u["aset"][sl]), vr(fb), ar(d)))
                take = 2 if sl < nM - 1 else len(fill) - k
                for s in fill[k:k + take]:
                    if isinstance(s, tuple):
                        a.op(s[0], s[1])
                    else:
                        e(s)
                k += take
        assert not areads


def zero_acc(base, n, zreg):
    for b in range(base, base + n, 16):
        e("v_mfma_f32_32x32x16_bf16 %s, %s, %s, 0" % (ar(b, 16), vr(zreg), vr(zreg)))


def gelu_pairs(xs, ts):
    for x, t in zip(xs, ts):
        e("v_pk_mul_f32 %s, %s, %s" % (vr(t, 2), vr(x, 2), vr(x, 2)))
    for x, t in zip(xs, ts):
        e("v_pk_fma_f32 %s, %s, %s, %s" % (vr(t, 2), vr(t, 2), sr(S_C1), vr(V_C0, 2)))
    for x, t in zip(xs, ts):
        e("v_pk_mul_f32 %s, %s, %s" % (vr(t, 2), vr(x, 2), vr(t, 2)))
    for x, t in zip(xs, ts):
        e("v_exp_f32 v%d, v%d" % (t, t))
        e("v_exp_f32 v%d, v%d" % (t + 1, t + 1))
    for x, t in zip(xs, ts):
        e("v_pk_add_f32 %s, %s, %s" % (vr(t, 2), vr(t, 2), sr(S_ONE)))
    for x, t in zip(xs, ts):
        e("v_rcp_f32 v%d, v%d" % (t, t))
        e("v_rcp_f32 v%d, v%d" % (t + 1, t + 1))
    for x, t in zip(xs, ts):
        e("v_pk_mul_f32 %s, %s, %s" % (vr(t, 2), vr(x, 2), vr(t, 2)))


def stamp():
    if not PROF:
        return
    i = NSTAMP[0]
    NSTAMP[0] += 1
    assert i < 60
    e("s_memtime s[98:99]")
    e("s_waitcnt lgkmcnt(0)")
    e("v_writelane_b32 v19, s98, %d" % i)


def stamp_store():
    if not PROF:
        return
    e("s_waitcnt vmcnt(0)")
    stamp()
    e("s_lshl_b32 s98, s2, 10")
    e("s_lshl_b32 s99, s%d, 8" % S_W)
    e("s_add_u32 s98, s98, s99")
    e("s_add_u32 s98, s98, 0x10000")
    e("v_lshlrev_b32 v17, 2, v%d" % V_LANE)
    e("v_add_u32 v17, s98, v17")
    e("global_store_dword v17, v19, %s" % sr(S_WSP))


V_XL = 13


def x_slice(sl_):
    sv = a.noins
    a.noins = 1
    for i in range(4):
        e("s_add_u32 s94, s92, %d" % (sl_ * 128 + i * 16384))
        e("s_add_u32 s95, s93, %d" % (sl_ * XS + i * 4 * XBP))
        e("v_add_u32 v%d, s94, v%d" % (V_W0 + (i & 1), V_XL))
        e("s_mov_b32 m0, s95")
        e("s_nop 0")
        a.vm("buffer_load_dwordx4 v%d, %s, 0 offen nt lds" % (V_W0 + (i & 1), sr(SRD_X, 4)))
    a.op("mark", "x%d" % sl_)
    a.noins = sv


def prologue():
    a.noins = 1
    e("s_cmp_ge_u32 s2, 252")
    e("s_cbranch_scc1 L_end")
    stamp()
    e("s_load_dwordx16 s[4:19], s[0:1], 0")
    e("s_load_dwordx2 %s, s[0:1], 64" % sr(S_DBG))
    e("s_load_dwordx2 %s, s[0:1], 72" % sr(S_WSP))
    e("v_lshrrev_b32 v20, 6, v0")
    e("v_and_b32 v%d, 63, v0" % V_LANE)
    e("s_sub_u32 s%d, s2, 2" % S_TILE)
    e("s_cmp_ge_u32 s%d, 125" % S_TILE)
    e("v_readfirstlane_b32 s%d, v20" % S_W)
    e("s_cselect_b32 s%d, 1, 0" % S_B)
    e("s_mul_i32 s%d, s%d, 125" % (S_T, S_B))
    e("s_sub_u32 s%d, s%d, s%d" % (S_T0, S_TILE, S_T))
    e("s_lshl_b32 s%d, s%d, 5" % (S_T0, S_T0))
    e("s_and_b32 s%d, s%d, 1" % (S_NH, S_W))
    e("s_lshr_b32 s%d, s%d, 1" % (S_KH, S_W))
    if CODEPF:
        e("s_getpc_b64 s[96:97]")
        a.lab("L_pc")
        e("s_lshr_b32 s94, s2, 3")
        e("s_and_b32 s94, s94, 31")
        e("s_lshl_b32 s94, s94, 2")
        e("s_add_u32 s94, s94, s%d" % S_W)
        e("s_min_u32 s94, s94, (L_end - L_pc) / 1024")
        e("s_lshl_b32 s94, s94, 10")
        e("v_lshlrev_b32 v21, 4, v%d" % V_LANE)
        e("v_add_u32 v21, s94, v21")
        a.vm("global_load_dwordx4 a[200:203], v21, s[96:97]")
    e("s_mov_b32 s%d, 0x05040100" % S_SELLO)
    e("s_mov_b32 s%d, 0x07060302" % S_SELHI)
    e("s_mov_b32 s%d, 0x%x" % (S_SCL, f32bits(TSC)))
    e("v_lshrrev_b32 v21, 4, v%d" % V_LANE)
    e("v_and_b32 v22, 15, v%d" % V_LANE)
    e("v_lshrrev_b32 v23, 5, v%d" % V_LANE)
    e("v_and_b32 v24, 31, v%d" % V_LANE)
    e("s_lshl_b32 s%d, s%d, 8" % (S_T, S_NH))
    e("s_lshl_b32 s%d, s%d, 14" % (S_T + 1, S_KH))
    e("s_add_u32 s%d, s%d, s%d" % (S_T, S_T, S_T + 1))
    e("v_lshlrev_b32 v25, 12, v21")
    e("v_lshl_add_u32 v25, v22, 4, v25")
    e("v_add_u32 v%d, s%d, v25" % (V_OFF16, S_T))
    e("v_lshrrev_b32 v26, 3, v%d" % V_LANE)
    e("v_and_b32 v25, 6, v26")
    e("v_and_b32 v27, 7, v%d" % V_LANE)
    e("v_xor_b32 v25, v25, v27")
    e("v_lshlrev_b32 v26, 9, v26")
    e("v_lshl_add_u32 v26, v25, 4, v26")
    e("v_lshlrev_b32 v25, 4, v%d" % V_LANE)
    e("s_mul_i32 s%d, s%d, %d" % (S_T, S_W, EX1S))
    e("s_add_u32 s%d, s%d, %d" % (S_T, S_T, EXB))
    e("v_add_u32 v%d, s%d, v25" % (V_EXW, S_T))
    e("s_xor_b32 s%d, s%d, 2" % (S_T + 1, S_W))
    e("s_mul_i32 s%d, s%d, %d" % (S_T, S_T + 1, EX1S))
    e("s_add_u32 s%d, s%d, %d" % (S_T, S_T, EXB))
    e("v_add_u32 v%d, s%d, v25" % (V_EXR, S_T))
    e("s_cmp_lt_u32 s2, 2")
    e("s_cbranch_scc1 L_prod")
    e("s_lshl_b32 s%d, s%d, 11" % (S_T, S_T0))
    e("s_sub_u32 s%d, s%d, 1536" % (S_T, S_T))
    e("s_lshl_b32 s%d, s%d, 7" % (S_T + 3, S_W))
    e("s_add_u32 s%d, s%d, s%d" % (S_T + 3, S_T + 3, S_T))
    e("s_add_u32 s%d, s%d, 65536" % (S_T + 3, S_T + 3))
    e("s_mul_i32 s%d, s%d, %d" % (S_T + 4, S_W, XS))
    e("s_add_u32 s%d, s%d, %d" % (S_T + 4, S_T + 4, 16 * XBP))
    e("s_lshl_b32 s%d, s%d, 12" % (S_T + 1, S_W))
    e("s_add_u32 s%d, s%d, s%d" % (S_T, S_T, S_T + 1))
    e("s_mul_i32 s%d, s%d, %d" % (S_T + 1, S_W, XBP))
    e("s_mul_i32 s%d, s%d, 8192000" % (S_T + 2, S_B))
    e("s_waitcnt lgkmcnt(0)")
    e("s_add_u32 s%d, s%d, s%d" % (SRD_X, S_X, S_T + 2))
    e("s_addc_u32 s%d, s%d, 0" % (SRD_X + 1, S_X + 1))
    e("s_and_b32 s%d, s%d, 0xffff" % (SRD_X + 1, SRD_X + 1))
    e("s_mov_b32 s%d, 8192000" % (SRD_X + 2))
    e("s_mov_b32 s%d, 0x00020000" % (SRD_X + 3))
    stamp()
    e("v_add_u32 v27, s%d, v26" % (S_T + 3))
    e("s_mov_b32 m0, s%d" % (S_T + 4))
    e("s_nop 0")
    a.vm("buffer_load_dwordx4 v27, %s, 0 offen nt lds" % sr(SRD_X, 4))
    e("s_mov_b32 s92, s%d" % S_T)
    e("s_mov_b32 s93, s%d" % (S_T + 1))
    e("v_mov_b32 v%d, v26" % V_XL)
    x_slice(0)
    a.op("flush", 0)
    stamp()
    a.noins = 0
    e("s_mov_b32 s%d, s%d" % (SRD_O, S_OUT))
    e("s_and_b32 s%d, s%d, 0xffff" % (SRD_O + 1, S_OUT + 1))
    e("s_mov_b32 s%d, 32768000" % (SRD_O + 2))
    e("s_mov_b32 s%d, 0x00020000" % (SRD_O + 3))
    e("s_mov_b32 s%d, s%d" % (SRD_WS, S_WSP))
    e("s_and_b32 s%d, s%d, 0xffff" % (SRD_WS + 1, S_WSP + 1))
    e("s_mov_b32 s%d, 32768" % (SRD_WS + 2))
    e("s_mov_b32 s%d, 0x00020000" % (SRD_WS + 3))
    e("s_mov_b32 s%d, 0x%x" % (S_C1, f32bits(GC1)))
    e("s_mov_b32 s%d, 0x%x" % (S_C1 + 1, f32bits(GC1)))
    e("s_mov_b32 s%d, 1.0" % S_ONE)
    e("s_mov_b32 s%d, 1.0" % (S_ONE + 1))
    e("s_mov_b32 s%d, 0" % S_FLAG)
    e("v_lshlrev_b32 v25, 12, v23")
    e("v_lshl_add_u32 v%d, v24, 4, v25" % V_OFF32)
    e("s_lshl_b32 s%d, s%d, 13" % (S_T, S_W))
    e("v_add_u32 v%d, s%d, v%d" % (V_OFF32W, S_T, V_OFF32))
    for i in range(4):
        e("v_mov_b32 v%d, 0" % (28 + i))
    e("s_nop 1")
    zero_acc(A_ACC1, 160, 28)
    e("s_or_b32 s%d, s%d, s%d" % (S_T, S_T0, S_KH))
    e("v_or_b32 v25, s%d, v21" % S_T)
    e("v_cmp_eq_u32 vcc, 0, v25")
    e("v_mov_b32 v25, 1.0")
    e("s_nop 1")
    e("v_cndmask_b32 v%d, v25, 0, vcc" % V_MASK)
    e("s_lshl_b32 s%d, s%d, 2" % (S_T, S_KH))
    e("v_add_u32 v25, s%d, v21" % S_T)
    e("s_mul_i32 s%d, s%d, 9216" % (S_T, S_KH))
    e("s_sub_u32 s%d, 9216, s%d" % (S_T + 1, S_T))
    for cls, dst in ((0, V_A0), (1, 15)):
        e("v_add_u32 v26, %d, v22" % cls)
        e("v_and_b32 v27, 3, v26")
        e("v_lshlrev_b32 v27, 1, v27")
        e("v_lshrrev_b32 v26, 2, v26")
        e("v_mul_u32_u24 v26, %d, v26" % XBP)
        e("v_lshl_add_u32 v26, v27, 7, v26")
        e("v_xor_b32 v27, v27, v25")
        e("v_lshl_add_u32 v26, v27, 4, v26")
        e("v_add_u32 v%d, s%d, v26" % (dst, S_T))
        e("v_add_u32 v%d, s%d, v26" % (dst + 1, S_T + 1))
        e("v_add_u32 v%d, 0x%x, v26" % (dst + 2, 18432))
    a.op("needmark", "x0")
    e("s_barrier")


def warmup():
    if not WARM:
        return
    e("s_lshr_b32 s94, s2, 3")
    e("s_and_b32 s94, s94, 31")
    e("s_lshl_b32 s94, s94, 2")
    e("s_add_u32 s94, s94, s%d" % S_W)
    e("v_lshlrev_b32 v%d, 4, v%d" % (V_W1, V_LANE))
    e("s_mul_i32 s95, s94, 3072")
    e("v_add_u32 v%d, s95, v%d" % (V_W0, V_W1))
    for i in range(3):
        a.vm("global_load_dwordx4 a[200:203], v%d, %s offset:%d" % (V_W0, sr(S_W2), i * 1024))
    e("s_lshl_b32 s95, s94, 10")
    e("v_add_u32 v%d, s95, v%d" % (V_W0, V_W1))
    a.vm("global_load_dwordx4 a[200:203], v%d, %s" % (V_W0, sr(S_WF)))
    a.vm("global_load_dwordx4 a[200:203], v%d, %s" % (V_W0, sr(S_WO)))


def producer():
    a.lab("L_prod")
    e("s_lshl_b32 s%d, s2, 12" % S_T)
    e("s_lshl_b32 s%d, s%d, 6" % (S_T + 1, S_KH))
    e("s_add_u32 s%d, s%d, s%d" % (S_T, S_T, S_T + 1))
    e("v_lshlrev_b32 v25, 9, v22")
    e("v_lshl_add_u32 v25, v21, 4, v25")
    e("v_add_u32 v25, s%d, v25" % S_T)
    e("s_waitcnt lgkmcnt(0)")
    e("s_mov_b32 s%d, s%d" % (SRD_G, S_G))
    e("s_and_b32 s%d, s%d, 0xffff" % (SRD_G + 1, S_G + 1))
    e("s_mov_b32 s%d, 8192" % (SRD_G + 2))
    e("s_mov_b32 s%d, 0x00020000" % (SRD_G + 3))
    for u in range(4):
        e("buffer_load_dwordx4 %s, v25, %s, 0 offen offset:%d" % (ar(A_GF + 4 * u), sr(SRD_G, 4), u * 128))
    for u in range(4):
        e("v_add_u32 v%d, 0x%x, v%d" % (V_LD, u * 32768, V_OFF16))
        for i in range(8):
            e("global_load_dwordx4 %s, v%d, %s offset:%d" % (vr(slot(u) + 4 * i), V_LD, sr(S_WG), i * 512))
    for i in range(4):
        e("v_mov_b32 v%d, 0" % (28 + i))
    e("s_nop 1")
    zero_acc(A_ACCG, 32, 28)
    e("s_waitcnt vmcnt(0)")
    for u in range(4):
        for j in range(8):
            for s_ in perms(u, j, FBUF + 4 * (j & 3)):
                e(s_)
            e("s_nop 1")
            d = A_ACCG + 4 * j
            e("v_mfma_f32_16x16x32_bf16 %s, %s, %s, %s" % (ar(d), ar(A_GF + 4 * u), vr(FBUF + 4 * (j & 3)), ar(d)))
    e("s_nop 7")
    e("s_nop 1")
    for j in range(8):
        e("ds_write_b128 v%d, %s offset:%d" % (V_EXW, ar(A_ACCG + 4 * j), j * 1024))
    e("v_lshrrev_b32 v20, 4, v%d" % V_LANE)
    e("v_and_b32 v21, 15, v%d" % V_LANE)
    e("v_and_b32 v20, 1, v20")
    e("v_lshlrev_b32 v20, 12, v20")
    e("v_lshl_add_u32 v20, v21, 5, v20")
    e("s_lshl_b32 s%d, s%d, 9" % (S_T, S_NH))
    e("s_lshl_b32 s%d, s2, 14" % (S_T + 1))
    e("s_add_u32 s%d, s%d, s%d" % (S_T, S_T, S_T + 1))
    e("v_add_u32 v%d, s%d, v20" % (V_W0, S_T))
    e("v_add_u32 v%d, 0x2000, v%d" % (V_A0, V_W0))
    e("v_mov_b32 v%d, 0" % V_W1)
    e("s_waitcnt lgkmcnt(0)")
    e("s_barrier")
    for j in range(8):
        e("ds_read_b128 %s, v%d offset:%d" % (vr(TMP + 4 * j), V_EXR, j * 1024))
    T = TMP + 32
    R = RING
    e("s_waitcnt lgkmcnt(0)")
    for j in range(8):
        P = TMP + 4 * j
        for r in range(4):
            e("v_accvgpr_read_b32 v%d, a%d" % (T + r, A_ACCG + 4 * j + r))
        e("v_pk_add_f32 %s, %s, %s" % (vr(P, 2), vr(P, 2), vr(T, 2)))
        e("v_pk_add_f32 %s, %s, %s" % (vr(P + 2, 2), vr(P + 2, 2), vr(T + 2, 2)))
        e("v_cvt_pk_bf16_f32 v%d, v%d, v%d" % (T, P, P + 1))
        e("v_cvt_pk_bf16_f32 v%d, v%d, v%d" % (T + 1, P + 2, P + 3))
        e("v_lshlrev_b32 v%d, 16, v%d" % (P, T))
        e("v_and_b32 v%d, 0xffff0000, v%d" % (P + 1, T))
        e("v_lshlrev_b32 v%d, 16, v%d" % (P + 2, T + 1))
        e("v_and_b32 v%d, 0xffff0000, v%d" % (P + 3, T + 1))
        for r in range(4):
            e("v_mul_f32 v%d, s%d, v%d" % (R + 8 * r + j, S_SCL, P + r))
        e("v_max3_f32 v%d, |v%d|, |v%d|, v%d" % (V_W1, R + j, R + 8 + j, V_W1))
        e("v_max3_f32 v%d, |v%d|, |v%d|, v%d" % (V_W1, R + 16 + j, R + 24 + j, V_W1))
        for r in range(4):
            e("v_exp_f32 v%d, v%d" % (R + 32 + 8 * r + j, R + 8 * r + j))
    e("v_mov_b32 v%d, 0x42fa0000" % T)
    e("s_mov_b32 exec_hi, 0")
    e("v_cmp_nle_f32 vcc, v%d, v%d" % (V_W1, T))
    for r in range(4):
        for hh in range(2):
            e("global_store_dwordx4 v%d, %s, %s offset:%d sc0 sc1" % (V_W0, vr(R + 32 + 8 * r + 4 * hh), sr(S_WSP), r * 1024 + hh * 16))
            e("global_store_dwordx4 v%d, %s, %s offset:%d sc0 sc1" % (V_A0, vr(R + 8 * r + 4 * hh), sr(S_WSP), r * 1024 + hh * 16))
    e("s_mov_b64 exec, -1")
    e("s_or_b32 s%d, vcc_lo, vcc_hi" % S_FLAG)
    e("s_cmp_lg_u32 s%d, 0" % S_FLAG)
    e("s_cselect_b32 s%d, 3, 1" % S_FLAG)
    e("s_lshl_b32 s%d, s2, 4" % S_T)
    e("s_lshl_b32 s%d, s%d, 2" % (S_T + 1, S_W))
    e("s_add_u32 s%d, s%d, s%d" % (S_T, S_T, S_T + 1))
    e("v_mov_b32 v20, s%d" % S_T)
    e("v_mov_b32 v21, s%d" % S_FLAG)
    e("s_waitcnt vmcnt(0)")
    e("s_mov_b32 exec_lo, 1")
    e("s_mov_b32 exec_hi, 0")
    e("global_store_dword v20, v21, %s sc0 sc1" % sr(S_DBG))
    e("s_endpgm")


def flag_issue():
    e("s_lshl_b32 s%d, s%d, 4" % (S_T, S_B))
    e("v_mov_b32 v15, s%d" % S_T)
    a.vm("global_load_dwordx4 v[60:63], v15, %s sc0 sc1" % sr(S_DBG))
    a.op("mark", "flag")


def eb_dma(wsoff):
    e("s_lshl_b32 s%d, s%d, 14" % (S_T, S_B))
    e("s_lshl_b32 s%d, s%d, 11" % (S_T + 1, S_W))
    e("s_add_u32 s%d, s%d, s%d" % (S_T, S_T, S_T + 1))
    e("s_add_u32 s%d, s%d, %d" % (S_T, S_T, wsoff))
    e("v_lshlrev_b32 v16, 4, v%d" % V_LANE)
    e("v_add_u32 v16, s%d, v16" % S_T)
    e("s_add_u32 s%d, s%d, %d" % (S_T + 1, S_T + 1, EBB))
    e("s_mov_b32 m0, s%d" % (S_T + 1))
    e("s_nop 0")


def flag_check():
    a.op("needmark", "flag")
    sv = a.noins
    a.noins = 1
    a.lab("L_flag_chk")
    e("v_min_u32 v16, v60, v61")
    e("v_min3_u32 v16, v62, v63, v16")
    e("v_or3_b32 v17, v60, v61, v62")
    e("v_or_b32 v17, v17, v63")
    e("v_readfirstlane_b32 s%d, v16" % (S_T))
    e("v_readfirstlane_b32 s%d, v17" % (S_T + 1))
    e("s_nop 3")
    e("s_cmp_lg_u32 s%d, 0" % S_T)
    e("s_cbranch_scc1 L_flag_ok")
    a.op("rare", 1)
    e("s_sleep 4")
    e("global_load_dwordx4 v[60:63], v15, %s sc0 sc1" % sr(S_DBG))
    e("s_waitcnt vmcnt(0)")
    e("s_branch L_flag_chk")
    a.op("rare", 0)
    a.lab("L_flag_ok")
    e("s_and_b32 s%d, s%d, 2" % (S_FLAG, S_T + 1))
    eb_dma(0)
    a.vm("buffer_load_dwordx4 v16, %s, 0 offen sc0 sc1 lds" % sr(SRD_WS, 4))
    a.vm("buffer_load_dwordx4 v16, %s, 0 offen offset:1024 sc0 sc1 lds" % sr(SRD_WS, 4))
    a.op("mark", "eb")
    a.noins = sv


TAPH = [0, HP, 2 * HP]


def c1_areads(k, aset):
    tap = k % 3
    out = []
    for sl in range(5):
        b0 = V_A0 if tap < 2 else 15
        base = b0 if sl < 2 else (b0 + 1 if sl < 4 else b0 + 2)
        off = ((sl & 1) * 4608 if sl < 4 else 0) + (128 if tap == 1 else 0)
        out.append("ds_read_b128 %s, v%d offset:%d" % (ar(aset + 4 * sl), base, off))
    return out


def c2_areads(k, aset):
    tap, sl_ = k % 3, k // 3
    return ["ds_read_b128 %s, v%d offset:%d" % (ar(aset + 4 * sl), V_A0 + sl, HB + TAPH[tap] + sl_ * 128)
            for sl in range(2)]


def conv_phase(u0, nM, acc, areads_fn, isx):
    for s in areads_fn(0, A_AF):
        e(s)
    prime(u0)
    units = []
    for k in range(12):
        nk = k + 1
        pre = []
        if isx and k % 3 == 2 and k < 11:
            pre = [("needmark", "x%d" % (k // 3 + 1)), "s_barrier"]
            pre += ["v_add_u32 v%d, 0x%x, v%d" % (r, XS, r) for r in (V_A0, V_A1, V_A2)]
        if isx and k % 3 == 0 and k > 0:
            pre = ["v_add_u32 v%d, 0x%x, v%d" % (r, XS, r) for r in (15, 16, 17)]
        if isx and PROF == "2":
            pre = pre + [("call", stamp)]
        units.append(dict(unit=u0 + k, aset=[A_AF + 20 * (k & 1) + 4 * s for s in range(nM)], last=(k == 11), pre=pre,
                          areads=(areads_fn(nk, A_AF + 20 * (nk & 1)) if k < 11 else [])))
    emit_units(units, nM, acc)


def lane_fields():
    e("v_lshrrev_b32 v16, 4, v%d" % V_LANE)
    e("v_and_b32 v17, 15, v%d" % V_LANE)


P0, P1 = TMP, TMP + 8
TT = TMP + 16
OWN = TMP + 24
OUTR = TMP + 28


def add_own(P, accbase):
    for i in range(0, 8, 4):
        for k in range(4):
            e("v_accvgpr_read_b32 v%d, a%d" % (OWN + k, accbase + i + k))
        e("v_pk_add_f32 %s, %s, %s" % (vr(P + i, 2), vr(P + i, 2), vr(OWN, 2)))
        e("v_pk_add_f32 %s, %s, %s" % (vr(P + i + 2, 2), vr(P + i + 2, 2), vr(OWN + 2, 2)))


def epi_gelu_slot(accbase, rdoff, nblocks_after, wr, mask):
    for jp in range(4):
        P = P0 if (jp & 1) == 0 else P1
        Pn = P1 if (jp & 1) == 0 else P0
        nxt = rdoff + (2 * jp + 2) * 1024
        more = jp < 3 or nblocks_after
        if more:
            e("ds_read_b128 %s, v%d offset:%d" % (vr(Pn), V_EXR, nxt))
            e("ds_read_b128 %s, v%d offset:%d" % (vr(Pn + 4), V_EXR, nxt + 1024))
            e("s_waitcnt lgkmcnt(2)")
        else:
            e("s_waitcnt lgkmcnt(0)")
        add_own(P, accbase + 8 * jp)
        gelu_pairs([P, P + 2, P + 4, P + 6], [TT, TT + 2, TT + 4, TT + 6])
        if mask:
            e("v_mul_f32 v%d, v%d, v%d" % (TT, V_MASK, TT))
            e("v_mul_f32 v%d, v%d, v%d" % (TT + 4, V_MASK, TT + 4))
        for r in range(4):
            e("v_cvt_pk_bf16_f32 v%d, v%d, v%d" % (OUTR + 4 * r + jp, TT + r, TT + 4 + r))
    for r in range(4):
        e(wr(r))


def epi1():
    a.c("---- epilogue conv1 ----")
    e("v_mov_b32 v%d, 0x%x" % (V_C0, f32bits(GC0)))
    e("v_mov_b32 v%d, 0x%x" % (V_C0 + 1, f32bits(GC0)))
    e("s_nop 7")
    e("s_nop 1")
    for j in range(8):
        e("v_accvgpr_read_b32 v%d, a%d" % (TMP + j, A_ACC1 + 128 + 4 * j))
    for i in range(16):
        e("ds_write_b128 v%d, %s offset:%d" % (V_EXW, ar(A_ACC1 + 64 + 4 * i), i * 1024))
    e("ds_write_b128 v%d, %s offset:%d" % (V_EXW, vr(TMP), 16384))
    e("ds_write_b128 v%d, %s offset:%d" % (V_EXW, vr(TMP + 4), 17408))
    lane_fields()
    e("s_mul_i32 s%d, s%d, %d" % (S_T, S_KH, 32 * HP))
    e("s_lshl_b32 s%d, s%d, 8" % (S_T + 1, S_NH))
    e("v_mul_u32_u24 v16, %d, v16" % (4 * HP))
    e("v_lshl_add_u32 v17, v17, 4, s%d" % (S_T + 1))
    e("v_add3_u32 v%d, v16, v17, s%d" % (V_W0, S_T))
    e("v_add_u32 v%d, 0x%x, v17" % (V_W1, HB + 64 * HP))
    for i in range(4):
        e("v_mov_b32 v%d, 0" % (TT + i))
    e("s_waitcnt lgkmcnt(0)")
    e("s_nop 1")
    zero_acc(A_ACC2, 64, TT)
    e("s_barrier")
    e("ds_read_b128 %s, v%d offset:0" % (vr(P0), V_EXR))
    e("ds_read_b128 %s, v%d offset:1024" % (vr(P0 + 4), V_EXR))
    for sl in range(2):
        epi_gelu_slot(A_ACC1 + 32 * sl, sl * 8192, True,
                      lambda r, sl=sl: "ds_write_b128 v%d, %s offset:%d" % (V_W0, vr(OUTR + 4 * r), HB + (16 * sl + r) * HP),
                      sl == 0)
    e("s_waitcnt lgkmcnt(0)")
    for j in range(8):
        e("v_accvgpr_read_b32 v%d, a%d" % (TT + j, A_ACC1 + 128 + 4 * j))
    for i in range(0, 8, 2):
        e("v_pk_add_f32 %s, %s, %s" % (vr(P0 + i, 2), vr(P0 + i, 2), vr(TT + i, 2)))
    gelu_pairs([P0, P0 + 2, P0 + 4, P0 + 6], [TT, TT + 2, TT + 4, TT + 6])
    for i in range(4):
        e("v_cvt_pk_bf16_f32 v%d, v%d, v%d" % (P1 + i, TT + 2 * i, TT + 2 * i + 1))
    a.noins = 1
    e("s_mov_b32 exec_lo, 0xffff")
    e("s_mov_b32 exec_hi, 0")
    e("ds_write_b128 v%d, %s" % (V_W1, vr(P1)))
    e("s_mov_b64 exec, -1")
    a.noins = 0
    lane_fields()
    e("s_lshl_b32 s%d, s%d, 6" % (S_T, S_KH))
    e("v_mul_u32_u24 v17, %d, v17" % (2 * HP))
    e("v_lshl_add_u32 v17, v16, 4, v17")
    e("v_add_u32 v17, s%d, v17" % S_T)
    e("s_mul_i32 s%d, s%d, %d" % (S_T, S_KH, 32 * HP))
    e("v_add_u32 v%d, s%d, v17" % (V_A0, S_T))
    e("s_sub_u32 s%d, %d, s%d" % (S_T, 32 * HP, S_T))
    e("v_add_u32 v%d, s%d, v17" % (V_A1, S_T))
    e("v_lshlrev_b32 v16, 4, v%d" % V_LANE)
    e("s_lshl_b32 s%d, s%d, 13" % (S_T, S_W))
    e("s_add_u32 s%d, s%d, %d" % (S_T, S_T, EXB))
    e("v_add_u32 v%d, s%d, v16" % (V_EXW, S_T))
    e("s_xor_b32 s%d, s%d, 2" % (S_T, S_W))
    e("s_lshl_b32 s%d, s%d, 13" % (S_T, S_T))
    e("s_add_u32 s%d, s%d, %d" % (S_T, S_T, EXB))
    e("v_add_u32 v%d, s%d, v16" % (V_EXR, S_T))
    e("s_waitcnt lgkmcnt(0)")
    e("s_barrier")


def epi2():
    a.c("---- epilogue conv2 ----")
    flag_check()
    for i in range(8):
        e("ds_write_b128 v%d, %s offset:%d" % (V_EXW, ar(A_ACC2 + 32 + 4 * i), i * 1024))
    lane_fields()
    e("s_mul_i32 s%d, s%d, %d" % (S_T, S_KH, 16 * FP))
    e("s_lshl_b32 s%d, s%d, 8" % (S_T + 1, S_NH))
    e("v_mul_u32_u24 v16, %d, v16" % (4 * FP))
    e("v_lshl_add_u32 v17, v17, 4, s%d" % (S_T + 1))
    e("v_add3_u32 v%d, v16, v17, s%d" % (V_W0, S_T))
    for i in range(4):
        e("v_mov_b32 v%d, 0" % (TT + i))
    e("s_nop 1")
    zero_acc(A_ACC3, 64, TT)
    e("s_waitcnt lgkmcnt(0)")
    e("s_barrier")
    e("ds_read_b128 %s, v%d offset:0" % (vr(P0), V_EXR))
    e("ds_read_b128 %s, v%d offset:1024" % (vr(P0 + 4), V_EXR))
    epi_gelu_slot(A_ACC2, 0, False,
                  lambda r: "ds_write_b128 v%d, %s offset:%d" % (V_W0, vr(OUTR + 4 * r), FB + r * FP), False)
    lane_fields()
    e("s_lshl_b32 s%d, s%d, 6" % (S_T, S_KH))
    e("s_add_u32 s%d, s%d, %d" % (S_T, S_T, FB))
    e("v_mul_u32_u24 v17, %d, v17" % FP)
    e("v_lshl_add_u32 v17, v16, 4, v17")
    e("v_add_u32 v17, s%d, v17" % S_T)
    e("s_mul_i32 s%d, s%d, %d" % (S_T, S_KH, 16 * FP))
    e("v_add_u32 v%d, s%d, v17" % (V_A0, S_T))
    e("s_sub_u32 s%d, %d, s%d" % (S_T, 16 * FP, S_T))
    e("v_add_u32 v%d, s%d, v17" % (V_A1, S_T))
    e("s_waitcnt lgkmcnt(0)")
    e("s_barrier")


def f_areads(u, aset):
    return ["ds_read_b128 %s, v%d offset:%d" % (ar(aset + 4 * sl), V_A0 + sl, u * 128) for sl in range(2)]


def phase_f():
    a.c("---- fe ----")
    for s in f_areads(0, A_AF):
        e(s)
    prime(U_F)
    units = []
    for u in range(4):
        units.append(dict(unit=U_F + u, aset=[A_AF + 20 * (u & 1) + 4 * s for s in range(2)], last=(u == 3),
                          areads=(f_areads(u + 1, A_AF + 20 * ((u + 1) & 1)) if u < 3 else [])))
    emit_units(units, 2, lambda sl, j: A_ACC3 + (sl * 8 + j) * 4)


def epi3_body(raw):
    e("ds_read_b128 %s, v%d offset:0" % (vr(P0), V_EXR))
    e("ds_read_b128 %s, v%d offset:1024" % (vr(P0 + 4), V_EXR))
    for jp in range(4):
        P = P0 if (jp & 1) == 0 else P1
        Pn = P1 if (jp & 1) == 0 else P0
        if jp < 3:
            e("ds_read_b128 %s, v%d offset:%d" % (vr(Pn), V_EXR, (2 * jp + 2) * 1024))
            e("ds_read_b128 %s, v%d offset:%d" % (vr(Pn + 4), V_EXR, (2 * jp + 3) * 1024))
            e("s_waitcnt lgkmcnt(2)")
        else:
            e("s_waitcnt lgkmcnt(0)")
        add_own(P, A_ACC3 + 8 * jp)
        for i in range(4):
            e("v_cvt_pk_bf16_f32 v%d, v%d, v%d" % (TT + i, P + 2 * i, P + 2 * i + 1))
        for i in range(4):
            e("v_lshlrev_b32 v%d, 16, v%d" % (P + 2 * i, TT + i))
            e("v_and_b32 v%d, 0xffff0000, v%d" % (P + 2 * i + 1, TT + i))
        for i in range(8):
            e("v_mul_f32 v%d, s%d, v%d" % (P + i, S_SCL, P + i))
        if not raw:
            for i in range(4):
                e("v_max3_f32 v%d, |v%d|, |v%d|, v%d" % (V_W1, P + 2 * i, P + 2 * i + 1, V_W1))
        for jj in range(2):
            for r in range(4):
                d = OUTR + 4 * r + (jp & 1) * 2 + jj
                if raw:
                    e("v_mov_b32 v%d, v%d" % (d, P + 4 * jj + r))
                else:
                    e("v_exp_f32 v%d, v%d" % (d, P + 4 * jj + r))
        if jp & 1:
            e("s_nop 0")
            for r in range(4):
                e("ds_write_b128 v%d, %s offset:%d" % (V_W0, vr(OUTR + 4 * r), r * EAP + (jp >> 1) * 16))


def epi3():
    a.c("---- epilogue fe ----")
    e("s_nop 7")
    e("s_nop 1")
    for i in range(8):
        e("ds_write_b128 v%d, %s offset:%d" % (V_EXW, ar(A_ACC3 + 32 + 4 * i), i * 1024))
    lane_fields()
    e("s_mul_i32 s%d, s%d, %d" % (S_T, S_KH, 16 * EAP))
    e("s_add_u32 s%d, s%d, %d" % (S_T, S_T, EAB))
    e("s_lshl_b32 s%d, s%d, 9" % (S_T + 1, S_NH))
    e("v_mul_u32_u24 v16, %d, v16" % (4 * EAP))
    e("v_lshl_add_u32 v17, v17, 5, s%d" % (S_T + 1))
    e("v_add3_u32 v%d, v16, v17, s%d" % (V_W0, S_T))
    e("v_mov_b32 v%d, 0" % V_W1)
    e("s_waitcnt lgkmcnt(0)")
    e("s_barrier")
    epi3_body(False)
    e("v_mov_b32 v16, 0x42fa0000")
    e("v_cmp_nle_f32 vcc, v%d, v16" % V_W1)
    e("s_lshl_b32 s%d, s%d, 2" % (S_T, S_W))
    e("s_add_u32 s%d, s%d, %d" % (S_T, S_T, FLG))
    e("s_or_b32 s%d, s%d, vcc_lo" % (S_FLAG, S_FLAG))
    e("s_or_b32 s%d, s%d, vcc_hi" % (S_FLAG, S_FLAG))
    e("v_mov_b32 v16, s%d" % S_T)
    e("v_mov_b32 v17, s%d" % S_FLAG)
    e("ds_write_b32 v16, v17")
    e("s_waitcnt lgkmcnt(0)")
    e("s_barrier")
    e("v_mov_b32 v16, 0x%x" % FLG)
    e("ds_read_b128 %s, v16" % vr(TMP))
    e("s_waitcnt lgkmcnt(0)")
    e("v_or3_b32 v16, v%d, v%d, v%d" % (TMP, TMP + 1, TMP + 2))
    e("v_or_b32 v16, v16, v%d" % (TMP + 3))
    e("s_nop 0")
    e("v_readfirstlane_b32 s%d, v16" % S_FLAG)
    e("s_nop 3")
    e("s_cmp_eq_u32 s%d, 0" % S_FLAG)
    e("s_cbranch_scc1 L_fast1")
    a.noins = 1
    a.op("rare", 1)
    epi3_body(True)
    e("s_waitcnt vmcnt(0)")
    e("s_barrier")
    eb_dma(8192)
    e("buffer_load_dwordx4 v16, %s, 0 offen sc0 sc1 lds" % sr(SRD_WS, 4))
    e("buffer_load_dwordx4 v16, %s, 0 offen offset:1024 sc0 sc1 lds" % sr(SRD_WS, 4))
    e("s_waitcnt vmcnt(0) lgkmcnt(0)")
    e("s_barrier")
    a.op("rare", 0)
    a.lab("L_fast1")
    a.noins = 0


OACC = 64


def phase_wo():
    a.c("---- w_o fragments ----")
    e("v_lshlrev_b32 v16, 4, v%d" % V_LANE)
    e("s_lshl_b32 s%d, s%d, 13" % (S_T, S_W))
    e("v_add_u32 v16, s%d, v16" % S_T)
    for i in range(4):
        e("v_mov_b32 v%d, 0" % (60 + i))
    zl = ["v_mfma_f32_32x32x16_bf16 %s, %s, %s, 0" % (ar(OACC + 16 * n, 16), vr(60), vr(60)) for n in range(8)]
    for i in range(4):
        if i == 3:
            a.op("flush", len(UNITS) - 1)
            a.noins = 1
            e("s_cmp_ge_u32 s%d, 2" % S_W)
            e("s_cbranch_scc1 L_wo_skip")
        a.op("need", U_O + i)
        for n in range(8):
            for s in perms(U_O + i, n, TMP + 4 * n):
                e(s)
            if zl and i < 2 and (n & 1):
                e(zl.pop(0))
        for n in range(8):
            e("ds_write_b128 v16, %s offset:%d" % (vr(TMP + 4 * n), n * 1024))
        if i < 3:
            e("v_add_u32 v16, 0x8000, v16")
            e("s_waitcnt lgkmcnt(0)")
    a.lab("L_wo_skip")
    for i in (4, 5):
        a.op("need", U_O + i)
        for n in range(8):
            for s in perms(U_O + i, n, 192 + 32 * (i - 4) + 4 * n):
                e(s)
    for n in range(8):
        e("v_mfma_f32_32x32x16_bf16 %s, %s, %s, 0" % (vr(OACC + 16 * n, 16), vr(60), vr(60)))
    e("s_waitcnt lgkmcnt(0)")
    e("s_barrier")


EA = [20, 28]
EB = [36, 44]
JF = [52, 56]
V_EA, V_EB, V_B, V_ST = 4, 5, 6, 7
BB = [0, 32]
STG = [8, 60]


def out_valu(par, slow):
    ea, eb, jf = EA[par], EB[par], JF[par]
    v = []
    if os.environ.get("EXP") == "novalu":
        return ["v_cvt_pk_bf16_f32 v%d, v%d, v%d" % (jf + i, ea + 2 * i, ea + 2 * i + 1) for i in range(4)]
    if slow:
        for i in range(8):
            v.append("v_add_f32 v%d, v%d, v%d" % (ea + i, ea + i, eb + i))
        for i in range(8):
            v.append("v_exp_f32 v%d, v%d" % (ea + i, ea + i))
        for i in range(8):
            v.append("v_add_f32 v%d, 1.0, v%d" % (ea + i, ea + i))
    elif PK:
        for i in range(0, 8, 2):
            v.append("v_pk_fma_f32 %s, %s, %s, %s" % (vr(ea + i, 2), vr(ea + i, 2), vr(eb + i, 2), sr(S_ONE)))
    else:
        for i in range(8):
            v.append("v_fma_f32 v%d, v%d, v%d, 1.0" % (ea + i, ea + i, eb + i))
    for i in range(8):
        v.append("v_rcp_f32 v%d, v%d" % (ea + i, ea + i))
    if PK:
        for i in range(0, 8, 2):
            v.append("v_pk_fma_f32 %s, %s, %s, %s" % (vr(ea + i, 2), vr(ea + i, 2), vr(V_C0, 2), sr(S_ONE)))
    else:
        for i in range(8):
            v.append("v_fma_f32 v%d, v%d, -2.0, 1.0" % (ea + i, ea + i))
    for i in range(4):
        v.append("v_cvt_pk_bf16_f32 v%d, v%d, v%d" % (jf + i, ea + 2 * i, ea + 2 * i + 1))
    return v


def out_eloads(par, off):
    return ["ds_read_b128 %s, v%d offset:%d" % (vr(EA[par]), V_EA, off),
            "ds_read_b128 %s, v%d offset:%d" % (vr(EA[par] + 4), V_EA, off + 16),
            "ds_read_b128 %s, v%d offset:%d" % (vr(EB[par]), V_EB, off),
            "ds_read_b128 %s, v%d offset:%d" % (vr(EB[par] + 4), V_EB, off + 16)]


def out_bloads(par, off):
    if os.environ.get("EXP") == "halfb":
        return ["ds_read_b64 %s, v%d offset:%d" % (ar(BB[par] + 4 * n, 2), V_B, off + n * 1024) for n in range(8)]
    if os.environ.get("EXP") == "vb":
        return ["ds_read_b128 %s, v%d offset:%d" % (vr(192 + 32 * par + 4 * n), V_B, off + n * 1024) for n in range(8)]
    return ["ds_read_b128 %s, v%d offset:%d" % (ar(BB[par] + 4 * n), V_B, off + n * 1024) for n in range(8)]


def store_group(par, rstatic=None):
    st = STG[par]
    g = []
    if rstatic is None:
        g.append("s_set_gpr_idx_on s%d, 0x3" % S_R)
        g.append("s_nop 0")
        r = 0
    else:
        r = rstatic
    for i in range(4):
        g.append("v_cvt_pk_bf16_f32 v%d, v%d, v%d" % (st + i, OACC + 16 * (2 * i) + r, OACC + 16 * (2 * i + 1) + r))
    if rstatic is None:
        g.append("s_set_gpr_idx_off")
        g.append("s_add_u32 s%d, s%d, 1" % (S_R, S_R))
    g.append("buffer_store_dwordx4 %s, v%d, %s, s%d offen%s" % (vr(st), V_ST, sr(SRD_O, 4), S_SO, STMOD))
    return g


def out_kstep(par, bsrc, accf, valu, loads, stg=None, prev_b=8):
    gaps = [[] for _ in range(8)]
    nl = [2, 1, 2, 1, 2, 1, 2, 1]
    li = 0
    issued = [0] * 9
    for n in range(8):
        for _ in range(nl[n]):
            if li < len(loads):
                gaps[n].append(loads[li]); li += 1
        issued[n + 1] = li
    budget = [24 - 4 * len(gaps[n]) for n in range(8)]
    if stg:
        gaps[3] = gaps[3] + list(stg)
        budget[3] = 0
    vi = 0
    for n in range(8):
        c = 0
        while vi < len(valu) and (c < budget[n] or n == 7):
            gaps[n].append(valu[vi]); c += a.cost(valu[vi]); vi += 1
    for n in range(8):
        if n % 2 == 0:
            if prev_b:
                e("s_waitcnt lgkmcnt(%d)" % (prev_b - (n + 2) + issued[n]))
            elif n == 0:
                e("s_waitcnt lgkmcnt(0)")
            if n == 0:
                e("s_nop 0")
        d = accf(n)
        e("v_mfma_f32_32x32x16_bf16 %s, %s, %s, %s" % (d, vr(JF[par]), bsrc(n), d))
        for s in gaps[n]:
            e(s)


def out_pass(tag, slow, second):
    accf = (lambda n: ar(OACC + 16 * n, 16)) if second else (lambda n: vr(OACC + 16 * n, 16))
    e("v_lshrrev_b32 v16, 5, v%d" % V_LANE)
    e("v_and_b32 v17, 31, v%d" % V_LANE)
    e("v_mul_u32_u24 v%d, %d, v17" % (V_EA, EAP))
    e("v_lshl_add_u32 v%d, v16, 5, v%d" % (V_EA, V_EA))
    e("v_add_u32 v%d, 0x%x, v%d" % (V_EA, EAB, V_EA))
    e("s_lshl_b32 s%d, s%d, 11" % (S_T, S_W))
    e("s_add_u32 s%d, s%d, %d" % (S_T, S_T, EBB + (1024 if second else 0)))
    e("v_lshlrev_b32 v%d, 5, v16" % V_EB)
    e("v_add_u32 v%d, s%d, v%d" % (V_EB, S_T, V_EB))
    e("v_lshlrev_b32 v%d, 4, v%d" % (V_B, V_LANE))
    for s in out_eloads(0, 0) + out_eloads(1, 64):
        e(s)
    e("s_waitcnt lgkmcnt(4)")
    for s in out_bloads(0, 0):
        e(s)
    for s in out_valu(0, slow):
        e(s)
    e("s_mov_b32 s%d, 0" % S_CNT)
    if second:
        e("s_mov_b32 s%d, 0" % S_R)
        e("s_mov_b32 s%d, s%d" % (S_SO, S_OBASE))
    lab = "L_ok_%s%d" % (tag, int(second))
    a.lab(lab)
    sg0 = sg1 = None
    if second:
        sg0 = store_group(0) + ["s_add_u32 s%d, s%d, 4096" % (S_SO, S_SO)]
        sg1 = store_group(1) + ["s_and_b32 s%d, s%d, 1" % (S_T, S_CNT), "s_lshl_b32 s%d, s%d, 14" % (S_T, S_T),
                                "s_add_u32 s%d, s%d, s%d" % (S_SO, S_SO, S_T), "s_add_u32 s%d, s%d, 4096" % (S_SO, S_SO)]
    out_kstep(0, lambda n: ar(BB[0] + 4 * n), accf, out_valu(1, slow), out_eloads(0, 128) + out_bloads(1, 8192), sg0)
    out_kstep(1, lambda n: ar(BB[1] + 4 * n), accf, out_valu(0, slow), out_eloads(1, 192) + out_bloads(0, 16384), sg1)
    e("v_add_u32 v%d, 0x80, v%d" % (V_EA, V_EA))
    e("v_add_u32 v%d, 0x80, v%d" % (V_EB, V_EB))
    e("v_add_u32 v%d, 0x4000, v%d" % (V_B, V_B))
    e("s_add_u32 s%d, s%d, 1" % (S_CNT, S_CNT))
    e("s_cmp_lt_u32 s%d, 7" % S_CNT)
    e("s_cbranch_scc1 %s" % lab)
    if second:
        sg0 = store_group(0, 14) + ["s_add_u32 s%d, s%d, 4096" % (S_SO, S_SO)]
        sg1 = store_group(1, 15)
    out_kstep(0, lambda n: vr(192 + 4 * n), accf, out_valu(1, slow), [], sg0, 0)
    out_kstep(1, lambda n: vr(224 + 4 * n), accf, [], [], sg1, 0)
    if not second:
        e("s_nop 7")


def phase_out(slow):
    tag = "s" if slow else "f"
    a.c("---- out phase (%s) ----" % tag)
    e("v_mov_b32 v%d, -2.0" % V_C0)
    e("v_mov_b32 v%d, -2.0" % (V_C0 + 1))
    e("v_lshrrev_b32 v16, 5, v%d" % V_LANE)
    e("v_and_b32 v17, 31, v%d" % V_LANE)
    e("v_lshlrev_b32 v%d, 14, v16" % V_ST)
    e("v_lshl_add_u32 v%d, v17, 4, v%d" % (V_ST, V_ST))
    e("s_mul_i32 s%d, s%d, 4000" % (S_T, S_B))
    e("s_add_u32 s%d, s%d, s%d" % (S_T, S_T, S_T0))
    e("s_lshl_b32 s%d, s%d, 12" % (S_OBASE, S_T))
    e("s_lshl_b32 s%d, s%d, 10" % (S_T, S_W))
    e("s_add_u32 s%d, s%d, s%d" % (S_OBASE, S_OBASE, S_T))
    out_pass(tag, slow, False)
    if not slow:
        stamp()
    out_pass(tag, slow, True)
    if not slow:
        stamp()
    e("s_nop 7")
    e("s_nop 3")
    e("s_add_u32 s%d, s%d, 512" % (S_T, S_OBASE))
    stq = [20, 36]
    for r in range(16):
        tq = stq[r & 1]
        st = tq + 8 + 4 * ((r >> 1) & 1)
        t = 8 * (r >> 2) + (r & 3)
        for n in range(8):
            e("v_accvgpr_read_b32 v%d, a%d" % (tq + n, OACC + 16 * n + r))
        for i in range(4):
            e("v_cvt_pk_bf16_f32 v%d, v%d, v%d" % (st + i, tq + 2 * i, tq + 2 * i + 1))
        e("s_add_u32 s%d, s%d, %d" % (S_SO, S_T, t * 4096))
        e("buffer_store_dwordx4 %s, v%d, %s, s%d offen%s" % (vr(st), V_ST, sr(SRD_O, 4), S_SO, STMOD))
    if not slow:
        stamp()
        stamp_store()
    e("s_endpgm")


def x_item(sl_, i):
    return ["s_add_u32 s94, s92, %d" % (sl_ * 128 + i * 16384),
            "s_add_u32 s95, s93, %d" % (sl_ * XS + i * 4 * XBP),
            "v_add_u32 v%d, s94, v%d" % (V_W0, V_XL),
            "s_mov_b32 m0, s95",
            "s_nop 0",
            "buffer_load_dwordx4 v%d, %s, 0 offen nt lds" % (V_W0, sr(SRD_X, 4))]


def w_item(i):
    if i == 0:
        return ["s_lshr_b32 s94, s2, 3", "s_and_b32 s94, s94, 31", "s_lshl_b32 s94, s94, 2",
                "s_add_u32 s94, s94, s%d" % S_W,
                "v_lshlrev_b32 v%d, 4, v%d" % (V_W1, V_LANE),
                "s_mul_i32 s95, s94, 3072",
                "v_add_u32 v%d, s95, v%d" % (V_W0, V_W1),
                "global_load_dwordx4 a[200:203], v%d, %s" % (V_W0, sr(S_W2))]
    if i < 3:
        return ["global_load_dwordx4 a[200:203], v%d, %s offset:%d" % (V_W0, sr(S_W2), i * 1024)]
    if i == 3:
        return ["s_lshl_b32 s95, s94, 10", "v_add_u32 v%d, s95, v%d" % (V_W0, V_W1),
                "global_load_dwordx4 a[200:203], v%d, %s" % (V_W0, sr(S_WF))]
    return ["global_load_dwordx4 a[200:203], v%d, %s" % (V_W0, sr(S_WO))]


def schedule(entries):
    out = []
    pend = []
    for u in range(len(UNITS)):
        for i in range(8):
            pend.append(("u", u, i))
        for si, pos in enumerate(XPOS):
            if u == pos:
                pend += [("x", si + 1, i) for i in range(4)]
        if u == WUPOS and WARM:
            pend += [("w", 0, i) for i in range(5)]
    pi = 0
    freed = set()
    vcount = 0
    last = {}
    marks = {}
    t = 0
    next_t = 0
    rare = 0
    forced = {}

    def can(it):
        return it[0] != "u" or it[1] < 6 or (it[1] - 6) in freed

    def issue():
        nonlocal pi, vcount, t, next_t
        k, u, i = pend[pi]
        if k == "u":
            sb, vo, cst = UNITS[u]
            if i == 0:
                out.append("  v_add_u32 v%d, 0x%x, v%d" % (V_LD, cst, vo))
                t += 4
            out.append("  global_load_dwordx4 %s, v%d, %s offset:%d" % (vr(slot(u) + 4 * i), V_LD, sr(sb), i * 512))
            vcount += 1
            last[u] = vcount
        else:
            for s_ in (x_item(u, i) if k == "x" else w_item(i)):
                out.append("  " + s_)
            vcount += 1
            if k == "x":
                marks["x%d" % u] = vcount
        pi += 1
        t += 8
        next_t = max(next_t, t - 8) + (PACE0 if pi < NFAST else PACE)

    for k, arg, cost, noins in entries:
        if not noins and k in ("i",):
            while pi < len(pend) and t >= next_t and can(pend[pi]):
                issue()
        if k == "i":
            out.append("  " + arg)
            if not rare:
                t += cost
        elif k == "v":
            out.append("  " + arg)
            vcount += 1
            t += PACE
            next_t = max(next_t, t)
        elif k == "l":
            out.append(arg + ":")
        elif k == "c":
            out.append("  ; %s  [t=%d, loads issued %d]" % (arg, t, pi))
        elif k == "free":
            freed.add(arg)
        elif k == "rare":
            rare = arg
        elif k in ("need", "flush"):
            while pi < len(pend) and not (pend[pi][0] == "u" and pend[pi][1] > arg) and (arg not in last or pend[pi][0] == "u"):
                assert can(pend[pi]), ("slot not free", pend[pi], arg)
                if k == "need":
                    forced[arg] = forced.get(arg, 0) + 1
                t = max(t, next_t)
                issue()
            if k == "need":
                n = vcount - last[arg]
                out.append("  s_waitcnt vmcnt(%d)" % min(n, 63))
        elif k == "mark":
            marks[arg] = vcount
        elif k == "needmark":
            while arg not in marks or (pi < len(pend) and pend[pi][0] == "x" and "x%d" % pend[pi][1] == arg):
                t = max(t, next_t)
                issue()
            out.append("  s_waitcnt vmcnt(%d)" % min(vcount - marks[arg], 63))
    assert pi == len(pend)
    sys.stderr.write("est front cycles %d, forced: %s\n" % (t, forced))
    return out


def main():
    prologue()
    stamp()
    a.c("---- conv1 ----")
    conv_phase(U_C1, 5, lambda sl, j: A_ACC1 + (sl * 8 + j) * 4, c1_areads, True)
    stamp()
    epi1()
    stamp()
    a.c("---- conv2 ----")
    flag_issue()
    conv_phase(U_C2, 2, lambda sl, j: A_ACC2 + (sl * 8 + j) * 4, c2_areads, False)
    stamp()
    epi2()
    stamp()
    phase_f()
    stamp()
    epi3()
    stamp()
    phase_wo()
    stamp()
    a.noins = 1
    front = schedule(a.l)
    a.l = []
    e("s_cmp_lg_u32 s%d, 0" % S_FLAG)
    e("s_cbranch_scc1 L_slow")
    phase_out(False)
    a.lab("L_slow")
    phase_out(True)
    producer()
    a.lab("L_end")
    e("s_endpgm")
    for _ in range(300):
        e("s_endpgm")
    back = []
    for k, arg, cost, noins in a.l:
        back.append(arg + ":" if k == "l" else ("  ; " + arg if k == "c" else "  " + arg))

    hdr = open("standalone__seq2seq_rnn_t_joint__speech.s.ref").read().split("\n")
    top = [l for l in hdr if l.startswith(";") and "@launch" not in l and "Override" not in l and "grid=ceil" not in l]
    out = "\n".join(top) + "\n"
    out += "; @launch grid=(252,1,1) block=(256,1,1) lds=%d\n" % LDS_TOTAL
    out += '.amdgcn_target "amdgcn-amd-amdhsa--gfx950"\n.text\n.globl %s\n.p2align 8\n.type %s,@function\n%s:\n' % (KN, KN, KN)
    out += "\n".join(front + back) + "\n"
    out += """.section .rodata,"a"
.p2align 6
.amdhsa_kernel %s
  .amdhsa_next_free_vgpr 512
  .amdhsa_next_free_sgpr 102
  .amdhsa_accum_offset 256
  .amdhsa_group_segment_fixed_size 0
  .amdhsa_kernarg_size 80
  .amdhsa_user_sgpr_count 2
  .amdhsa_user_sgpr_kernarg_segment_ptr 1
  .amdhsa_system_sgpr_workgroup_id_x 1
.end_amdhsa_kernel
""" % KN
    dst = sys.argv[1] if len(sys.argv) > 1 else "standalone__seq2seq_rnn_t_joint__speech.s"
    open(dst, "w").write(out)
    if PROF:
        sys.stderr.write("stamps %d\n" % NSTAMP[0])


main()
```

```python
import sys, os, struct

DEBUG = os.environ.get("DBG", "")
PROF = os.environ.get("PROF", "")
PACE = int(os.environ.get("PACE", "72"))
PACE0 = int(os.environ.get("PACE0", "30"))
NFAST = int(os.environ.get("NFAST", "60"))
PK = int(os.environ.get("PK", "0"))
STMOD = os.environ.get("STMOD", " nt")
CODEPF = int(os.environ.get("CODEPF", "1"))
WUPOS = int(os.environ.get("WUPOS", "8"))
XPOS = [int(v) for v in os.environ.get("XPOS", "2,5,7").split(",")]
XS2 = int(os.environ.get("XS2", "0"))
XS3 = int(os.environ.get("XS3", "1"))
XWU = int(os.environ.get("XWU", "3"))
WARM = int(os.environ.get("WARM", "1"))
NSTAMP = [0]

KN = "standalone__seq2seq_rnn_t_joint__speech_kernel"

XBP = 1152
XS = 17 * XBP
XB = 0
EXB = 78848
EX1S = 18432
HB = 0
HP = 528
FB = 36864
FP = 544
FLG = 114688
EAB = 122368
EAP = 1040
EBB = 155648
LDS_TOTAL = 163840

V_OFF16, V_OFF32, V_LD = 1, 2, 3
V_A0, V_A1, V_A2 = 4, 5, 6
V_EXW, V_EXR = 7, 8
V_W0, V_W1 = 9, 10
V_MASK = 11
V_C0 = 12
V_LANE = 14
V_T0, V_T1 = 15, 16
V_OFF32W = 18
TMP = 20
RING = 64

S_X, S_W1, S_W2, S_G, S_WF, S_WG, S_WO, S_OUT = 4, 6, 8, 10, 12, 14, 16, 18
SRD_X, SRD_G, SRD_O = 20, 24, 28
S_W, S_NH, S_KH, S_B, S_T0, S_CNT = 56, 57, 58, 59, 60, 61
S_SELLO, S_SELHI = 62, 63
S_C1 = 64
S_ONE = 66
S_FLAG = 68
S_T = 69
S_SCL = 76
S_OBASE = 79
S_WSP = 80
S_SO = 82
S_R = 83
S_DBG = 84
SRD_WS = 88
S_TILE = 86

A_ACC1 = 0
A_AF = 160
A_ACCG = 200
A_GF = 232
A_ACC2 = 64
A_ACC3 = 0


def f32bits(x):
    return struct.unpack("<I", struct.pack("<f", x))[0]


LOG2E = 1.4426950408889634
GC0 = -2.0 * 0.7978845608028654 * LOG2E
GC1 = GC0 * 0.044715
TSC = 2.0 * LOG2E


class A:
    def __init__(self):
        self.l = []
        self.noins = 0

    def cost(self, s):
        op = s.split()[0]
        if op.startswith("v_mfma_f32_16x16"):
            return 10
        if op.startswith("v_mfma"):
            return 32
        if op in ("v_exp_f32", "v_rcp_f32"):
            return 8
        if op.startswith("v_"):
            return 4
        if op.startswith("ds_write_b128"):
            return 12
        if op.startswith("ds_"):
            return 4
        if op.startswith("buffer_") or op.startswith("global_"):
            return 8
        if op == "s_barrier":
            return 60
        if op == "s_nop":
            return 4 * (int(s.split()[1]) + 1)
        return 2

    def e(self, s):
        self.l.append(["i", s, self.cost(s), self.noins])

    def vm(self, s):
        self.l.append(["v", s, 8, 1])

    def lab(self, s):
        self.l.append(["l", s, 0, 1])

    def c(self, s):
        self.l.append(["c", s, 0, self.noins])

    def op(self, kind, arg):
        self.l.append([kind, arg, 0, self.noins])


a = A()
e = a.e


def vr(b, n=4):
    return "v[%d:%d]" % (b, b + n - 1)


def ar(b, n=4):
    return "a[%d:%d]" % (b, b + n - 1)


def sr(b, n=2):
    return "s[%d:%d]" % (b, b + n - 1)


def slot(u):
    return RING + 32 * (u % 6)


def conv_off(it, u):
    return (u >> 1) * 131072 + (u & 1) * 32768 + it * 65536


UNITS = []
for k in range(12):
    UNITS.append((S_W1, V_OFF16, (k % 3) * 131072 + (k // 3) * 32768))
for k in range(12):
    UNITS.append((S_W2, V_OFF16, (k % 3) * 131072 + (k // 3) * 32768))
for u in range(4):
    UNITS.append((S_WF, V_OFF16, u * 32768))
for i in range(4):
    UNITS.append((S_WO, V_OFF32W, i * 32768))
UNITS.append((S_WO, V_OFF32, 14 * 8192))
UNITS.append((S_WO, V_OFF32, 15 * 8192))
U_C1, U_C2, U_F, U_O = 0, 12, 24, 28


def perms(unit, j, dst):
    R = slot(unit)
    d = j >> 1
    sel = S_SELHI if (j & 1) else S_SELLO
    return ["v_perm_b32 v%d, v%d, v%d, s%d" % (dst + p, R + 4 * (2 * p + 1) + d, R + 4 * (2 * p) + d, sel)
            for p in range(4)]


FBUF = TMP


def prime(unit):
    a.op("need", unit)
    for j in (0, 1):
        for s in perms(unit, j, FBUF + 4 * j):
            e(s)


def emit_units(units, nM, acc):
    for ui, u in enumerate(units):
        for s in u.get("pre", []):
            if isinstance(s, tuple) and s[0] == "call":
                s[1]()
            elif isinstance(s, tuple):
                a.op(s[0], s[1])
            else:
                e(s)
        e("s_waitcnt lgkmcnt(0)")
        areads = list(u.get("areads", []))
        un = u["unit"]
        for j in range(8):
            fill = []
            jt = j + 2
            if jt < 8:
                fill += perms(un, jt, FBUF + 4 * (jt & 3))
                if jt == 7:
                    fill.append(("free", un))
            elif not u["last"]:
                if j == 6:
                    fill.append(("need", un + 1))
                fill += perms(un + 1, jt - 8, FBUF + 4 * (jt & 3))
            if areads and j < 6:
                fill.append(areads.pop(0))
            fb = FBUF + 4 * (j & 3)
            k = 0
            for sl in range(nM):
                d = acc(sl, j)
                e("v_mfma_f32_16x16x32_bf16 %s, %s, %s, %s" % (ar(d), ar(u["aset"][sl]), vr(fb), ar(d)))
                take = 2 if sl < nM - 1 else len(fill) - k
                for s in fill[k:k + take]:
                    if isinstance(s, tuple):
                        a.op(s[0], s[1])
                    else:
                        e(s)
                k += take
        assert not areads


def zero_acc(base, n, zreg):
    for b in range(base, base + n, 16):
        e("v_mfma_f32_32x32x16_bf16 %s, %s, %s, 0" % (ar(b, 16), vr(zreg), vr(zreg)))


def gelu_pairs(xs, ts):
    for x, t in zip(xs, ts):
        e("v_pk_mul_f32 %s, %s, %s" % (vr(t, 2), vr(x, 2), vr(x, 2)))
    for x, t in zip(xs, ts):
        e("v_pk_fma_f32 %s, %s, %s, %s" % (vr(t, 2), vr(t, 2), sr(S_C1), vr(V_C0, 2)))
    for x, t in zip(xs, ts):
        e("v_pk_mul_f32 %s, %s, %s" % (vr(t, 2), vr(x, 2), vr(t, 2)))
    for x, t in zip(xs, ts):
        e("v_exp_f32 v%d, v%d" % (t, t))
        e("v_exp_f32 v%d, v%d" % (t + 1, t + 1))
    for x, t in zip(xs, ts):
        e("v_pk_add_f32 %s, %s, %s" % (vr(t, 2), vr(t, 2), sr(S_ONE)))
    for x, t in zip(xs, ts):
        e("v_rcp_f32 v%d, v%d" % (t, t))
        e("v_rcp_f32 v%d, v%d" % (t + 1, t + 1))
    for x, t in zip(xs, ts):
        e("v_pk_mul_f32 %s, %s, %s" % (vr(t, 2), vr(x, 2), vr(t, 2)))


def stamp():
    if not PROF:
        return
    i = NSTAMP[0]
    NSTAMP[0] += 1
    assert i < 60
    e("s_memtime s[98:99]")
    e("s_waitcnt lgkmcnt(0)")
    e("v_writelane_b32 v19, s98, %d" % i)


def stamp_store():
    if not PROF:
        return
    e("s_waitcnt vmcnt(0)")
    stamp()
    e("s_lshl_b32 s98, s2, 10")
    e("s_lshl_b32 s99, s%d, 8" % S_W)
    e("s_add_u32 s98, s98, s99")
    e("s_add_u32 s98, s98, 0x10000")
    e("v_lshlrev_b32 v17, 2, v%d" % V_LANE)
    e("v_add_u32 v17, s98, v17")
    e("global_store_dword v17, v19, %s" % sr(S_WSP))


V_XL = 13


def x_slice(sl_):
    sv = a.noins
    a.noins = 1
    for i in range(4):
        e("s_add_u32 s94, s92, %d" % (sl_ * 128 + i * 16384))
        e("s_add_u32 s95, s93, %d" % (sl_ * XS + i * 4 * XBP))
        e("v_add_u32 v%d, s94, v%d" % (V_W0 + (i & 1), V_XL))
        e("s_mov_b32 m0, s95")
        e("s_nop 0")
        a.vm("buffer_load_dwordx4 v%d, %s, 0 offen nt lds" % (V_W0 + (i & 1), sr(SRD_X, 4)))
    a.op("mark", "x%d" % sl_)
    a.noins = sv


def prologue():
    a.noins = 1
    e("s_cmp_ge_u32 s2, 252")
    e("s_cbranch_scc1 L_end")
    stamp()
    e("s_load_dwordx16 s[4:19], s[0:1], 0")
    e("s_load_dwordx2 %s, s[0:1], 64" % sr(S_DBG))
    e("s_load_dwordx2 %s, s[0:1], 72" % sr(S_WSP))
    e("v_lshrrev_b32 v20, 6, v0")
    e("v_and_b32 v%d, 63, v0" % V_LANE)
    e("s_sub_u32 s%d, s2, 2" % S_TILE)
    e("s_cmp_ge_u32 s%d, 125" % S_TILE)
    e("v_readfirstlane_b32 s%d, v20" % S_W)
    e("s_cselect_b32 s%d, 1, 0" % S_B)
    e("s_mul_i32 s%d, s%d, 125" % (S_T, S_B))
    e("s_sub_u32 s%d, s%d, s%d" % (S_T0, S_TILE, S_T))
    e("s_lshl_b32 s%d, s%d, 5" % (S_T0, S_T0))
    e("s_and_b32 s%d, s%d, 1" % (S_NH, S_W))
    e("s_lshr_b32 s%d, s%d, 1" % (S_KH, S_W))
    if CODEPF:
        e("s_getpc_b64 s[96:97]")
        a.lab("L_pc")
        e("s_lshr_b32 s94, s2, 3")
        e("s_and_b32 s94, s94, 31")
        e("s_lshl_b32 s94, s94, 2")
        e("s_add_u32 s94, s94, s%d" % S_W)
        e("s_min_u32 s94, s94, (L_end - L_pc) / 1024")
        e("s_lshl_b32 s94, s94, 10")
        e("v_lshlrev_b32 v21, 4, v%d" % V_LANE)
        e("v_add_u32 v21, s94, v21")
        a.vm("global_load_dwordx4 a[200:203], v21, s[96:97]")
    e("s_mov_b32 s%d, 0x05040100" % S_SELLO)
    e("s_mov_b32 s%d, 0x07060302" % S_SELHI)
    e("s_mov_b32 s%d, 0x%x" % (S_SCL, f32bits(TSC)))
    e("v_lshrrev_b32 v21, 4, v%d" % V_LANE)
    e("v_and_b32 v22, 15, v%d" % V_LANE)
    e("v_lshrrev_b32 v23, 5, v%d" % V_LANE)
    e("v_and_b32 v24, 31, v%d" % V_LANE)
    e("s_lshl_b32 s%d, s%d, 8" % (S_T, S_NH))
    e("s_lshl_b32 s%d, s%d, 14" % (S_T + 1, S_KH))
    e("s_add_u32 s%d, s%d, s%d" % (S_T, S_T, S_T + 1))
    e("v_lshlrev_b32 v25, 12, v21")
    e("v_lshl_add_u32 v25, v22, 4, v25")
    e("v_add_u32 v%d, s%d, v25" % (V_OFF16, S_T))
    e("v_lshrrev_b32 v26, 3, v%d" % V_LANE)
    e("v_and_b32 v25, 6, v26")
    e("v_and_b32 v27, 7, v%d" % V_LANE)
    e("v_xor_b32 v25, v25, v27")
    e("v_lshlrev_b32 v26, 9, v26")
    e("v_lshl_add_u32 v26, v25, 4, v26")
    e("v_lshlrev_b32 v25, 4, v%d" % V_LANE)
    e("s_mul_i32 s%d, s%d, %d" % (S_T, S_W, EX1S))
    e("s_add_u32 s%d, s%d, %d" % (S_T, S_T, EXB))
    e("v_add_u32 v%d, s%d, v25" % (V_EXW, S_T))
    e("s_xor_b32 s%d, s%d, 2" % (S_T + 1, S_W))
    e("s_mul_i32 s%d, s%d, %d" % (S_T, S_T + 1, EX1S))
    e("s_add_u32 s%d, s%d, %d" % (S_T, S_T, EXB))
    e("v_add_u32 v%d, s%d, v25" % (V_EXR, S_T))
    e("s_cmp_lt_u32 s2, 2")
    e("s_cbranch_scc1 L_prod")
    e("s_lshl_b32 s%d, s%d, 11" % (S_T, S_T0))
    e("s_sub_u32 s%d, s%d, 1536" % (S_T, S_T))
    e("s_lshl_b32 s%d, s%d, 7" % (S_T + 3, S_W))
    e("s_add_u32 s%d, s%d, s%d" % (S_T + 3, S_T + 3, S_T))
    e("s_add_u32 s%d, s%d, 65536" % (S_T + 3, S_T + 3))
    e("s_mul_i32 s%d, s%d, %d" % (S_T + 4, S_W, XS))
    e("s_add_u32 s%d, s%d, %d" % (S_T + 4, S_T + 4, 16 * XBP))
    e("s_lshl_b32 s%d, s%d, 12" % (S_T + 1, S_W))
    e("s_add_u32 s%d, s%d, s%d" % (S_T, S_T, S_T + 1))
    e("s_mul_i32 s%d, s%d, %d" % (S_T + 1, S_W, XBP))
    e("s_mul_i32 s%d, s%d, 8192000" % (S_T + 2, S_B))
    e("s_waitcnt lgkmcnt(0)")
    e("s_add_u32 s%d, s%d, s%d" % (SRD_X, S_X, S_T + 2))
    e("s_addc_u32 s%d, s%d, 0" % (SRD_X + 1, S_X + 1))
    e("s_and_b32 s%d, s%d, 0xffff" % (SRD_X + 1, SRD_X + 1))
    e("s_mov_b32 s%d, 8192000" % (SRD_X + 2))
    e("s_mov_b32 s%d, 0x00020000" % (SRD_X + 3))
    stamp()
    e("v_add_u32 v27, s%d, v26" % (S_T + 3))
    e("s_mov_b32 m0, s%d" % (S_T + 4))
    e("s_nop 0")
    a.vm("buffer_load_dwordx4 v27, %s, 0 offen nt lds" % sr(SRD_X, 4))
    e("s_mov_b32 s92, s%d" % S_T)
    e("s_mov_b32 s93, s%d" % (S_T + 1))
    e("v_mov_b32 v%d, v26" % V_XL)
    x_slice(0)
    a.op("flush", 0)
    stamp()
    a.noins = 0
    e("s_mov_b32 s%d, s%d" % (SRD_O, S_OUT))
    e("s_and_b32 s%d, s%d, 0xffff" % (SRD_O + 1, S_OUT + 1))
    e("s_mov_b32 s%d, 32768000" % (SRD_O + 2))
    e("s_mov_b32 s%d, 0x00020000" % (SRD_O + 3))
    e("s_mov_b32 s%d, s%d" % (SRD_WS, S_WSP))
    e("s_and_b32 s%d, s%d, 0xffff" % (SRD_WS + 1, S_WSP + 1))
    e("s_mov_b32 s%d, 32768" % (SRD_WS + 2))
    e("s_mov_b32 s%d, 0x00020000" % (SRD_WS + 3))
    e("s_mov_b32 s%d, 0x%x" % (S_C1, f32bits(GC1)))
    e("s_mov_b32 s%d, 0x%x" % (S_C1 + 1, f32bits(GC1)))
    e("s_mov_b32 s%d, 1.0" % S_ONE)
    e("s_mov_b32 s%d, 1.0" % (S_ONE + 1))
    e("s_mov_b32 s%d, 0" % S_FLAG)
    e("v_lshlrev_b32 v25, 12, v23")
    e("v_lshl_add_u32 v%d, v24, 4, v25" % V_OFF32)
    e("s_lshl_b32 s%d, s%d, 13" % (S_T, S_W))
    e("v_add_u32 v%d, s%d, v%d" % (V_OFF32W, S_T, V_OFF32))
    for i in range(4):
        e("v_mov_b32 v%d, 0" % (28 + i))
    e("s_nop 1")
    zero_acc(A_ACC1, 160, 28)
    e("s_or_b32 s%d, s%d, s%d" % (S_T, S_T0, S_KH))
    e("v_or_b32 v25, s%d, v21" % S_T)
    e("v_cmp_eq_u32 vcc, 0, v25")
    e("v_mov_b32 v25, 1.0")
    e("s_nop 1")
    e("v_cndmask_b32 v%d, v25, 0, vcc" % V_MASK)
    e("s_lshl_b32 s%d, s%d, 2" % (S_T, S_KH))
    e("v_add_u32 v25, s%d, v21" % S_T)
    e("s_mul_i32 s%d, s%d, 9216" % (S_T, S_KH))
    e("s_sub_u32 s%d, 9216, s%d" % (S_T + 1, S_T))
    for cls, dst in ((0, V_A0), (1, 15)):
        e("v_add_u32 v26, %d, v22" % cls)
        e("v_and_b32 v27, 3, v26")
        e("v_lshlrev_b32 v27, 1, v27")
        e("v_lshrrev_b32 v26, 2, v26")
        e("v_mul_u32_u24 v26, %d, v26" % XBP)
        e("v_lshl_add_u32 v26, v27, 7, v26")
        e("v_xor_b32 v27, v27, v25")
        e("v_lshl_add_u32 v26, v27, 4, v26")
        e("v_add_u32 v%d, s%d, v26" % (dst, S_T))
        e("v_add_u32 v%d, s%d, v26" % (dst + 1, S_T + 1))
        e("v_add_u32 v%d, 0x%x, v26" % (dst + 2, 18432))
    a.op("needmark", "x0")
    e("s_barrier")


def warmup():
    if not WARM:
        return
    e("s_lshr_b32 s94, s2, 3")
    e("s_and_b32 s94, s94, 31")
    e("s_lshl_b32 s94, s94, 2")
    e("s_add_u32 s94, s94, s%d" % S_W)
    e("v_lshlrev_b32 v%d, 4, v%d" % (V_W1, V_LANE))
    e("s_mul_i32 s95, s94, 3072")
    e("v_add_u32 v%d, s95, v%d" % (V_W0, V_W1))
    for i in range(3):
        a.vm("global_load_dwordx4 a[200:203], v%d, %s offset:%d" % (V_W0, sr(S_W2), i * 1024))
    e("s_lshl_b32 s95, s94, 10")
    e("v_add_u32 v%d, s95, v%d" % (V_W0, V_W1))
    a.vm("global_load_dwordx4 a[200:203], v%d, %s" % (V_W0, sr(S_WF)))
    a.vm("global_load_dwordx4 a[200:203], v%d, %s" % (V_W0, sr(S_WO)))


def producer():
    a.lab("L_prod")
    e("s_lshl_b32 s%d, s2, 12" % S_T)
    e("s_lshl_b32 s%d, s%d, 6" % (S_T + 1, S_KH))
    e("s_add_u32 s%d, s%d, s%d" % (S_T, S_T, S_T + 1))
    e("v_lshlrev_b32 v25, 9, v22")
    e("v_lshl_add_u32 v25, v21, 4, v25")
    e("v_add_u32 v25, s%d, v25" % S_T)
    e("s_waitcnt lgkmcnt(0)")
    e("s_mov_b32 s%d, s%d" % (SRD_G, S_G))
    e("s_and_b32 s%d, s%d, 0xffff" % (SRD_G + 1, S_G + 1))
    e("s_mov_b32 s%d, 8192" % (SRD_G + 2))
    e("s_mov_b32 s%d, 0x00020000" % (SRD_G + 3))
    for u in range(4):
        e("buffer_load_dwordx4 %s, v25, %s, 0 offen offset:%d" % (ar(A_GF + 4 * u), sr(SRD_G, 4), u * 128))
    for u in range(4):
        e("v_add_u32 v%d, 0x%x, v%d" % (V_LD, u * 32768, V_OFF16))
        for i in range(8):
            e("global_load_dwordx4 %s, v%d, %s offset:%d" % (vr(slot(u) + 4 * i), V_LD, sr(S_WG), i * 512))
    for i in range(4):
        e("v_mov_b32 v%d, 0" % (28 + i))
    e("s_nop 1")
    zero_acc(A_ACCG, 32, 28)
    e("s_waitcnt vmcnt(0)")
    for u in range(4):
        for j in range(8):
            for s_ in perms(u, j, FBUF + 4 * (j & 3)):
                e(s_)
            e("s_nop 1")
            d = A_ACCG + 4 * j
            e("v_mfma_f32_16x16x32_bf16 %s, %s, %s, %s" % (ar(d), ar(A_GF + 4 * u), vr(FBUF + 4 * (j & 3)), ar(d)))
    e("s_nop 7")
    e("s_nop 1")
    for j in range(8):
        e("ds_write_b128 v%d, %s offset:%d" % (V_EXW, ar(A_ACCG + 4 * j), j * 1024))
    e("v_lshrrev_b32 v20, 4, v%d" % V_LANE)
    e("v_and_b32 v21, 15, v%d" % V_LANE)
    e("v_and_b32 v20, 1, v20")
    e("v_lshlrev_b32 v20, 12, v20")
    e("v_lshl_add_u32 v20, v21, 5, v20")
    e("s_lshl_b32 s%d, s%d, 9" % (S_T, S_NH))
    e("s_lshl_b32 s%d, s2, 14" % (S_T + 1))
    e("s_add_u32 s%d, s%d, s%d" % (S_T, S_T, S_T + 1))
    e("v_add_u32 v%d, s%d, v20" % (V_W0, S_T))
    e("v_add_u32 v%d, 0x2000, v%d" % (V_A0, V_W0))
    e("v_mov_b32 v%d, 0" % V_W1)
    e("s_waitcnt lgkmcnt(0)")
    e("s_barrier")
    for j in range(8):
        e("ds_read_b128 %s, v%d offset:%d" % (vr(TMP + 4 * j), V_EXR, j * 1024))
    T = TMP + 32
    R = RING
    e("s_waitcnt lgkmcnt(0)")
    for j in range(8):
        P = TMP + 4 * j
        for r in range(4):
            e("v_accvgpr_read_b32 v%d, a%d" % (T + r, A_ACCG + 4 * j + r))
        e("v_pk_add_f32 %s, %s, %s" % (vr(P, 2), vr(P, 2), vr(T, 2)))
        e("v_pk_add_f32 %s, %s, %s" % (vr(P + 2, 2), vr(P + 2, 2), vr(T + 2, 2)))
        e("v_cvt_pk_bf16_f32 v%d, v%d, v%d" % (T, P, P + 1))
        e("v_cvt_pk_bf16_f32 v%d, v%d, v%d" % (T + 1, P + 2, P + 3))
        e("v_lshlrev_b32 v%d, 16, v%d" % (P, T))
        e("v_and_b32 v%d, 0xffff0000, v%d" % (P + 1, T))
        e("v_lshlrev_b32 v%d, 16, v%d" % (P + 2, T + 1))
        e("v_and_b32 v%d, 0xffff0000, v%d" % (P + 3, T + 1))
        for r in range(4):
            e("v_mul_f32 v%d, s%d, v%d" % (R + 8 * r + j, S_SCL, P + r))
        e("v_max3_f32 v%d, |v%d|, |v%d|, v%d" % (V_W1, R + j, R + 8 + j, V_W1))
        e("v_max3_f32 v%d, |v%d|, |v%d|, v%d" % (V_W1, R + 16 + j, R + 24 + j, V_W1))
        for r in range(4):
            e("v_exp_f32 v%d, v%d" % (R + 32 + 8 * r + j, R + 8 * r + j))
    e("v_mov_b32 v%d, 0x42fa0000" % T)
    e("s_mov_b32 exec_hi, 0")
    e("v_cmp_nle_f32 vcc, v%d, v%d" % (V_W1, T))
    for r in range(4):
        for hh in range(2):
            e("global_store_dwordx4 v%d, %s, %s offset:%d sc0 sc1" % (V_W0, vr(R + 32 + 8 * r + 4 * hh), sr(S_WSP), r * 1024 + hh * 16))
            e("global_store_dwordx4 v%d, %s, %s offset:%d sc0 sc1" % (V_A0, vr(R + 8 * r + 4 * hh), sr(S_WSP), r * 1024 + hh * 16))
    e("s_mov_b64 exec, -1")
    e("s_or_b32 s%d, vcc_lo, vcc_hi" % S_FLAG)
    e("s_cmp_lg_u32 s%d, 0" % S_FLAG)
    e("s_cselect_b32 s%d, 3, 1" % S_FLAG)
    e("s_lshl_b32 s%d, s2, 4" % S_T)
    e("s_lshl_b32 s%d, s%d, 2" % (S_T + 1, S_W))
    e("s_add_u32 s%d, s%d, s%d" % (S_T, S_T, S_T + 1))
    e("v_mov_b32 v20, s%d" % S_T)
    e("v_mov_b32 v21, s%d" % S_FLAG)
    e("s_waitcnt vmcnt(0)")
    e("s_mov_b32 exec_lo, 1")
    e("s_mov_b32 exec_hi, 0")
    e("global_store_dword v20, v21, %s sc0 sc1" % sr(S_DBG))
    e("s_endpgm")


def flag_issue():
    e("s_lshl_b32 s%d, s%d, 4" % (S_T, S_B))
    e("v_mov_b32 v15, s%d" % S_T)
    a.vm("global_load_dwordx4 v[60:63], v15, %s sc0 sc1" % sr(S_DBG))
    a.op("mark", "flag")


def eb_dma(wsoff):
    e("s_lshl_b32 s%d, s%d, 14" % (S_T, S_B))
    e("s_lshl_b32 s%d, s%d, 11" % (S_T + 1, S_W))
    e("s_add_u32 s%d, s%d, s%d" % (S_T, S_T, S_T + 1))
    e("s_add_u32 s%d, s%d, %d" % (S_T, S_T, wsoff))
    e("v_lshlrev_b32 v16, 4, v%d" % V_LANE)
    e("v_add_u32 v16, s%d, v16" % S_T)
    e("s_add_u32 s%d, s%d, %d" % (S_T + 1, S_T + 1, EBB))
    e("s_mov_b32 m0, s%d" % (S_T + 1))
    e("s_nop 0")


def flag_check():
    a.op("needmark", "flag")
    sv = a.noins
    a.noins = 1
    a.lab("L_flag_chk")
    e("v_min_u32 v16, v60, v61")
    e("v_min3_u32 v16, v62, v63, v16")
    e("v_or3_b32 v17, v60, v61, v62")
    e("v_or_b32 v17, v17, v63")
    e("v_readfirstlane_b32 s%d, v16" % (S_T))
    e("v_readfirstlane_b32 s%d, v17" % (S_T + 1))
    e("s_nop 3")
    e("s_cmp_lg_u32 s%d, 0" % S_T)
    e("s_cbranch_scc1 L_flag_ok")
    a.op("rare", 1)
    e("s_sleep 4")
    e("global_load_dwordx4 v[60:63], v15, %s sc0 sc1" % sr(S_DBG))
    e("s_waitcnt vmcnt(0)")
    e("s_branch L_flag_chk")
    a.op("rare", 0)
    a.lab("L_flag_ok")
    e("s_and_b32 s%d, s%d, 2" % (S_FLAG, S_T + 1))
    eb_dma(0)
    a.vm("buffer_load_dwordx4 v16, %s, 0 offen sc0 sc1 lds" % sr(SRD_WS, 4))
    a.vm("buffer_load_dwordx4 v16, %s, 0 offen offset:1024 sc0 sc1 lds" % sr(SRD_WS, 4))
    a.op("mark", "eb")
    a.noins = sv


TAPH = [0, HP, 2 * HP]


def c1_areads(k, aset):
    tap = k % 3
    out = []
    for sl in range(5):
        b0 = V_A0 if tap < 2 else 15
        base = b0 if sl < 2 else (b0 + 1 if sl < 4 else b0 + 2)
        off = ((sl & 1) * 4608 if sl < 4 else 0) + (128 if tap == 1 else 0)
        out.append("ds_read_b128 %s, v%d offset:%d" % (ar(aset + 4 * sl), base, off))
    return out


def c2_areads(k, aset):
    tap, sl_ = k % 3, k // 3
    return ["ds_read_b128 %s, v%d offset:%d" % (ar(aset + 4 * sl), V_A0 + sl, HB + TAPH[tap] + sl_ * 128)
            for sl in range(2)]


def conv_phase(u0, nM, acc, areads_fn, isx):
    for s in areads_fn(0, A_AF):
        e(s)
    prime(u0)
    units = []
    for k in range(12):
        nk = k + 1
        pre = []
        if isx and k % 3 == 2 and k < 11:
            pre = [("needmark", "x%d" % (k // 3 + 1)), "s_barrier"]
            pre += ["v_add_u32 v%d, 0x%x, v%d" % (r, XS, r) for r in (V_A0, V_A1, V_A2)]
        if isx and k % 3 == 0 and k > 0:
            pre = ["v_add_u32 v%d, 0x%x, v%d" % (r, XS, r) for r in (15, 16, 17)]
        if isx and PROF == "2":
            pre = pre + [("call", stamp)]
        units.append(dict(unit=u0 + k, aset=[A_AF + 20 * (k & 1) + 4 * s for s in range(nM)], last=(k == 11), pre=pre,
                          areads=(areads_fn(nk, A_AF + 20 * (nk & 1)) if k < 11 else [])))
    emit_units(units, nM, acc)


def lane_fields():
    e("v_lshrrev_b32 v16, 4, v%d" % V_LANE)
    e("v_and_b32 v17, 15, v%d" % V_LANE)


P0, P1 = TMP, TMP + 8
TT = TMP + 16
OWN = TMP + 24
OUTR = TMP + 28


def add_own(P, accbase):
    for i in range(0, 8, 4):
        for k in range(4):
            e("v_accvgpr_read_b32 v%d, a%d" % (OWN + k, accbase + i + k))
        e("v_pk_add_f32 %s, %s, %s" % (vr(P + i, 2), vr(P + i, 2), vr(OWN, 2)))
        e("v_pk_add_f32 %s, %s, %s" % (vr(P + i + 2, 2), vr(P + i + 2, 2), vr(OWN + 2, 2)))


def epi_gelu_slot(accbase, rdoff, nblocks_after, wr, mask):
    for jp in range(4):
        P = P0 if (jp & 1) == 0 else P1
        Pn = P1 if (jp & 1) == 0 else P0
        nxt = rdoff + (2 * jp + 2) * 1024
        more = jp < 3 or nblocks_after
        if more:
            e("ds_read_b128 %s, v%d offset:%d" % (vr(Pn), V_EXR, nxt))
            e("ds_read_b128 %s, v%d offset:%d" % (vr(Pn + 4), V_EXR, nxt + 1024))
            e("s_waitcnt lgkmcnt(2)")
        else:
            e("s_waitcnt lgkmcnt(0)")
        add_own(P, accbase + 8 * jp)
        gelu_pairs([P, P + 2, P + 4, P + 6], [TT, TT + 2, TT + 4, TT + 6])
        if mask:
            e("v_mul_f32 v%d, v%d, v%d" % (TT, V_MASK, TT))
            e("v_mul_f32 v%d, v%d, v%d" % (TT + 4, V_MASK, TT + 4))
        for r in range(4):
            e("v_cvt_pk_bf16_f32 v%d, v%d, v%d" % (OUTR + 4 * r + jp, TT + r, TT + 4 + r))
    for r in range(4):
        e(wr(r))


def epi1():
    a.c("---- epilogue conv1 ----")
    e("v_mov_b32 v%d, 0x%x" % (V_C0, f32bits(GC0)))
    e("v_mov_b32 v%d, 0x%x" % (V_C0 + 1, f32bits(GC0)))
    e("s_nop 7")
    e("s_nop 1")
    for j in range(8):
        e("v_accvgpr_read_b32 v%d, a%d" % (TMP + j, A_ACC1 + 128 + 4 * j))
    for i in range(16):
        e("ds_write_b128 v%d, %s offset:%d" % (V_EXW, ar(A_ACC1 + 64 + 4 * i), i * 1024))
    e("ds_write_b128 v%d, %s offset:%d" % (V_EXW, vr(TMP), 16384))
    e("ds_write_b128 v%d, %s offset:%d" % (V_EXW, vr(TMP + 4), 17408))
    lane_fields()
    e("s_mul_i32 s%d, s%d, %d" % (S_T, S_KH, 32 * HP))
    e("s_lshl_b32 s%d, s%d, 8" % (S_T + 1, S_NH))
    e("v_mul_u32_u24 v16, %d, v16" % (4 * HP))
    e("v_lshl_add_u32 v17, v17, 4, s%d" % (S_T + 1))
    e("v_add3_u32 v%d, v16, v17, s%d" % (V_W0, S_T))
    e("v_add_u32 v%d, 0x%x, v17" % (V_W1, HB + 64 * HP))
    for i in range(4):
        e("v_mov_b32 v%d, 0" % (TT + i))
    e("s_waitcnt lgkmcnt(0)")
    e("s_nop 1")
    zero_acc(A_ACC2, 64, TT)
    e("s_barrier")
    e("ds_read_b128 %s, v%d offset:0" % (vr(P0), V_EXR))
    e("ds_read_b128 %s, v%d offset:1024" % (vr(P0 + 4), V_EXR))
    for sl in range(2):
        epi_gelu_slot(A_ACC1 + 32 * sl, sl * 8192, True,
                      lambda r, sl=sl: "ds_write_b128 v%d, %s offset:%d" % (V_W0, vr(OUTR + 4 * r), HB + (16 * sl + r) * HP),
                      sl == 0)
    e("s_waitcnt lgkmcnt(0)")
    for j in range(8):
        e("v_accvgpr_read_b32 v%d, a%d" % (TT + j, A_ACC1 + 128 + 4 * j))
    for i in range(0, 8, 2):
        e("v_pk_add_f32 %s, %s, %s" % (vr(P0 + i, 2), vr(P0 + i, 2), vr(TT + i, 2)))
    gelu_pairs([P0, P0 + 2, P0 + 4, P0 + 6], [TT, TT + 2, TT + 4, TT + 6])
    for i in range(4):
        e("v_cvt_pk_bf16_f32 v%d, v%d, v%d" % (P1 + i, TT + 2 * i, TT + 2 * i + 1))
    a.noins = 1
    e("s_mov_b32 exec_lo, 0xffff")
    e("s_mov_b32 exec_hi, 0")
    e("ds_write_b128 v%d, %s" % (V_W1, vr(P1)))
    e("s_mov_b64 exec, -1")
    a.noins = 0
    lane_fields()
    e("s_lshl_b32 s%d, s%d, 6" % (S_T, S_KH))
    e("v_mul_u32_u24 v17, %d, v17" % (2 * HP))
    e("v_lshl_add_u32 v17, v16, 4, v17")
    e("v_add_u32 v17, s%d, v17" % S_T)
    e("s_mul_i32 s%d, s%d, %d" % (S_T, S_KH, 32 * HP))
    e("v_add_u32 v%d, s%d, v17" % (V_A0, S_T))
    e("s_sub_u32 s%d, %d, s%d" % (S_T, 32 * HP, S_T))
    e("v_add_u32 v%d, s%d, v17" % (V_A1, S_T))
    e("v_lshlrev_b32 v16, 4, v%d" % V_LANE)
    e("s_lshl_b32 s%d, s%d, 13" % (S_T, S_W))
    e("s_add_u32 s%d, s%d, %d" % (S_T, S_T, EXB))
    e("v_add_u32 v%d, s%d, v16" % (V_EXW, S_T))
    e("s_xor_b32 s%d, s%d, 2" % (S_T, S_W))
    e("s_lshl_b32 s%d, s%d, 13" % (S_T, S_T))
    e("s_add_u32 s%d, s%d, %d" % (S_T, S_T, EXB))
    e("v_add_u32 v%d, s%d, v16" % (V_EXR, S_T))
    e("s_waitcnt lgkmcnt(0)")
    e("s_barrier")


def epi2():
    a.c("---- epilogue conv2 ----")
    flag_check()
    for i in range(8):
        e("ds_write_b128 v%d, %s offset:%d" % (V_EXW, ar(A_ACC2 + 32 + 4 * i), i * 1024))
    lane_fields()
    e("s_mul_i32 s%d, s%d, %d" % (S_T, S_KH, 16 * FP))
    e("s_lshl_b32 s%d, s%d, 8" % (S_T + 1, S_NH))
    e("v_mul_u32_u24 v16, %d, v16" % (4 * FP))
    e("v_lshl_add_u32 v17, v17, 4, s%d" % (S_T + 1))
    e("v_add3_u32 v%d, v16, v17, s%d" % (V_W0, S_T))
    for i in range(4):
        e("v_mov_b32 v%d, 0" % (TT + i))
    e("s_nop 1")
    zero_acc(A_ACC3, 64, TT)
    e("s_waitcnt lgkmcnt(0)")
    e("s_barrier")
    e("ds_read_b128 %s, v%d offset:0" % (vr(P0), V_EXR))
    e("ds_read_b128 %s, v%d offset:1024" % (vr(P0 + 4), V_EXR))
    epi_gelu_slot(A_ACC2, 0, False,
                  lambda r: "ds_write_b128 v%d, %s offset:%d" % (V_W0, vr(OUTR + 4 * r), FB + r * FP), False)
    lane_fields()
    e("s_lshl_b32 s%d, s%d, 6" % (S_T, S_KH))
    e("s_add_u32 s%d, s%d, %d" % (S_T, S_T, FB))
    e("v_mul_u32_u24 v17, %d, v17" % FP)
    e("v_lshl_add_u32 v17, v16, 4, v17")
    e("v_add_u32 v17, s%d, v17" % S_T)
    e("s_mul_i32 s%d, s%d, %d" % (S_T, S_KH, 16 * FP))
    e("v_add_u32 v%d, s%d, v17" % (V_A0, S_T))
    e("s_sub_u32 s%d, %d, s%d" % (S_T, 16 * FP, S_T))
    e("v_add_u32 v%d, s%d, v17" % (V_A1, S_T))
    e("s_waitcnt lgkmcnt(0)")
    e("s_barrier")


def f_areads(u, aset):
    return ["ds_read_b128 %s, v%d offset:%d" % (ar(aset + 4 * sl), V_A0 + sl, u * 128) for sl in range(2)]


def phase_f():
    a.c("---- fe ----")
    for s in f_areads(0, A_AF):
        e(s)
    prime(U_F)
    units = []
    for u in range(4):
        units.append(dict(unit=U_F + u, aset=[A_AF + 20 * (u & 1) + 4 * s for s in range(2)], last=(u == 3),
                          areads=(f_areads(u + 1, A_AF + 20 * ((u + 1) & 1)) if u < 3 else [])))
    emit_units(units, 2, lambda sl, j: A_ACC3 + (sl * 8 + j) * 4)


def epi3_body(raw):
    e("ds_read_b128 %s, v%d offset:0" % (vr(P0), V_EXR))
    e("ds_read_b128 %s, v%d offset:1024" % (vr(P0 + 4), V_EXR))
    for jp in range(4):
        P = P0 if (jp & 1) == 0 else P1
        Pn = P1 if (jp & 1) == 0 else P0
        if jp < 3:
            e("ds_read_b128 %s, v%d offset:%d" % (vr(Pn), V_EXR, (2 * jp + 2) * 1024))
            e("ds_read_b128 %s, v%d offset:%d" % (vr(Pn + 4), V_EXR, (2 * jp + 3) * 1024))
            e("s_waitcnt lgkmcnt(2)")
        else:
            e("s_waitcnt lgkmcnt(0)")
        add_own(P, A_ACC3 + 8 * jp)
        for i in range(4):
            e("v_cvt_pk_bf16_f32 v%d, v%d, v%d" % (TT + i, P + 2 * i, P + 2 * i + 1))
        for i in range(4):
            e("v_lshlrev_b32 v%d, 16, v%d" % (P + 2 * i, TT + i))
            e("v_and_b32 v%d, 0xffff0000, v%d" % (P + 2 * i + 1, TT + i))
        for i in range(8):
            e("v_mul_f32 v%d, s%d, v%d" % (P + i, S_SCL, P + i))
        if not raw:
            for i in range(4):
                e("v_max3_f32 v%d, |v%d|, |v%d|, v%d" % (V_W1, P + 2 * i, P + 2 * i + 1, V_W1))
        for jj in range(2):
            for r in range(4):
                d = OUTR + 4 * r + (jp & 1) * 2 + jj
                if raw:
                    e("v_mov_b32 v%d, v%d" % (d, P + 4 * jj + r))
                else:
                    e("v_exp_f32 v%d, v%d" % (d, P + 4 * jj + r))
        if jp & 1:
            e("s_nop 0")
            for r in range(4):
                e("ds_write_b128 v%d, %s offset:%d" % (V_W0, vr(OUTR + 4 * r), r * EAP + (jp >> 1) * 16))


def epi3():
    a.c("---- epilogue fe ----")
    e("s_nop 7")
    e("s_nop 1")
    for i in range(8):
        e("ds_write_b128 v%d, %s offset:%d" % (V_EXW, ar(A_ACC3 + 32 + 4 * i), i * 1024))
    lane_fields()
    e("s_mul_i32 s%d, s%d, %d" % (S_T, S_KH, 16 * EAP))
    e("s_add_u32 s%d, s%d, %d" % (S_T, S_T, EAB))
    e("s_lshl_b32 s%d, s%d, 9" % (S_T + 1, S_NH))
    e("v_mul_u32_u24 v16, %d, v16" % (4 * EAP))
    e("v_lshl_add_u32 v17, v17, 5, s%d" % (S_T + 1))
    e("v_add3_u32 v%d, v16, v17, s%d" % (V_W0, S_T))
    e("v_mov_b32 v%d, 0" % V_W1)
    e("s_waitcnt lgkmcnt(0)")
    e("s_barrier")
    epi3_body(False)
    e("v_mov_b32 v16, 0x42fa0000")
    e("v_cmp_nle_f32 vcc, v%d, v16" % V_W1)
    e("s_lshl_b32 s%d, s%d, 2" % (S_T, S_W))
    e("s_add_u32 s%d, s%d, %d" % (S_T, S_T, FLG))
    e("s_or_b32 s%d, s%d, vcc_lo" % (S_FLAG, S_FLAG))
    e("s_or_b32 s%d, s%d, vcc_hi" % (S_FLAG, S_FLAG))
    e("v_mov_b32 v16, s%d" % S_T)
    e("v_mov_b32 v17, s%d" % S_FLAG)
    e("ds_write_b32 v16, v17")
    e("s_waitcnt lgkmcnt(0)")
    e("s_barrier")
    e("v_mov_b32 v16, 0x%x" % FLG)
    e("ds_read_b128 %s, v16" % vr(TMP))
    e("s_waitcnt lgkmcnt(0)")
    e("v_or3_b32 v16, v%d, v%d, v%d" % (TMP, TMP + 1, TMP + 2))
    e("v_or_b32 v16, v16, v%d" % (TMP + 3))
    e("s_nop 0")
    e("v_readfirstlane_b32 s%d, v16" % S_FLAG)
    e("s_nop 3")
    e("s_cmp_eq_u32 s%d, 0" % S_FLAG)
    e("s_cbranch_scc1 L_fast1")
    a.noins = 1
    a.op("rare", 1)
    epi3_body(True)
    e("s_waitcnt vmcnt(0)")
    e("s_barrier")
    eb_dma(8192)
    e("buffer_load_dwordx4 v16, %s, 0 offen sc0 sc1 lds" % sr(SRD_WS, 4))
    e("buffer_load_dwordx4 v16, %s, 0 offen offset:1024 sc0 sc1 lds" % sr(SRD_WS, 4))
    e("s_waitcnt vmcnt(0) lgkmcnt(0)")
    e("s_barrier")
    a.op("rare", 0)
    a.lab("L_fast1")
    a.noins = 0


OACC = 64


def phase_wo():
    a.c("---- w_o fragments ----")
    e("v_lshlrev_b32 v16, 4, v%d" % V_LANE)
    e("s_lshl_b32 s%d, s%d, 13" % (S_T, S_W))
    e("v_add_u32 v16, s%d, v16" % S_T)
    for i in range(4):
        e("v_mov_b32 v%d, 0" % (60 + i))
    zl = ["v_mfma_f32_32x32x16_bf16 %s, %s, %s, 0" % (ar(OACC + 16 * n, 16), vr(60), vr(60)) for n in range(8)]
    for i in range(4):
        if i == 3:
            a.op("flush", len(UNITS) - 1)
            a.noins = 1
            e("s_cmp_ge_u32 s%d, 2" % S_W)
            e("s_cbranch_scc1 L_wo_skip")
        a.op("need", U_O + i)
        for n in range(8):
            for s in perms(U_O + i, n, TMP + 4 * n):
                e(s)
            if zl and i < 2 and (n & 1):
                e(zl.pop(0))
        for n in range(8):
            e("ds_write_b128 v16, %s offset:%d" % (vr(TMP + 4 * n), n * 1024))
        if i < 3:
            e("v_add_u32 v16, 0x8000, v16")
            e("s_waitcnt lgkmcnt(0)")
    a.lab("L_wo_skip")
    for i in (4, 5):
        a.op("need", U_O + i)
        for n in range(8):
            for s in perms(U_O + i, n, 192 + 32 * (i - 4) + 4 * n):
                e(s)
    for n in range(8):
        e("v_mfma_f32_32x32x16_bf16 %s, %s, %s, 0" % (vr(OACC + 16 * n, 16), vr(60), vr(60)))
    e("s_waitcnt lgkmcnt(0)")
    e("s_barrier")


EA = [20, 28]
EB = [36, 44]
JF = [52, 56]
V_EA, V_EB, V_B, V_ST = 4, 5, 6, 7
BB = [0, 32]
STG = [8, 60]


def out_valu(par, slow):
    ea, eb, jf = EA[par], EB[par], JF[par]
    v = []
    if os.environ.get("EXP") == "novalu":
        return ["v_cvt_pk_bf16_f32 v%d, v%d, v%d" % (jf + i, ea + 2 * i, ea + 2 * i + 1) for i in range(4)]
    if slow:
        for i in range(8):
            v.append("v_add_f32 v%d, v%d, v%d" % (ea + i, ea + i, eb + i))
        for i in range(8):
            v.append("v_exp_f32 v%d, v%d" % (ea + i, ea + i))
        for i in range(8):
            v.append("v_add_f32 v%d, 1.0, v%d" % (ea + i, ea + i))
    elif PK:
        for i in range(0, 8, 2):
            v.append("v_pk_fma_f32 %s, %s, %s, %s" % (vr(ea + i, 2), vr(ea + i, 2), vr(eb + i, 2), sr(S_ONE)))
    else:
        for i in range(8):
            v.append("v_fma_f32 v%d, v%d, v%d, 1.0" % (ea + i, ea + i, eb + i))
    for i in range(8):
        v.append("v_rcp_f32 v%d, v%d" % (ea + i, ea + i))
    if PK:
        for i in range(0, 8, 2):
            v.append("v_pk_fma_f32 %s, %s, %s, %s" % (vr(ea + i, 2), vr(ea + i, 2), vr(V_C0, 2), sr(S_ONE)))
    else:
        for i in range(8):
            v.append("v_fma_f32 v%d, v%d, -2.0, 1.0" % (ea + i, ea + i))
    for i in range(4):
        v.append("v_cvt_pk_bf16_f32 v%d, v%d, v%d" % (jf + i, ea + 2 * i, ea + 2 * i + 1))
    return v


def out_eloads(par, off):
    return ["ds_read_b128 %s, v%d offset:%d" % (vr(EA[par]), V_EA, off),
            "ds_read_b128 %s, v%d offset:%d" % (vr(EA[par] + 4), V_EA, off + 16),
            "ds_read_b128 %s, v%d offset:%d" % (vr(EB[par]), V_EB, off),
            "ds_read_b128 %s, v%d offset:%d" % (vr(EB[par] + 4), V_EB, off + 16)]


def out_bloads(par, off):
    if os.environ.get("EXP") == "halfb":
        return ["ds_read_b64 %s, v%d offset:%d" % (ar(BB[par] + 4 * n, 2), V_B, off + n * 1024) for n in range(8)]
    if os.environ.get("EXP") == "vb":
        return ["ds_read_b128 %s, v%d offset:%d" % (vr(192 + 32 * par + 4 * n), V_B, off + n * 1024) for n in range(8)]
    return ["ds_read_b128 %s, v%d offset:%d" % (ar(BB[par] + 4 * n), V_B, off + n * 1024) for n in range(8)]


def store_group(par, rstatic=None):
    st = STG[par]
    g = []
    if rstatic is None:
        g.append("s_set_gpr_idx_on s%d, 0x3" % S_R)
        g.append("s_nop 0")
        r = 0
    else:
        r = rstatic
    for i in range(4):
        g.append("v_cvt_pk_bf16_f32 v%d, v%d, v%d" % (st + i, OACC + 16 * (2 * i) + r, OACC + 16 * (2 * i + 1) + r))
    if rstatic is None:
        g.append("s_set_gpr_idx_off")
        g.append("s_add_u32 s%d, s%d, 1" % (S_R, S_R))
    g.append("buffer_store_dwordx4 %s, v%d, %s, s%d offen%s" % (vr(st), V_ST, sr(SRD_O, 4), S_SO, STMOD))
    return g


def out_kstep(par, bsrc, accf, valu, loads, stg=None, prev_b=8):
    gaps = [[] for _ in range(8)]
    nl = [2, 1, 2, 1, 2, 1, 2, 1]
    li = 0
    issued = [0] * 9
    for n in range(8):
        for _ in range(nl[n]):
            if li < len(loads):
                gaps[n].append(loads[li]); li += 1
        issued[n + 1] = li
    budget = [24 - 4 * len(gaps[n]) for n in range(8)]
    if stg:
        gaps[3] = gaps[3] + list(stg)
        budget[3] = 0
    vi = 0
    for n in range(8):
        c = 0
        while vi < len(valu) and (c < budget[n] or n == 7):
            gaps[n].append(valu[vi]); c += a.cost(valu[vi]); vi += 1
    for n in range(8):
        if n % 2 == 0:
            if prev_b:
                e("s_waitcnt lgkmcnt(%d)" % (prev_b - (n + 2) + issued[n]))
            elif n == 0:
                e("s_waitcnt lgkmcnt(0)")
            if n == 0:
                e("s_nop 0")
        d = accf(n)
        e("v_mfma_f32_32x32x16_bf16 %s, %s, %s, %s" % (d, vr(JF[par]), bsrc(n), d))
        for s in gaps[n]:
            e(s)


def out_pass(tag, slow, second):
    accf = (lambda n: ar(OACC + 16 * n, 16)) if second else (lambda n: vr(OACC + 16 * n, 16))
    e("v_lshrrev_b32 v16, 5, v%d" % V_LANE)
    e("v_and_b32 v17, 31, v%d" % V_LANE)
    e("v_mul_u32_u24 v%d, %d, v17" % (V_EA, EAP))
    e("v_lshl_add_u32 v%d, v16, 5, v%d" % (V_EA, V_EA))
    e("v_add_u32 v%d, 0x%x, v%d" % (V_EA, EAB, V_EA))
    e("s_lshl_b32 s%d, s%d, 11" % (S_T, S_W))
    e("s_add_u32 s%d, s%d, %d" % (S_T, S_T, EBB + (1024 if second else 0)))
    e("v_lshlrev_b32 v%d, 5, v16" % V_EB)
    e("v_add_u32 v%d, s%d, v%d" % (V_EB, S_T, V_EB))
    e("v_lshlrev_b32 v%d, 4, v%d" % (V_B, V_LANE))
    for s in out_eloads(0, 0) + out_eloads(1, 64):
        e(s)
    e("s_waitcnt lgkmcnt(4)")
    for s in out_bloads(0, 0):
        e(s)
    for s in out_valu(0, slow):
        e(s)
    e("s_mov_b32 s%d, 0" % S_CNT)
    if second:
        e("s_mov_b32 s%d, 0" % S_R)
        e("s_mov_b32 s%d, s%d" % (S_SO, S_OBASE))
    lab = "L_ok_%s%d" % (tag, int(second))
    a.lab(lab)
    sg0 = sg1 = None
    if second:
        sg0 = store_group(0) + ["s_add_u32 s%d, s%d, 4096" % (S_SO, S_SO)]
        sg1 = store_group(1) + ["s_and_b32 s%d, s%d, 1" % (S_T, S_CNT), "s_lshl_b32 s%d, s%d, 14" % (S_T, S_T),
                                "s_add_u32 s%d, s%d, s%d" % (S_SO, S_SO, S_T), "s_add_u32 s%d, s%d, 4096" % (S_SO, S_SO)]
    out_kstep(0, lambda n: ar(BB[0] + 4 * n), accf, out_valu(1, slow), out_eloads(0, 128) + out_bloads(1, 8192), sg0)
    out_kstep(1, lambda n: ar(BB[1] + 4 * n), accf, out_valu(0, slow), out_eloads(1, 192) + out_bloads(0, 16384), sg1)
    e("v_add_u32 v%d, 0x80, v%d" % (V_EA, V_EA))
    e("v_add_u32 v%d, 0x80, v%d" % (V_EB, V_EB))
    e("v_add_u32 v%d, 0x4000, v%d" % (V_B, V_B))
    e("s_add_u32 s%d, s%d, 1" % (S_CNT, S_CNT))
    e("s_cmp_lt_u32 s%d, 7" % S_CNT)
    e("s_cbranch_scc1 %s" % lab)
    if second:
        sg0 = store_group(0, 14) + ["s_add_u32 s%d, s%d, 4096" % (S_SO, S_SO)]
        sg1 = store_group(1, 15)
    out_kstep(0, lambda n: vr(192 + 4 * n), accf, out_valu(1, slow), [], sg0, 0)
    out_kstep(1, lambda n: vr(224 + 4 * n), accf, [], [], sg1, 0)
    if not second:
        e("s_nop 7")


def phase_out(slow):
    tag = "s" if slow else "f"
    a.c("---- out phase (%s) ----" % tag)
    e("v_mov_b32 v%d, -2.0" % V_C0)
    e("v_mov_b32 v%d, -2.0" % (V_C0 + 1))
    e("v_lshrrev_b32 v16, 5, v%d" % V_LANE)
    e("v_and_b32 v17, 31, v%d" % V_LANE)
    e("v_lshlrev_b32 v%d, 14, v16" % V_ST)
    e("v_lshl_add_u32 v%d, v17, 4, v%d" % (V_ST, V_ST))
    e("s_mul_i32 s%d, s%d, 4000" % (S_T, S_B))
    e("s_add_u32 s%d, s%d, s%d" % (S_T, S_T, S_T0))
    e("s_lshl_b32 s%d, s%d, 12" % (S_OBASE, S_T))
    e("s_lshl_b32 s%d, s%d, 10" % (S_T, S_W))
    e("s_add_u32 s%d, s%d, s%d" % (S_OBASE, S_OBASE, S_T))
    out_pass(tag, slow, False)
    if not slow:
        stamp()
    out_pass(tag, slow, True)
    if not slow:
        stamp()
    e("s_nop 7")
    e("s_nop 3")
    e("s_add_u32 s%d, s%d, 512" % (S_T, S_OBASE))
    stq = [20, 36]
    for r in range(16):
        tq = stq[r & 1]
        st = tq + 8 + 4 * ((r >> 1) & 1)
        t = 8 * (r >> 2) + (r & 3)
        for n in range(8):
            e("v_accvgpr_read_b32 v%d, a%d" % (tq + n, OACC + 16 * n + r))
        for i in range(4):
            e("v_cvt_pk_bf16_f32 v%d, v%d, v%d" % (st + i, tq + 2 * i, tq + 2 * i + 1))
        e("s_add_u32 s%d, s%d, %d" % (S_SO, S_T, t * 4096))
        e("buffer_store_dwordx4 %s, v%d, %s, s%d offen%s" % (vr(st), V_ST, sr(SRD_O, 4), S_SO, STMOD))
    if not slow:
        stamp()
        stamp_store()
    e("s_endpgm")


def x_item(sl_, i):
    return ["s_add_u32 s94, s92, %d" % (sl_ * 128 + i * 16384),
            "s_add_u32 s95, s93, %d" % (sl_ * XS + i * 4 * XBP),
            "v_add_u32 v%d, s94, v%d" % (V_W0, V_XL),
            "s_mov_b32 m0, s95",
            "s_nop 0",
            "buffer_load_dwordx4 v%d, %s, 0 offen nt lds" % (V_W0, sr(SRD_X, 4))]


def w_item(i):
    if i == 0:
        return ["s_lshr_b32 s94, s2, 3", "s_and_b32 s94, s94, 31", "s_lshl_b32 s94, s94, 2",
                "s_add_u32 s94, s94, s%d" % S_W,
                "v_lshlrev_b32 v%d, 4, v%d" % (V_W1, V_LANE),
                "s_mul_i32 s95, s94, 3072",
                "v_add_u32 v%d, s95, v%d" % (V_W0, V_W1),
                "global_load_dwordx4 a[200:203], v%d, %s" % (V_W0, sr(S_W2))]
    if i < 3:
        return ["global_load_dwordx4 a[200:203], v%d, %s offset:%d" % (V_W0, sr(S_W2), i * 1024)]
    if i == 3:
        return ["s_lshl_b32 s95, s94, 10", "v_add_u32 v%d, s95, v%d" % (V_W0, V_W1),
                "global_load_dwordx4 a[200:203], v%d, %s" % (V_W0, sr(S_WF))]
    return ["global_load_dwordx4 a[200:203], v%d, %s" % (V_W0, sr(S_WO))]


def schedule(entries):
    out = []
    pend = []
    for u in range(len(UNITS)):
        for i in range(8):
            pend.append(("u", u, i))
        for si, pos in enumerate(XPOS):
            if u == pos:
                pend += [("x", si + 1, i) for i in range(4)]
        if u == WUPOS and WARM:
            pend += [("w", 0, i) for i in range(5)]
    pi = 0
    freed = set()
    vcount = 0
    last = {}
    marks = {}
    t = 0
    next_t = 0
    rare = 0
    forced = {}

    def can(it):
        return it[0] != "u" or it[1] < 6 or (it[1] - 6) in freed

    def issue():
        nonlocal pi, vcount, t, next_t
        k, u, i = pend[pi]
        if k == "u":
            sb, vo, cst = UNITS[u]
            if i == 0:
                out.append("  v_add_u32 v%d, 0x%x, v%d" % (V_LD, cst, vo))
                t += 4
            out.append("  global_load_dwordx4 %s, v%d, %s offset:%d" % (vr(slot(u) + 4 * i), V_LD, sr(sb), i * 512))
            vcount += 1
            last[u] = vcount
        else:
            for s_ in (x_item(u, i) if k == "x" else w_item(i)):
                out.append("  " + s_)
            vcount += 1
            if k == "x":
                marks["x%d" % u] = vcount
        pi += 1
        t += 8
        next_t = max(next_t, t - 8) + (PACE0 if pi < NFAST else PACE)

    for k, arg, cost, noins in entries:
        if not noins and k in ("i",):
            while pi < len(pend) and t >= next_t and can(pend[pi]):
                issue()
        if k == "i":
            out.append("  " + arg)
            if not rare:
                t += cost
        elif k == "v":
            out.append("  " + arg)
            vcount += 1
            t += PACE
            next_t = max(next_t, t)
        elif k == "l":
            out.append(arg + ":")
        elif k == "c":
            out.append("  ; %s  [t=%d, loads issued %d]" % (arg, t, pi))
        elif k == "free":
            freed.add(arg)
        elif k == "rare":
            rare = arg
        elif k in ("need", "flush"):
            while pi < len(pend) and not (pend[pi][0] == "u" and pend[pi][1] > arg) and (arg not in last or pend[pi][0] == "u"):
                assert can(pend[pi]), ("slot not free", pend[pi], arg)
                if k == "need":
                    forced[arg] = forced.get(arg, 0) + 1
                t = max(t, next_t)
                issue()
            if k == "need":
                n = vcount - last[arg]
                out.append("  s_waitcnt vmcnt(%d)" % min(n, 63))
        elif k == "mark":
            marks[arg] = vcount
        elif k == "needmark":
            while arg not in marks or (pi < len(pend) and pend[pi][0] == "x" and "x%d" % pend[pi][1] == arg):
                t = max(t, next_t)
                issue()
            out.append("  s_waitcnt vmcnt(%d)" % min(vcount - marks[arg], 63))
    assert pi == len(pend)
    sys.stderr.write("est front cycles %d, forced: %s\n" % (t, forced))
    return out


def main():
    prologue()
    stamp()
    a.c("---- conv1 ----")
    conv_phase(U_C1, 5, lambda sl, j: A_ACC1 + (sl * 8 + j) * 4, c1_areads, True)
    stamp()
    epi1()
    stamp()
    a.c("---- conv2 ----")
    flag_issue()
    conv_phase(U_C2, 2, lambda sl, j: A_ACC2 + (sl * 8 + j) * 4, c2_areads, False)
    stamp()
    epi2()
    stamp()
    if os.environ.get("PAD") == "line":
        a.noins = 1
        for _ in range(2048):
            e("v_add3_u32 v16, v16, 0, 0")
        a.noins = 0
    if os.environ.get("PAD") == "loop":
        a.noins = 1
        e("s_mov_b32 s94, 0")
        a.lab("L_pad")
        for _ in range(64):
            e("v_add3_u32 v16, v16, 0, 0")
        e("s_add_u32 s94, s94, 1")
        e("s_cmp_lt_u32 s94, 32")
        e("s_cbranch_scc1 L_pad")
        a.noins = 0
    phase_f()
    stamp()
    epi3()
    stamp()
    phase_wo()
    stamp()
    a.noins = 1
    front = schedule(a.l)
    a.l = []
    e("s_cmp_lg_u32 s%d, 0" % S_FLAG)
    e("s_cbranch_scc1 L_slow")
    phase_out(False)
    a.lab("L_slow")
    phase_out(True)
    producer()
    a.lab("L_end")
    e("s_endpgm")
    for _ in range(300):
        e("s_endpgm")
    back = []
    for k, arg, cost, noins in a.l:
        back.append(arg + ":" if k == "l" else ("  ; " + arg if k == "c" else "  " + arg))

    hdr = open("standalone__seq2seq_rnn_t_joint__speech.s.ref").read().split("\n")
    top = [l for l in hdr if l.startswith(";") and "@launch" not in l and "Override" not in l and "grid=ceil" not in l]
    out = "\n".join(top) + "\n"
    out += "; @launch grid=(252,1,1) block=(256,1,1) lds=%d\n" % LDS_TOTAL
    out += '.amdgcn_target "amdgcn-amd-amdhsa--gfx950"\n.text\n.globl %s\n.p2align 8\n.type %s,@function\n%s:\n' % (KN, KN, KN)
    out += "\n".join(front + back) + "\n"
    out += """.section .rodata,"a"
.p2align 6
.amdhsa_kernel %s
  .amdhsa_next_free_vgpr 512
  .amdhsa_next_free_sgpr 102
  .amdhsa_accum_offset 256
  .amdhsa_group_segment_fixed_size 0
  .amdhsa_kernarg_size 80
  .amdhsa_user_sgpr_count 2
  .amdhsa_user_sgpr_kernarg_segment_ptr 1
  .amdhsa_system_sgpr_workgroup_id_x 1
.end_amdhsa_kernel
""" % KN
    dst = sys.argv[1] if len(sys.argv) > 1 else "standalone__seq2seq_rnn_t_joint__speech.s"
    open(dst, "w").write(out)
    if PROF:
        sys.stderr.write("stamps %d\n" % NSTAMP[0])


main()
```

```python
import sys, os, struct

DEBUG = os.environ.get("DBG", "")
PROF = os.environ.get("PROF", "")
PACE = int(os.environ.get("PACE", "64"))
PACE0 = int(os.environ.get("PACE0", "30"))
NFAST = int(os.environ.get("NFAST", "60"))
PK = int(os.environ.get("PK", "0"))
STMOD = os.environ.get("STMOD", " nt")
CODEPF = int(os.environ.get("CODEPF", "1"))
NASLOT = int(os.environ.get("NASLOT", "3"))
ATAIL = int(os.environ.get("ATAIL", "3"))
W1WARM = int(os.environ.get("W1WARM", "1"))
PACE1 = int(os.environ.get("PACE1", "80"))
WUPOS = int(os.environ.get("WUPOS", "8"))
XPOS = [int(v) for v in os.environ.get("XPOS", "2,5,7").split(",")]
XS2 = int(os.environ.get("XS2", "0"))
XS3 = int(os.environ.get("XS3", "1"))
XWU = int(os.environ.get("XWU", "3"))
WARM = int(os.environ.get("WARM", "1"))
NSTAMP = [0]

KN = "standalone__seq2seq_rnn_t_joint__speech_kernel"

XBP = 1152
XS = 17 * XBP
XB = 0
EXB = 78848
EX1S = 18432
HB = 0
HP = 528
FB = 36864
FP = 544
FLG = 114688
EAB = 122368
EAP = 1040
EBB = 155648
LDS_TOTAL = 163840

V_OFF16, V_OFF32, V_LD = 1, 2, 3
V_A0, V_A1, V_A2 = 4, 5, 6
V_EXW, V_EXR = 7, 8
V_W0, V_W1 = 9, 10
V_MASK = 11
V_C0 = 12
V_LANE = 14
V_T0, V_T1 = 15, 16
V_OFF32W = 18
TMP = 20
RING = 64

S_X, S_W1, S_W2, S_G, S_WF, S_WG, S_WO, S_OUT = 4, 6, 8, 10, 12, 14, 16, 18
SRD_X, SRD_G, SRD_O = 20, 24, 28
S_W, S_NH, S_KH, S_B, S_T0, S_CNT = 56, 57, 58, 59, 60, 61
S_SELLO, S_SELHI = 62, 63
S_C1 = 64
S_ONE = 66
S_FLAG = 68
S_T = 69
S_SCL = 76
S_OBASE = 79
S_WSP = 80
S_SO = 82
S_R = 83
S_DBG = 84
SRD_WS = 88
S_TILE = 86

A_ACC1 = 0
A_AF = 160
A_ACCG = 200
A_GF = 232
A_ACC2 = 64
A_ACC3 = 0


def f32bits(x):
    return struct.unpack("<I", struct.pack("<f", x))[0]


LOG2E = 1.4426950408889634
GC0 = -2.0 * 0.7978845608028654 * LOG2E
GC1 = GC0 * 0.044715
TSC = 2.0 * LOG2E


class A:
    def __init__(self):
        self.l = []
        self.noins = 0

    def cost(self, s):
        op = s.split()[0]
        if op.startswith("v_mfma_f32_16x16"):
            return 10
        if op.startswith("v_mfma"):
            return 32
        if op in ("v_exp_f32", "v_rcp_f32"):
            return 8
        if op.startswith("v_"):
            return 4
        if op.startswith("ds_write_b128"):
            return 12
        if op.startswith("ds_"):
            return 4
        if op.startswith("buffer_") or op.startswith("global_"):
            return 8
        if op == "s_barrier":
            return 60
        if op == "s_nop":
            return 4 * (int(s.split()[1]) + 1)
        return 2

    def e(self, s):
        self.l.append(["i", s, self.cost(s), self.noins])

    def vm(self, s):
        self.l.append(["v", s, 8, 1])

    def lab(self, s):
        self.l.append(["l", s, 0, 1])

    def c(self, s):
        self.l.append(["c", s, 0, self.noins])

    def op(self, kind, arg):
        self.l.append([kind, arg, 0, self.noins])


a = A()
e = a.e


def vr(b, n=4):
    return "v[%d:%d]" % (b, b + n - 1)


def ar(b, n=4):
    return "a[%d:%d]" % (b, b + n - 1)


def sr(b, n=2):
    return "s[%d:%d]" % (b, b + n - 1)


def slot(u):
    return RING + 32 * (u % 6)


def conv_off(it, u):
    return (u >> 1) * 131072 + (u & 1) * 32768 + it * 65536


UNITS = []
for k in range(12):
    UNITS.append((S_W1, V_OFF16, (k % 3) * 131072 + (k // 3) * 32768))
for k in range(12):
    UNITS.append((S_W2, V_OFF16, (k % 3) * 131072 + (k // 3) * 32768))
for u in range(4):
    UNITS.append((S_WF, V_OFF16, u * 32768))
for i in range(4):
    UNITS.append((S_WO, V_OFF32W, i * 32768))
UNITS.append((S_WO, V_OFF32, 14 * 8192))
UNITS.append((S_WO, V_OFF32, 15 * 8192))
U_C1, U_C2, U_F, U_O = 0, 12, 24, 28


def perms(unit, j, dst):
    R = slot(unit)
    d = j >> 1
    sel = S_SELHI if (j & 1) else S_SELLO
    return ["v_perm_b32 v%d, v%d, v%d, s%d" % (dst + p, R + 4 * (2 * p + 1) + d, R + 4 * (2 * p) + d, sel)
            for p in range(4)]


FBUF = TMP


def prime(unit):
    a.op("need", unit)
    for j in (0, 1):
        for s in perms(unit, j, FBUF + 4 * j):
            e(s)


def emit_units(units, nM, acc):
    for ui, u in enumerate(units):
        for s in u.get("pre", []):
            if isinstance(s, tuple) and s[0] == "call":
                s[1]()
            elif isinstance(s, tuple):
                a.op(s[0], s[1])
            else:
                e(s)
        e("s_waitcnt lgkmcnt(0)")
        areads = list(u.get("areads", []))
        un = u["unit"]
        for j in range(8):
            fill = []
            jt = j + 2
            if jt < 8:
                fill += perms(un, jt, FBUF + 4 * (jt & 3))
                if jt == 7:
                    fill.append(("free", un))
            elif not u["last"]:
                if j == 6:
                    fill.append(("need", un + 1))
                fill += perms(un + 1, jt - 8, FBUF + 4 * (jt & 3))
            if areads and j < 6:
                fill.append(areads.pop(0))
            fb = FBUF + 4 * (j & 3)
            k = 0
            for sl in range(nM):
                d = acc(sl, j)
                e("v_mfma_f32_16x16x32_bf16 %s, %s, %s, %s" % (ar(d), ar(u["aset"][sl]), vr(fb), ar(d)))
                take = 2 if sl < nM - 1 else len(fill) - k
                for s in fill[k:k + take]:
                    if isinstance(s, tuple):
                        a.op(s[0], s[1])
                    else:
                        e(s)
                k += take
        assert not areads


def zero_acc(base, n, zreg):
    for b in range(base, base + n, 16):
        e("v_mfma_f32_32x32x16_bf16 %s, %s, %s, 0" % (ar(b, 16), vr(zreg), vr(zreg)))


DEFER = []


def e_d(s_):
    e(s_)
    if DEFER:
        e(DEFER.pop(0))


def gelu_pairs(xs, ts):
    for x, t in zip(xs, ts):
        e("v_pk_mul_f32 %s, %s, %s" % (vr(t, 2), vr(x, 2), vr(x, 2)))
    for x, t in zip(xs, ts):
        e("v_pk_fma_f32 %s, %s, %s, %s" % (vr(t, 2), vr(t, 2), sr(S_C1), vr(V_C0, 2)))
    for x, t in zip(xs, ts):
        e("v_pk_mul_f32 %s, %s, %s" % (vr(t, 2), vr(x, 2), vr(t, 2)))
    for i, (x, t) in enumerate(zip(xs, ts)):
        e("v_exp_f32 v%d, v%d" % (t, t))
        (e_d if i & 1 else e)("v_exp_f32 v%d, v%d" % (t + 1, t + 1))
    for x, t in zip(xs, ts):
        e("v_pk_add_f32 %s, %s, %s" % (vr(t, 2), vr(t, 2), sr(S_ONE)))
    for i, (x, t) in enumerate(zip(xs, ts)):
        e("v_rcp_f32 v%d, v%d" % (t, t))
        (e_d if i & 1 else e)("v_rcp_f32 v%d, v%d" % (t + 1, t + 1))
    for x, t in zip(xs, ts):
        e("v_pk_mul_f32 %s, %s, %s" % (vr(t, 2), vr(x, 2), vr(t, 2)))
    assert not DEFER


def stamp():
    if not PROF:
        return
    i = NSTAMP[0]
    NSTAMP[0] += 1
    assert i < 60
    e("s_memtime s[98:99]")
    e("s_waitcnt lgkmcnt(0)")
    e("v_writelane_b32 v19, s98, %d" % i)


def stamp_store():
    if not PROF:
        return
    e("s_waitcnt vmcnt(0)")
    stamp()
    e("s_lshl_b32 s98, s2, 10")
    e("s_lshl_b32 s99, s%d, 8" % S_W)
    e("s_add_u32 s98, s98, s99")
    e("s_add_u32 s98, s98, 0x10000")
    e("v_lshlrev_b32 v17, 2, v%d" % V_LANE)
    e("v_add_u32 v17, s98, v17")
    e("global_store_dword v17, v19, %s" % sr(S_WSP))


V_XL = 13


def x_slice(sl_):
    sv = a.noins
    a.noins = 1
    for i in range(4):
        e("s_add_u32 s94, s92, %d" % (sl_ * 128 + i * 16384))
        e("s_add_u32 s95, s93, %d" % (sl_ * XS + i * 4 * XBP))
        e("v_add_u32 v%d, s94, v%d" % (V_W0 + (i & 1), V_XL))
        e("s_mov_b32 m0, s95")
        e("s_nop 0")
        a.vm("buffer_load_dwordx4 v%d, %s, 0 offen nt lds" % (V_W0 + (i & 1), sr(SRD_X, 4)))
    a.op("mark", "x%d" % sl_)
    a.noins = sv


def w1warm():
    e("s_lshr_b32 s94, s2, 3")
    e("s_and_b32 s94, s94, 31")
    e("s_lshl_b32 s94, s94, 2")
    e("s_add_u32 s94, s94, s%d" % S_W)
    e("s_mul_i32 s95, s94, 3072")
    e("v_lshlrev_b32 v28, 4, v%d" % V_LANE)
    e("v_add_u32 v28, s95, v28")
    for i in range(3):
        a.vm("global_load_dwordx4 a[252:255], v28, %s offset:%d" % (sr(S_W1), i * 1024))


def prologue():
    a.noins = 1
    e("s_cmp_ge_u32 s2, 252")
    e("s_cbranch_scc1 L_end")
    stamp()
    e("s_load_dwordx16 s[4:19], s[0:1], 0")
    e("s_load_dwordx2 %s, s[0:1], 64" % sr(S_DBG))
    e("s_load_dwordx2 %s, s[0:1], 72" % sr(S_WSP))
    e("v_lshrrev_b32 v20, 6, v0")
    e("v_and_b32 v%d, 63, v0" % V_LANE)
    e("s_sub_u32 s%d, s2, 2" % S_TILE)
    e("s_cmp_ge_u32 s%d, 125" % S_TILE)
    e("v_readfirstlane_b32 s%d, v20" % S_W)
    e("s_cselect_b32 s%d, 1, 0" % S_B)
    e("s_mul_i32 s%d, s%d, 125" % (S_T, S_B))
    e("s_sub_u32 s%d, s%d, s%d" % (S_T0, S_TILE, S_T))
    e("s_lshl_b32 s%d, s%d, 5" % (S_T0, S_T0))
    e("s_and_b32 s%d, s%d, 1" % (S_NH, S_W))
    e("s_lshr_b32 s%d, s%d, 1" % (S_KH, S_W))
    if CODEPF:
        e("s_getpc_b64 s[96:97]")
        a.lab("L_pc")
        e("s_lshr_b32 s94, s2, 3")
        e("s_and_b32 s94, s94, 31")
        e("s_lshl_b32 s94, s94, 2")
        e("s_add_u32 s94, s94, s%d" % S_W)
        e("s_min_u32 s94, s94, (L_end - L_pc) / 1024")
        e("s_lshl_b32 s94, s94, 10")
        e("v_lshlrev_b32 v21, 4, v%d" % V_LANE)
        e("v_add_u32 v21, s94, v21")
        a.vm("global_load_dwordx4 a[252:255], v21, s[96:97]")
    e("s_mov_b32 s%d, 0x05040100" % S_SELLO)
    e("s_mov_b32 s%d, 0x07060302" % S_SELHI)
    e("s_mov_b32 s%d, 0x%x" % (S_SCL, f32bits(TSC)))
    e("v_lshrrev_b32 v21, 4, v%d" % V_LANE)
    e("v_and_b32 v22, 15, v%d" % V_LANE)
    e("v_lshrrev_b32 v23, 5, v%d" % V_LANE)
    e("v_and_b32 v24, 31, v%d" % V_LANE)
    e("s_lshl_b32 s%d, s%d, 8" % (S_T, S_NH))
    e("s_lshl_b32 s%d, s%d, 14" % (S_T + 1, S_KH))
    e("s_add_u32 s%d, s%d, s%d" % (S_T, S_T, S_T + 1))
    e("v_lshlrev_b32 v25, 12, v21")
    e("v_lshl_add_u32 v25, v22, 4, v25")
    e("v_add_u32 v%d, s%d, v25" % (V_OFF16, S_T))
    e("v_lshrrev_b32 v26, 3, v%d" % V_LANE)
    e("v_and_b32 v25, 6, v26")
    e("v_and_b32 v27, 7, v%d" % V_LANE)
    e("v_xor_b32 v25, v25, v27")
    e("v_lshlrev_b32 v26, 9, v26")
    e("v_lshl_add_u32 v26, v25, 4, v26")
    e("v_lshlrev_b32 v25, 4, v%d" % V_LANE)
    e("s_mul_i32 s%d, s%d, %d" % (S_T, S_W, EX1S))
    e("s_add_u32 s%d, s%d, %d" % (S_T, S_T, EXB))
    e("v_add_u32 v%d, s%d, v25" % (V_EXW, S_T))
    e("s_xor_b32 s%d, s%d, 2" % (S_T + 1, S_W))
    e("s_mul_i32 s%d, s%d, %d" % (S_T, S_T + 1, EX1S))
    e("s_add_u32 s%d, s%d, %d" % (S_T, S_T, EXB))
    e("v_add_u32 v%d, s%d, v25" % (V_EXR, S_T))
    e("s_cmp_lt_u32 s2, 2")
    e("s_cbranch_scc1 L_prod")
    e("s_lshl_b32 s%d, s%d, 11" % (S_T, S_T0))
    e("s_sub_u32 s%d, s%d, 1536" % (S_T, S_T))
    e("s_lshl_b32 s%d, s%d, 7" % (S_T + 3, S_W))
    e("s_add_u32 s%d, s%d, s%d" % (S_T + 3, S_T + 3, S_T))
    e("s_add_u32 s%d, s%d, 65536" % (S_T + 3, S_T + 3))
    e("s_mul_i32 s%d, s%d, %d" % (S_T + 4, S_W, XS))
    e("s_add_u32 s%d, s%d, %d" % (S_T + 4, S_T + 4, 16 * XBP))
    e("s_lshl_b32 s%d, s%d, 12" % (S_T + 1, S_W))
    e("s_add_u32 s%d, s%d, s%d" % (S_T, S_T, S_T + 1))
    e("s_mul_i32 s%d, s%d, %d" % (S_T + 1, S_W, XBP))
    e("s_mul_i32 s%d, s%d, 8192000" % (S_T + 2, S_B))
    e("s_waitcnt lgkmcnt(0)")
    e("s_add_u32 s%d, s%d, s%d" % (SRD_X, S_X, S_T + 2))
    e("s_addc_u32 s%d, s%d, 0" % (SRD_X + 1, S_X + 1))
    e("s_and_b32 s%d, s%d, 0xffff" % (SRD_X + 1, SRD_X + 1))
    e("s_mov_b32 s%d, 8192000" % (SRD_X + 2))
    e("s_mov_b32 s%d, 0x00020000" % (SRD_X + 3))
    stamp()
    if W1WARM == 1:
        w1warm()
    e("v_add_u32 v27, s%d, v26" % (S_T + 3))
    e("s_mov_b32 m0, s%d" % (S_T + 4))
    e("s_nop 0")
    a.vm("buffer_load_dwordx4 v27, %s, 0 offen nt lds" % sr(SRD_X, 4))
    e("s_mov_b32 s92, s%d" % S_T)
    e("s_mov_b32 s93, s%d" % (S_T + 1))
    e("v_mov_b32 v%d, v26" % V_XL)
    x_slice(0)
    if W1WARM == 2:
        w1warm()
    a.op("flush", 0)
    stamp()
    a.noins = 0
    e("s_mov_b32 s%d, s%d" % (SRD_O, S_OUT))
    e("s_and_b32 s%d, s%d, 0xffff" % (SRD_O + 1, S_OUT + 1))
    e("s_mov_b32 s%d, 32768000" % (SRD_O + 2))
    e("s_mov_b32 s%d, 0x00020000" % (SRD_O + 3))
    e("s_mov_b32 s%d, s%d" % (SRD_WS, S_WSP))
    e("s_and_b32 s%d, s%d, 0xffff" % (SRD_WS + 1, S_WSP + 1))
    e("s_mov_b32 s%d, 32768" % (SRD_WS + 2))
    e("s_mov_b32 s%d, 0x00020000" % (SRD_WS + 3))
    e("s_mov_b32 s%d, 0x%x" % (S_C1, f32bits(GC1)))
    e("s_mov_b32 s%d, 0x%x" % (S_C1 + 1, f32bits(GC1)))
    e("s_mov_b32 s%d, 1.0" % S_ONE)
    e("s_mov_b32 s%d, 1.0" % (S_ONE + 1))
    e("s_mov_b32 s%d, 0" % S_FLAG)
    e("v_lshlrev_b32 v25, 12, v23")
    e("v_lshl_add_u32 v%d, v24, 4, v25" % V_OFF32)
    e("s_lshl_b32 s%d, s%d, 13" % (S_T, S_W))
    e("v_add_u32 v%d, s%d, v%d" % (V_OFF32W, S_T, V_OFF32))
    for i in range(4):
        e("v_mov_b32 v%d, 0" % (28 + i))
    e("s_nop 1")
    zero_acc(A_ACC1, 160, 28)
    e("s_or_b32 s%d, s%d, s%d" % (S_T, S_T0, S_KH))
    e("v_or_b32 v25, s%d, v21" % S_T)
    e("v_cmp_eq_u32 vcc, 0, v25")
    e("v_mov_b32 v25, 1.0")
    e("s_nop 1")
    e("v_cndmask_b32 v%d, v25, 0, vcc" % V_MASK)
    e("s_lshl_b32 s%d, s%d, 2" % (S_T, S_KH))
    e("v_add_u32 v25, s%d, v21" % S_T)
    e("s_mul_i32 s%d, s%d, 9216" % (S_T, S_KH))
    e("s_sub_u32 s%d, 9216, s%d" % (S_T + 1, S_T))
    for cls, dst in ((0, V_A0), (1, 15)):
        e("v_add_u32 v26, %d, v22" % cls)
        e("v_and_b32 v27, 3, v26")
        e("v_lshlrev_b32 v27, 1, v27")
        e("v_lshrrev_b32 v26, 2, v26")
        e("v_mul_u32_u24 v26, %d, v26" % XBP)
        e("v_lshl_add_u32 v26, v27, 7, v26")
        e("v_xor_b32 v27, v27, v25")
        e("v_lshl_add_u32 v26, v27, 4, v26")
        e("v_add_u32 v%d, s%d, v26" % (dst, S_T))
        e("v_add_u32 v%d, s%d, v26" % (dst + 1, S_T + 1))
        e("v_add_u32 v%d, 0x%x, v26" % (dst + 2, 18432))
    a.op("needmark", "x0")
    e("s_barrier")


def warmup():
    if not WARM:
        return
    e("s_lshr_b32 s94, s2, 3")
    e("s_and_b32 s94, s94, 31")
    e("s_lshl_b32 s94, s94, 2")
    e("s_add_u32 s94, s94, s%d" % S_W)
    e("v_lshlrev_b32 v%d, 4, v%d" % (V_W1, V_LANE))
    e("s_mul_i32 s95, s94, 3072")
    e("v_add_u32 v%d, s95, v%d" % (V_W0, V_W1))
    for i in range(3):
        a.vm("global_load_dwordx4 a[252:255], v%d, %s offset:%d" % (V_W0, sr(S_W2), i * 1024))
    e("s_lshl_b32 s95, s94, 10")
    e("v_add_u32 v%d, s95, v%d" % (V_W0, V_W1))
    a.vm("global_load_dwordx4 a[252:255], v%d, %s" % (V_W0, sr(S_WF)))
    a.vm("global_load_dwordx4 a[252:255], v%d, %s" % (V_W0, sr(S_WO)))


def producer():
    a.lab("L_prod")
    e("s_lshl_b32 s%d, s2, 12" % S_T)
    e("s_lshl_b32 s%d, s%d, 6" % (S_T + 1, S_KH))
    e("s_add_u32 s%d, s%d, s%d" % (S_T, S_T, S_T + 1))
    e("v_lshlrev_b32 v25, 9, v22")
    e("v_lshl_add_u32 v25, v21, 4, v25")
    e("v_add_u32 v25, s%d, v25" % S_T)
    e("s_waitcnt lgkmcnt(0)")
    e("s_mov_b32 s%d, s%d" % (SRD_G, S_G))
    e("s_and_b32 s%d, s%d, 0xffff" % (SRD_G + 1, S_G + 1))
    e("s_mov_b32 s%d, 8192" % (SRD_G + 2))
    e("s_mov_b32 s%d, 0x00020000" % (SRD_G + 3))
    for u in range(4):
        e("buffer_load_dwordx4 %s, v25, %s, 0 offen offset:%d" % (ar(A_GF + 4 * u), sr(SRD_G, 4), u * 128))
    for u in range(4):
        e("v_add_u32 v%d, 0x%x, v%d" % (V_LD, u * 32768, V_OFF16))
        for i in range(8):
            e("global_load_dwordx4 %s, v%d, %s offset:%d" % (vr(slot(u) + 4 * i), V_LD, sr(S_WG), i * 512))
    for i in range(4):
        e("v_mov_b32 v%d, 0" % (28 + i))
    e("s_nop 1")
    zero_acc(A_ACCG, 32, 28)
    e("s_waitcnt vmcnt(0)")
    for u in range(4):
        for j in range(8):
            for s_ in perms(u, j, FBUF + 4 * (j & 3)):
                e(s_)
            e("s_nop 1")
            d = A_ACCG + 4 * j
            e("v_mfma_f32_16x16x32_bf16 %s, %s, %s, %s" % (ar(d), ar(A_GF + 4 * u), vr(FBUF + 4 * (j & 3)), ar(d)))
    e("s_nop 7")
    e("s_nop 1")
    for j in range(8):
        e("ds_write_b128 v%d, %s offset:%d" % (V_EXW, ar(A_ACCG + 4 * j), j * 1024))
    e("v_lshrrev_b32 v20, 4, v%d" % V_LANE)
    e("v_and_b32 v21, 15, v%d" % V_LANE)
    e("v_and_b32 v20, 1, v20")
    e("v_lshlrev_b32 v20, 12, v20")
    e("v_lshl_add_u32 v20, v21, 5, v20")
    e("s_lshl_b32 s%d, s%d, 9" % (S_T, S_NH))
    e("s_lshl_b32 s%d, s2, 14" % (S_T + 1))
    e("s_add_u32 s%d, s%d, s%d" % (S_T, S_T, S_T + 1))
    e("v_add_u32 v%d, s%d, v20" % (V_W0, S_T))
    e("v_add_u32 v%d, 0x2000, v%d" % (V_A0, V_W0))
    e("v_mov_b32 v%d, 0" % V_W1)
    e("s_waitcnt lgkmcnt(0)")
    e("s_barrier")
    for j in range(8):
        e("ds_read_b128 %s, v%d offset:%d" % (vr(TMP + 4 * j), V_EXR, j * 1024))
    T = TMP + 32
    R = RING
    e("s_waitcnt lgkmcnt(0)")
    for j in range(8):
        P = TMP + 4 * j
        for r in range(4):
            e("v_accvgpr_read_b32 v%d, a%d" % (T + r, A_ACCG + 4 * j + r))
        e("v_pk_add_f32 %s, %s, %s" % (vr(P, 2), vr(P, 2), vr(T, 2)))
        e("v_pk_add_f32 %s, %s, %s" % (vr(P + 2, 2), vr(P + 2, 2), vr(T + 2, 2)))
        e("v_cvt_pk_bf16_f32 v%d, v%d, v%d" % (T, P, P + 1))
        e("v_cvt_pk_bf16_f32 v%d, v%d, v%d" % (T + 1, P + 2, P + 3))
        e("v_lshlrev_b32 v%d, 16, v%d" % (P, T))
        e("v_and_b32 v%d, 0xffff0000, v%d" % (P + 1, T))
        e("v_lshlrev_b32 v%d, 16, v%d" % (P + 2, T + 1))
        e("v_and_b32 v%d, 0xffff0000, v%d" % (P + 3, T + 1))
        for r in range(4):
            e("v_mul_f32 v%d, s%d, v%d" % (R + 8 * r + j, S_SCL, P + r))
        e("v_max3_f32 v%d, |v%d|, |v%d|, v%d" % (V_W1, R + j, R + 8 + j, V_W1))
        e("v_max3_f32 v%d, |v%d|, |v%d|, v%d" % (V_W1, R + 16 + j, R + 24 + j, V_W1))
        for r in range(4):
            e("v_exp_f32 v%d, v%d" % (R + 32 + 8 * r + j, R + 8 * r + j))
    e("v_mov_b32 v%d, 0x42fa0000" % T)
    e("s_mov_b32 exec_hi, 0")
    e("v_cmp_nle_f32 vcc, v%d, v%d" % (V_W1, T))
    for r in range(4):
        for hh in range(2):
            e("global_store_dwordx4 v%d, %s, %s offset:%d sc0 sc1" % (V_W0, vr(R + 32 + 8 * r + 4 * hh), sr(S_WSP), r * 1024 + hh * 16))
            e("global_store_dwordx4 v%d, %s, %s offset:%d sc0 sc1" % (V_A0, vr(R + 8 * r + 4 * hh), sr(S_WSP), r * 1024 + hh * 16))
    e("s_mov_b64 exec, -1")
    e("s_or_b32 s%d, vcc_lo, vcc_hi" % S_FLAG)
    e("s_cmp_lg_u32 s%d, 0" % S_FLAG)
    e("s_cselect_b32 s%d, 3, 1" % S_FLAG)
    e("s_lshl_b32 s%d, s2, 4" % S_T)
    e("s_lshl_b32 s%d, s%d, 2" % (S_T + 1, S_W))
    e("s_add_u32 s%d, s%d, s%d" % (S_T, S_T, S_T + 1))
    e("v_mov_b32 v20, s%d" % S_T)
    e("v_mov_b32 v21, s%d" % S_FLAG)
    e("s_waitcnt vmcnt(0)")
    e("s_mov_b32 exec_lo, 1")
    e("s_mov_b32 exec_hi, 0")
    e("global_store_dword v20, v21, %s sc0 sc1" % sr(S_DBG))
    e("s_endpgm")


def flag_issue():
    e("s_lshl_b32 s%d, s%d, 4" % (S_T, S_B))
    e("v_mov_b32 v15, s%d" % S_T)
    a.vm("global_load_dwordx4 v[60:63], v15, %s sc0 sc1" % sr(S_DBG))
    a.op("mark", "flag")


def eb_dma(wsoff):
    e("s_lshl_b32 s%d, s%d, 14" % (S_T, S_B))
    e("s_lshl_b32 s%d, s%d, 11" % (S_T + 1, S_W))
    e("s_add_u32 s%d, s%d, s%d" % (S_T, S_T, S_T + 1))
    e("s_add_u32 s%d, s%d, %d" % (S_T, S_T, wsoff))
    e("v_lshlrev_b32 v16, 4, v%d" % V_LANE)
    e("v_add_u32 v16, s%d, v16" % S_T)
    e("s_add_u32 s%d, s%d, %d" % (S_T + 1, S_T + 1, EBB))
    e("s_mov_b32 m0, s%d" % (S_T + 1))
    e("s_nop 0")


def flag_check():
    a.op("needmark", "flag")
    sv = a.noins
    a.noins = 1
    a.lab("L_flag_chk")
    e("v_min_u32 v16, v60, v61")
    e("v_min3_u32 v16, v62, v63, v16")
    e("v_or3_b32 v17, v60, v61, v62")
    e("v_or_b32 v17, v17, v63")
    e("v_readfirstlane_b32 s%d, v16" % (S_T))
    e("v_readfirstlane_b32 s%d, v17" % (S_T + 1))
    e("s_nop 3")
    e("s_cmp_lg_u32 s%d, 0" % S_T)
    e("s_cbranch_scc1 L_flag_ok")
    a.op("rare", 1)
    e("s_sleep 4")
    e("global_load_dwordx4 v[60:63], v15, %s sc0 sc1" % sr(S_DBG))
    e("s_waitcnt vmcnt(0)")
    e("s_branch L_flag_chk")
    a.op("rare", 0)
    a.lab("L_flag_ok")
    e("s_and_b32 s%d, s%d, 2" % (S_FLAG, S_T + 1))
    eb_dma(0)
    a.vm("buffer_load_dwordx4 v16, %s, 0 offen sc0 sc1 lds" % sr(SRD_WS, 4))
    a.vm("buffer_load_dwordx4 v16, %s, 0 offen offset:1024 sc0 sc1 lds" % sr(SRD_WS, 4))
    a.op("mark", "eb")
    a.noins = sv


TAPH = [0, HP, 2 * HP]


def c1_areads(k, aset):
    tap = k % 3
    out = []
    for sl in range(5):
        b0 = V_A0 if tap < 2 else 15
        base = b0 if sl < 2 else (b0 + 1 if sl < 4 else b0 + 2)
        off = ((sl & 1) * 4608 if sl < 4 else 0) + (128 if tap == 1 else 0)
        out.append("ds_read_b128 %s, v%d offset:%d" % (ar(aset + 4 * sl), base, off))
    return out


def c2_areads(k, aset):
    tap, sl_ = k % 3, k // 3
    return ["ds_read_b128 %s, v%d offset:%d" % (ar(aset + 4 * sl), V_A0 + sl, HB + TAPH[tap] + sl_ * 128)
            for sl in range(2)]


def conv_phase(u0, nM, acc, areads_fn, isx):
    A_AF, AST = (160, 20) if isx else (232, 8)
    for s in areads_fn(0, A_AF):
        e(s)
    prime(u0)
    units = []
    for k in range(12):
        nk = k + 1
        pre = []
        if isx and k % 3 == 2 and k < 11:
            pre = [("needmark", "x%d" % (k // 3 + 1)), "s_barrier"]
            pre += ["v_add_u32 v%d, 0x%x, v%d" % (r, XS, r) for r in (V_A0, V_A1, V_A2)]
        if isx and k % 3 == 0 and k > 0:
            pre = ["v_add_u32 v%d, 0x%x, v%d" % (r, XS, r) for r in (15, 16, 17)]
        if isx and PROF == "2":
            pre = pre + [("call", stamp)]
        units.append(dict(unit=u0 + k, aset=[A_AF + AST * (k & 1) + 4 * s for s in range(nM)], last=(k == 11), pre=pre,
                          areads=(areads_fn(nk, A_AF + AST * (nk & 1)) if k < 11 else [])))
    emit_units(units, nM, acc)


def lane_fields():
    e("v_lshrrev_b32 v16, 4, v%d" % V_LANE)
    e("v_and_b32 v17, 15, v%d" % V_LANE)


P0, P1 = TMP, TMP + 8
TT = TMP + 16
OWN = TMP + 24
OUTR = TMP + 28


def add_own(P, accbase):
    for i in range(0, 8, 4):
        for k in range(4):
            e("v_accvgpr_read_b32 v%d, a%d" % (OWN + k, accbase + i + k))
        e("v_pk_add_f32 %s, %s, %s" % (vr(P + i, 2), vr(P + i, 2), vr(OWN, 2)))
        e("v_pk_add_f32 %s, %s, %s" % (vr(P + i + 2, 2), vr(P + i + 2, 2), vr(OWN + 2, 2)))


def epi_gelu_slot(accbase, rdoff, nblocks_after, wr, mask):
    for jp in range(4):
        P = P0 if (jp & 1) == 0 else P1
        Pn = P1 if (jp & 1) == 0 else P0
        nxt = rdoff + (2 * jp + 2) * 1024
        more = jp < 3 or nblocks_after
        if more:
            e("ds_read_b128 %s, v%d offset:%d" % (vr(Pn), V_EXR, nxt))
            e("ds_read_b128 %s, v%d offset:%d" % (vr(Pn + 4), V_EXR, nxt + 1024))
            e("s_waitcnt lgkmcnt(2)")
        else:
            e("s_waitcnt lgkmcnt(0)")
        add_own(P, accbase + 8 * jp)
        gelu_pairs([P, P + 2, P + 4, P + 6], [TT, TT + 2, TT + 4, TT + 6])
        if mask:
            e("v_mul_f32 v%d, v%d, v%d" % (TT, V_MASK, TT))
            e("v_mul_f32 v%d, v%d, v%d" % (TT + 4, V_MASK, TT + 4))
        for r in range(4):
            e("v_cvt_pk_bf16_f32 v%d, v%d, v%d" % (OUTR + 4 * r + jp, TT + r, TT + 4 + r))
    for r in range(4):
        if nblocks_after:
            DEFER.append(wr(r))
        else:
            e(wr(r))


def epi1():
    a.c("---- epilogue conv1 ----")
    a.op("pace", PACE)
    a.op("aslot", 160)
    e("v_mov_b32 v%d, 0x%x" % (V_C0, f32bits(GC0)))
    e("v_mov_b32 v%d, 0x%x" % (V_C0 + 1, f32bits(GC0)))
    e("s_nop 7")
    e("s_nop 1")
    for j in range(8):
        e("v_accvgpr_read_b32 v%d, a%d" % (TMP + j, A_ACC1 + 128 + 4 * j))
    for i in range(16):
        e("ds_write_b128 v%d, %s offset:%d" % (V_EXW, ar(A_ACC1 + 64 + 4 * i), i * 1024))
    e("ds_write_b128 v%d, %s offset:%d" % (V_EXW, vr(TMP), 16384))
    e("ds_write_b128 v%d, %s offset:%d" % (V_EXW, vr(TMP + 4), 17408))
    lane_fields()
    e("s_mul_i32 s%d, s%d, %d" % (S_T, S_KH, 32 * HP))
    e("s_lshl_b32 s%d, s%d, 8" % (S_T + 1, S_NH))
    e("v_mul_u32_u24 v16, %d, v16" % (4 * HP))
    e("v_lshl_add_u32 v17, v17, 4, s%d" % (S_T + 1))
    e("v_add3_u32 v%d, v16, v17, s%d" % (V_W0, S_T))
    e("v_add_u32 v%d, 0x%x, v17" % (V_W1, HB + 64 * HP))
    for i in range(4):
        e("v_mov_b32 v%d, 0" % (TT + i))
    e("s_waitcnt lgkmcnt(0)")
    e("s_nop 1")
    zero_acc(A_ACC2, 64, TT)
    e("s_barrier")
    e("ds_read_b128 %s, v%d offset:0" % (vr(P0), V_EXR))
    e("ds_read_b128 %s, v%d offset:1024" % (vr(P0 + 4), V_EXR))
    for sl in range(2):
        epi_gelu_slot(A_ACC1 + 32 * sl, sl * 8192, True,
                      lambda r, sl=sl: "ds_write_b128 v%d, %s offset:%d" % (V_W0, vr(OUTR + 4 * r), HB + (16 * sl + r) * HP),
                      sl == 0)
    e("s_waitcnt lgkmcnt(0)")
    for j in range(8):
        e("v_accvgpr_read_b32 v%d, a%d" % (TT + j, A_ACC1 + 128 + 4 * j))
    for i in range(0, 8, 2):
        e("v_pk_add_f32 %s, %s, %s" % (vr(P0 + i, 2), vr(P0 + i, 2), vr(TT + i, 2)))
    a.op("aslot", 128)
    gelu_pairs([P0, P0 + 2, P0 + 4, P0 + 6], [TT, TT + 2, TT + 4, TT + 6])
    for i in range(4):
        e("v_cvt_pk_bf16_f32 v%d, v%d, v%d" % (P1 + i, TT + 2 * i, TT + 2 * i + 1))
    a.noins = 1
    e("s_mov_b32 exec_lo, 0xffff")
    e("s_mov_b32 exec_hi, 0")
    e("ds_write_b128 v%d, %s" % (V_W1, vr(P1)))
    e("s_mov_b64 exec, -1")
    a.noins = 0
    lane_fields()
    e("s_lshl_b32 s%d, s%d, 6" % (S_T, S_KH))
    e("v_mul_u32_u24 v17, %d, v17" % (2 * HP))
    e("v_lshl_add_u32 v17, v16, 4, v17")
    e("v_add_u32 v17, s%d, v17" % S_T)
    e("s_mul_i32 s%d, s%d, %d" % (S_T, S_KH, 32 * HP))
    e("v_add_u32 v%d, s%d, v17" % (V_A0, S_T))
    e("s_sub_u32 s%d, %d, s%d" % (S_T, 32 * HP, S_T))
    e("v_add_u32 v%d, s%d, v17" % (V_A1, S_T))
    e("v_lshlrev_b32 v16, 4, v%d" % V_LANE)
    e("s_lshl_b32 s%d, s%d, 13" % (S_T, S_W))
    e("s_add_u32 s%d, s%d, %d" % (S_T, S_T, EXB))
    e("v_add_u32 v%d, s%d, v16" % (V_EXW, S_T))
    e("s_xor_b32 s%d, s%d, 2" % (S_T, S_W))
    e("s_lshl_b32 s%d, s%d, 13" % (S_T, S_T))
    e("s_add_u32 s%d, s%d, %d" % (S_T, S_T, EXB))
    e("v_add_u32 v%d, s%d, v16" % (V_EXR, S_T))
    e("s_waitcnt lgkmcnt(0)")
    e("s_barrier")


def epi2():
    a.c("---- epilogue conv2 ----")
    flag_check()
    for i in range(8):
        e("ds_write_b128 v%d, %s offset:%d" % (V_EXW, ar(A_ACC2 + 32 + 4 * i), i * 1024))
    lane_fields()
    e("s_mul_i32 s%d, s%d, %d" % (S_T, S_KH, 16 * FP))
    e("s_lshl_b32 s%d, s%d, 8" % (S_T + 1, S_NH))
    e("v_mul_u32_u24 v16, %d, v16" % (4 * FP))
    e("v_lshl_add_u32 v17, v17, 4, s%d" % (S_T + 1))
    e("v_add3_u32 v%d, v16, v17, s%d" % (V_W0, S_T))
    for i in range(4):
        e("v_mov_b32 v%d, 0" % (TT + i))
    e("s_nop 1")
    zero_acc(A_ACC3, 64, TT)
    e("s_waitcnt lgkmcnt(0)")
    e("s_barrier")
    e("ds_read_b128 %s, v%d offset:0" % (vr(P0), V_EXR))
    e("ds_read_b128 %s, v%d offset:1024" % (vr(P0 + 4), V_EXR))
    epi_gelu_slot(A_ACC2, 0, False,
                  lambda r: "ds_write_b128 v%d, %s offset:%d" % (V_W0, vr(OUTR + 4 * r), FB + r * FP), False)
    lane_fields()
    e("s_lshl_b32 s%d, s%d, 6" % (S_T, S_KH))
    e("s_add_u32 s%d, s%d, %d" % (S_T, S_T, FB))
    e("v_mul_u32_u24 v17, %d, v17" % FP)
    e("v_lshl_add_u32 v17, v16, 4, v17")
    e("v_add_u32 v17, s%d, v17" % S_T)
    e("s_mul_i32 s%d, s%d, %d" % (S_T, S_KH, 16 * FP))
    e("v_add_u32 v%d, s%d, v17" % (V_A0, S_T))
    e("s_sub_u32 s%d, %d, s%d" % (S_T, 16 * FP, S_T))
    e("v_add_u32 v%d, s%d, v17" % (V_A1, S_T))
    e("s_waitcnt lgkmcnt(0)")
    e("s_barrier")


def f_areads(u, aset):
    return ["ds_read_b128 %s, v%d offset:%d" % (ar(aset + 4 * sl), V_A0 + sl, u * 128) for sl in range(2)]


def phase_f():
    a.c("---- fe ----")
    A_AF = 232
    for s in f_areads(0, A_AF):
        e(s)
    prime(U_F)
    units = []
    for u in range(4):
        units.append(dict(unit=U_F + u, aset=[A_AF + 8 * (u & 1) + 4 * s for s in range(2)], last=(u == 3),
                          areads=(f_areads(u + 1, A_AF + 8 * ((u + 1) & 1)) if u < 3 else [])))
    emit_units(units, 2, lambda sl, j: A_ACC3 + (sl * 8 + j) * 4)


def epi3_body(raw):
    e("ds_read_b128 %s, v%d offset:0" % (vr(P0), V_EXR))
    e("ds_read_b128 %s, v%d offset:1024" % (vr(P0 + 4), V_EXR))
    for jp in range(4):
        P = P0 if (jp & 1) == 0 else P1
        Pn = P1 if (jp & 1) == 0 else P0
        if jp < 3:
            e("ds_read_b128 %s, v%d offset:%d" % (vr(Pn), V_EXR, (2 * jp + 2) * 1024))
            e("ds_read_b128 %s, v%d offset:%d" % (vr(Pn + 4), V_EXR, (2 * jp + 3) * 1024))
            e("s_waitcnt lgkmcnt(2)")
        else:
            e("s_waitcnt lgkmcnt(0)")
        add_own(P, A_ACC3 + 8 * jp)
        for i in range(4):
            e("v_cvt_pk_bf16_f32 v%d, v%d, v%d" % (TT + i, P + 2 * i, P + 2 * i + 1))
        for i in range(4):
            e("v_lshlrev_b32 v%d, 16, v%d" % (P + 2 * i, TT + i))
            e("v_and_b32 v%d, 0xffff0000, v%d" % (P + 2 * i + 1, TT + i))
        for i in range(8):
            e("v_mul_f32 v%d, s%d, v%d" % (P + i, S_SCL, P + i))
        if not raw:
            for i in range(4):
                e("v_max3_f32 v%d, |v%d|, |v%d|, v%d" % (V_W1, P + 2 * i, P + 2 * i + 1, V_W1))
        for jj in range(2):
            for r in range(4):
                d = OUTR + 4 * r + (jp & 1) * 2 + jj
                if raw:
                    e("v_mov_b32 v%d, v%d" % (d, P + 4 * jj + r))
                else:
                    e("v_exp_f32 v%d, v%d" % (d, P + 4 * jj + r))
        if jp & 1:
            e("s_nop 0")
            for r in range(4):
                e("ds_write_b128 v%d, %s offset:%d" % (V_W0, vr(OUTR + 4 * r), r * EAP + (jp >> 1) * 16))


def epi3():
    a.c("---- epilogue fe ----")
    e("s_nop 7")
    e("s_nop 1")
    for i in range(8):
        e("ds_write_b128 v%d, %s offset:%d" % (V_EXW, ar(A_ACC3 + 32 + 4 * i), i * 1024))
    lane_fields()
    e("s_mul_i32 s%d, s%d, %d" % (S_T, S_KH, 16 * EAP))
    e("s_add_u32 s%d, s%d, %d" % (S_T, S_T, EAB))
    e("s_lshl_b32 s%d, s%d, 9" % (S_T + 1, S_NH))
    e("v_mul_u32_u24 v16, %d, v16" % (4 * EAP))
    e("v_lshl_add_u32 v17, v17, 5, s%d" % (S_T + 1))
    e("v_add3_u32 v%d, v16, v17, s%d" % (V_W0, S_T))
    e("v_mov_b32 v%d, 0" % V_W1)
    e("s_waitcnt lgkmcnt(0)")
    e("s_barrier")
    epi3_body(False)
    e("v_mov_b32 v16, 0x42fa0000")
    e("v_cmp_nle_f32 vcc, v%d, v16" % V_W1)
    e("s_lshl_b32 s%d, s%d, 2" % (S_T, S_W))
    e("s_add_u32 s%d, s%d, %d" % (S_T, S_T, FLG))
    e("s_or_b32 s%d, s%d, vcc_lo" % (S_FLAG, S_FLAG))
    e("s_or_b32 s%d, s%d, vcc_hi" % (S_FLAG, S_FLAG))
    e("v_mov_b32 v16, s%d" % S_T)
    e("v_mov_b32 v17, s%d" % S_FLAG)
    e("ds_write_b32 v16, v17")
    e("s_waitcnt lgkmcnt(0)")
    e("s_barrier")
    e("v_mov_b32 v16, 0x%x" % FLG)
    e("ds_read_b128 %s, v16" % vr(TMP))
    e("s_waitcnt lgkmcnt(0)")
    e("v_or3_b32 v16, v%d, v%d, v%d" % (TMP, TMP + 1, TMP + 2))
    e("v_or_b32 v16, v16, v%d" % (TMP + 3))
    e("s_nop 0")
    e("v_readfirstlane_b32 s%d, v16" % S_FLAG)
    e("s_nop 3")
    e("s_cmp_eq_u32 s%d, 0" % S_FLAG)
    e("s_cbranch_scc1 L_fast1")
    a.noins = 1
    a.op("rare", 1)
    epi3_body(True)
    e("s_waitcnt vmcnt(0)")
    e("s_barrier")
    eb_dma(8192)
    e("buffer_load_dwordx4 v16, %s, 0 offen sc0 sc1 lds" % sr(SRD_WS, 4))
    e("buffer_load_dwordx4 v16, %s, 0 offen offset:1024 sc0 sc1 lds" % sr(SRD_WS, 4))
    e("s_waitcnt vmcnt(0) lgkmcnt(0)")
    e("s_barrier")
    a.op("rare", 0)
    a.lab("L_fast1")
    a.noins = 0


ZL = []
OACC = 64


def phase_wo():
    a.c("---- w_o fragments ----")
    e("v_lshlrev_b32 v16, 4, v%d" % V_LANE)
    e("s_lshl_b32 s%d, s%d, 13" % (S_T, S_W))
    e("v_add_u32 v16, s%d, v16" % S_T)
    for i in range(4):
        e("v_mov_b32 v%d, 0" % (60 + i))
    zl = ["v_mfma_f32_32x32x16_bf16 %s, %s, %s, 0" % (ar(OACC + 16 * n, 16), vr(60), vr(60)) for n in range(8)]
    e("v_add_u32 v17, 0x10000, v16")
    lag = []

    def wo_unit(i):
        a.op("need", U_O + i)
        for n in range(8):
            dst = TMP + 4 * n
            for k_, s_ in enumerate(perms(U_O + i, n, dst)):
                e(s_)
                if k_ == 1 and len(lag) >= 4:
                    e(lag.pop(0))
            lag.append("ds_write_b128 v%d, %s offset:%d" % (16 + (i >> 1), vr(dst), (i & 1) * 32768 + n * 1024))

    for i in range(3):
        wo_unit(i)
    while lag:
        e(lag.pop(0))
    a.op("flush", len(UNITS) - 1)
    a.noins = 1
    e("s_cmp_ge_u32 s%d, 2" % S_W)
    e("s_cbranch_scc1 L_wo_skip")
    e("s_nop 4")
    wo_unit(3)
    while lag:
        e(lag.pop(0))
    a.lab("L_wo_skip")
    for i in (4, 5):
        a.op("need", U_O + i)
        for n in range(8):
            for s in perms(U_O + i, n, 192 + 32 * (i - 4) + 4 * n):
                e(s)
    for n in range(8):
        e("v_mfma_f32_32x32x16_bf16 %s, %s, %s, 0" % (vr(OACC + 16 * n, 16), vr(60), vr(60)))
    e("s_waitcnt lgkmcnt(0)")
    e("s_barrier")
    ZL.extend(zl)


EA = [20, 28]
EB = [36, 44]
JF = [52, 56]
V_EA, V_EB, V_B, V_ST = 4, 5, 6, 7
BB = [0, 32]
STG = [8, 60]


def out_valu(par, slow):
    ea, eb, jf = EA[par], EB[par], JF[par]
    v = []
    if os.environ.get("EXP") == "novalu":
        return ["v_cvt_pk_bf16_f32 v%d, v%d, v%d" % (jf + i, ea + 2 * i, ea + 2 * i + 1) for i in range(4)]
    if slow:
        for i in range(8):
            v.append("v_add_f32 v%d, v%d, v%d" % (ea + i, ea + i, eb + i))
        for i in range(8):
            v.append("v_exp_f32 v%d, v%d" % (ea + i, ea + i))
        for i in range(8):
            v.append("v_add_f32 v%d, 1.0, v%d" % (ea + i, ea + i))
    elif PK:
        for i in range(0, 8, 2):
            v.append("v_pk_fma_f32 %s, %s, %s, %s" % (vr(ea + i, 2), vr(ea + i, 2), vr(eb + i, 2), sr(S_ONE)))
    else:
        for i in range(8):
            v.append("v_fma_f32 v%d, v%d, v%d, 1.0" % (ea + i, ea + i, eb + i))
    for i in range(8):
        v.append("v_rcp_f32 v%d, v%d" % (ea + i, ea + i))
    if PK:
        for i in range(0, 8, 2):
            v.append("v_pk_fma_f32 %s, %s, %s, %s" % (vr(ea + i, 2), vr(ea + i, 2), vr(V_C0, 2), sr(S_ONE)))
    else:
        for i in range(8):
            v.append("v_fma_f32 v%d, v%d, -2.0, 1.0" % (ea + i, ea + i))
    for i in range(4):
        v.append("v_cvt_pk_bf16_f32 v%d, v%d, v%d" % (jf + i, ea + 2 * i, ea + 2 * i + 1))
    return v


def out_eloads(par, off):
    return ["ds_read_b128 %s, v%d offset:%d" % (vr(EA[par]), V_EA, off),
            "ds_read_b128 %s, v%d offset:%d" % (vr(EA[par] + 4), V_EA, off + 16),
            "ds_read_b128 %s, v%d offset:%d" % (vr(EB[par]), V_EB, off),
            "ds_read_b128 %s, v%d offset:%d" % (vr(EB[par] + 4), V_EB, off + 16)]


def out_bloads(par, off):
    if os.environ.get("EXP") == "halfb":
        return ["ds_read_b64 %s, v%d offset:%d" % (ar(BB[par] + 4 * n, 2), V_B, off + n * 1024) for n in range(8)]
    if os.environ.get("EXP") == "vb":
        return ["ds_read_b128 %s, v%d offset:%d" % (vr(192 + 32 * par + 4 * n), V_B, off + n * 1024) for n in range(8)]
    return ["ds_read_b128 %s, v%d offset:%d" % (ar(BB[par] + 4 * n), V_B, off + n * 1024) for n in range(8)]


def store_group(par, rstatic=None):
    st = STG[par]
    g = []
    if rstatic is None:
        g.append("s_set_gpr_idx_on s%d, 0x3" % S_R)
        g.append("s_nop 0")
        r = 0
    else:
        r = rstatic
    for i in range(4):
        g.append("v_cvt_pk_bf16_f32 v%d, v%d, v%d" % (st + i, OACC + 16 * (2 * i) + r, OACC + 16 * (2 * i + 1) + r))
    if rstatic is None:
        g.append("s_set_gpr_idx_off")
        g.append("s_add_u32 s%d, s%d, 1" % (S_R, S_R))
    g.append("buffer_store_dwordx4 %s, v%d, %s, s%d offen%s" % (vr(st), V_ST, sr(SRD_O, 4), S_SO, STMOD))
    return g


def out_kstep(par, bsrc, accf, valu, loads, stg=None, prev_b=8):
    gaps = [[] for _ in range(8)]
    nl = [2, 1, 2, 1, 2, 1, 2, 1]
    li = 0
    issued = [0] * 9
    for n in range(8):
        for _ in range(nl[n]):
            if li < len(loads):
                gaps[n].append(loads[li]); li += 1
        issued[n + 1] = li
    budget = [24 - 4 * len(gaps[n]) for n in range(8)]
    if stg:
        gaps[3] = gaps[3] + list(stg)
        budget[3] = 0
    vi = 0
    for n in range(8):
        c = 0
        while vi < len(valu) and (c < budget[n] or n == 7):
            gaps[n].append(valu[vi]); c += a.cost(valu[vi]); vi += 1
    for n in range(8):
        if n % 2 == 0:
            if prev_b:
                e("s_waitcnt lgkmcnt(%d)" % (prev_b - (n + 2) + issued[n]))
            elif n == 0:
                e("s_waitcnt lgkmcnt(0)")
            if n == 0:
                e("s_nop 0")
        d = accf(n)
        e("v_mfma_f32_32x32x16_bf16 %s, %s, %s, %s" % (d, vr(JF[par]), bsrc(n), d))
        for s in gaps[n]:
            e(s)


def out_pass(tag, slow, second):
    accf = (lambda n: ar(OACC + 16 * n, 16)) if second else (lambda n: vr(OACC + 16 * n, 16))
    e("v_lshrrev_b32 v16, 5, v%d" % V_LANE)
    e("v_and_b32 v17, 31, v%d" % V_LANE)
    e("v_mul_u32_u24 v%d, %d, v17" % (V_EA, EAP))
    e("v_lshl_add_u32 v%d, v16, 5, v%d" % (V_EA, V_EA))
    e("v_add_u32 v%d, 0x%x, v%d" % (V_EA, EAB, V_EA))
    e("s_lshl_b32 s%d, s%d, 11" % (S_T, S_W))
    e("s_add_u32 s%d, s%d, %d" % (S_T, S_T, EBB + (1024 if second else 0)))
    e("v_lshlrev_b32 v%d, 5, v16" % V_EB)
    e("v_add_u32 v%d, s%d, v%d" % (V_EB, S_T, V_EB))
    e("v_lshlrev_b32 v%d, 4, v%d" % (V_B, V_LANE))
    for s in out_eloads(0, 0) + out_eloads(1, 64):
        e(s)
    e("s_waitcnt lgkmcnt(4)")
    for s in out_bloads(0, 0):
        e(s)
    if not second:
        for s in ZL:
            e(s)
    for s in out_valu(0, slow):
        e(s)
    e("s_mov_b32 s%d, 0" % S_CNT)
    if second:
        e("s_mov_b32 s%d, 0" % S_R)
        e("s_mov_b32 s%d, s%d" % (S_SO, S_OBASE))
    lab = "L_ok_%s%d" % (tag, int(second))
    a.lab(lab)
    sg0 = sg1 = None
    if second:
        sg0 = store_group(0) + ["s_add_u32 s%d, s%d, 4096" % (S_SO, S_SO)]
        sg1 = store_group(1) + ["s_and_b32 s%d, s%d, 1" % (S_T, S_CNT), "s_lshl_b32 s%d, s%d, 14" % (S_T, S_T),
                                "s_add_u32 s%d, s%d, s%d" % (S_SO, S_SO, S_T), "s_add_u32 s%d, s%d, 4096" % (S_SO, S_SO)]
    out_kstep(0, lambda n: ar(BB[0] + 4 * n), accf, out_valu(1, slow), out_eloads(0, 128) + out_bloads(1, 8192), sg0)
    out_kstep(1, lambda n: ar(BB[1] + 4 * n), accf, out_valu(0, slow), out_eloads(1, 192) + out_bloads(0, 16384), sg1)
    e("v_add_u32 v%d, 0x80, v%d" % (V_EA, V_EA))
    e("v_add_u32 v%d, 0x80, v%d" % (V_EB, V_EB))
    e("v_add_u32 v%d, 0x4000, v%d" % (V_B, V_B))
    e("s_add_u32 s%d, s%d, 1" % (S_CNT, S_CNT))
    e("s_cmp_lt_u32 s%d, 7" % S_CNT)
    e("s_cbranch_scc1 %s" % lab)
    if second:
        sg0 = store_group(0, 14) + ["s_add_u32 s%d, s%d, 4096" % (S_SO, S_SO)]
        sg1 = store_group(1, 15)
    out_kstep(0, lambda n: vr(192 + 4 * n), accf, out_valu(1, slow), [], sg0, 0)
    out_kstep(1, lambda n: vr(224 + 4 * n), accf, [], [], sg1, 0)
    if not second:
        e("s_nop 7")


def phase_out(slow):
    tag = "s" if slow else "f"
    a.c("---- out phase (%s) ----" % tag)
    e("v_mov_b32 v%d, -2.0" % V_C0)
    e("v_mov_b32 v%d, -2.0" % (V_C0 + 1))
    e("v_lshrrev_b32 v16, 5, v%d" % V_LANE)
    e("v_and_b32 v17, 31, v%d" % V_LANE)
    e("v_lshlrev_b32 v%d, 14, v16" % V_ST)
    e("v_lshl_add_u32 v%d, v17, 4, v%d" % (V_ST, V_ST))
    e("s_mul_i32 s%d, s%d, 4000" % (S_T, S_B))
    e("s_add_u32 s%d, s%d, s%d" % (S_T, S_T, S_T0))
    e("s_lshl_b32 s%d, s%d, 12" % (S_OBASE, S_T))
    e("s_lshl_b32 s%d, s%d, 10" % (S_T, S_W))
    e("s_add_u32 s%d, s%d, s%d" % (S_OBASE, S_OBASE, S_T))
    out_pass(tag, slow, False)
    if not slow:
        stamp()
    out_pass(tag, slow, True)
    if not slow:
        stamp()
    e("s_nop 7")
    e("s_nop 3")
    e("s_add_u32 s%d, s%d, 512" % (S_T, S_OBASE))
    stq = [20, 36]
    for r in range(16):
        tq = stq[r & 1]
        st = tq + 8 + 4 * ((r >> 1) & 1)
        t = 8 * (r >> 2) + (r & 3)
        for n in range(8):
            e("v_accvgpr_read_b32 v%d, a%d" % (tq + n, OACC + 16 * n + r))
        for i in range(4):
            e("v_cvt_pk_bf16_f32 v%d, v%d, v%d" % (st + i, tq + 2 * i, tq + 2 * i + 1))
        e("s_add_u32 s%d, s%d, %d" % (S_SO, S_T, t * 4096))
        e("buffer_store_dwordx4 %s, v%d, %s, s%d offen%s" % (vr(st), V_ST, sr(SRD_O, 4), S_SO, STMOD))
    if not slow:
        stamp()
        stamp_store()
    e("s_endpgm")


def x_item(sl_, i):
    return ["s_add_u32 s94, s92, %d" % (sl_ * 128 + i * 16384),
            "s_add_u32 s95, s93, %d" % (sl_ * XS + i * 4 * XBP),
            "v_add_u32 v%d, s94, v%d" % (V_W0, V_XL),
            "s_mov_b32 m0, s95",
            "s_nop 0",
            "buffer_load_dwordx4 v%d, %s, 0 offen nt lds" % (V_W0, sr(SRD_X, 4))]


def w_item(i):
    if i == 0:
        return ["s_lshr_b32 s94, s2, 3", "s_and_b32 s94, s94, 31", "s_lshl_b32 s94, s94, 2",
                "s_add_u32 s94, s94, s%d" % S_W,
                "v_lshlrev_b32 v%d, 4, v%d" % (V_W1, V_LANE),
                "s_mul_i32 s95, s94, 3072",
                "v_add_u32 v%d, s95, v%d" % (V_W0, V_W1),
                "global_load_dwordx4 a[252:255], v%d, %s" % (V_W0, sr(S_W2))]
    if i < 3:
        return ["global_load_dwordx4 a[252:255], v%d, %s offset:%d" % (V_W0, sr(S_W2), i * 1024)]
    if i == 3:
        return ["s_lshl_b32 s95, s94, 10", "v_add_u32 v%d, s95, v%d" % (V_W0, V_W1),
                "global_load_dwordx4 a[252:255], v%d, %s" % (V_W0, sr(S_WF))]
    return ["global_load_dwordx4 a[252:255], v%d, %s" % (V_W0, sr(S_WO))]


def schedule(entries):
    out = []
    pend = []
    for u in range(len(UNITS)):
        for i in range(8):
            pend.append(("u", u, i))
        for si, pos in enumerate(XPOS):
            if u == pos:
                pend += [("x", si + 1, i) for i in range(4)]
        if u == WUPOS and WARM:
            pend += [("w", 0, i) for i in range(5)]
    pi = 0
    freed = set()
    vcount = 0
    last = {}
    marks = {}
    t = 0
    next_t = 0
    rare = 0
    forced = {}
    over = []
    enabled = []
    pace = [PACE1]

    afree = []
    where = {}

    def can(it):
        if it[0] != "u" or it[1] in where:
            return True
        u = it[1]
        if u < 6 or (u - 6) in freed:
            where[u] = None
            return True
        if afree and NASLOT and u < len(UNITS) - ATAIL:
            where[u] = afree.pop(0)
            return True
        return False

    def issue():
        nonlocal pi, vcount, t, next_t
        k, u, i = pend[pi]
        if k == "u":
            sb, vo, cst = UNITS[u]
            if i == 0:
                out.append("  v_add_u32 v%d, 0x%x, v%d" % (V_LD, cst, vo))
                t += 4
            dst = vr(slot(u) + 4 * i) if where[u] is None else ar(where[u] + 4 * i)
            out.append("  global_load_dwordx4 %s, v%d, %s offset:%d" % (dst, V_LD, sr(sb), i * 512))
            vcount += 1
            last[u] = vcount
        else:
            for s_ in (x_item(u, i) if k == "x" else w_item(i)):
                out.append("  " + s_)
            vcount += 1
            if k == "x":
                marks["x%d" % u] = vcount
        pi += 1
        t += 8
        next_t = max(next_t, t - 8) + (PACE0 if pi < NFAST else pace[0])

    for k, arg, cost, noins in entries:
        if not noins and k in ("i",):
            while pi < len(pend) and t >= next_t and can(pend[pi]):
                issue()
        if k == "i":
            out.append("  " + arg)
            if not rare:
                t += cost
        elif k == "v":
            out.append("  " + arg)
            vcount += 1
            t += PACE
            next_t = max(next_t, t)
        elif k == "l":
            out.append(arg + ":")
        elif k == "c":
            out.append("  ; %s  [t=%d, loads issued %d]" % (arg, t, pi))
        elif k == "free":
            freed.add(arg)
        elif k == "rare":
            rare = arg
        elif k in ("need", "flush"):
            while pi < len(pend) and not (pend[pi][0] == "u" and pend[pi][1] > arg) and (arg not in last or pend[pi][0] == "u"):
                assert can(pend[pi]), ("slot not free", pend[pi], arg)
                if k == "need":
                    forced[arg] = forced.get(arg, 0) + 1
                t = max(t, next_t)
                issue()
            if k == "need":
                n = vcount - last[arg]
                out.append("  s_waitcnt vmcnt(%d)" % min(n, 63))
                if where[arg] is not None:
                    assert (arg - 6) in freed
                    for r_ in range(32):
                        out.append("  v_accvgpr_read_b32 v%d, a%d" % (slot(arg) + r_, where[arg] + r_))
                    t += 128
                    afree.append(where[arg])
                    over.append(arg)
        elif k == "pace":
            pace[0] = arg
        elif k == "aslot":
            if len(enabled) < NASLOT:
                enabled.append(arg)
                afree.append(arg)
        elif k == "mark":
            marks[arg] = vcount
        elif k == "needmark":
            while arg not in marks or (pi < len(pend) and pend[pi][0] == "x" and "x%d" % pend[pi][1] == arg):
                t = max(t, next_t)
                issue()
            out.append("  s_waitcnt vmcnt(%d)" % min(vcount - marks[arg], 63))
    assert pi == len(pend)
    sys.stderr.write("est front cycles %d, forced: %s overflow units %s\n" % (t, forced, over))
    return out


def main():
    prologue()
    stamp()
    a.c("---- conv1 ----")
    a.op("aslot", 200)
    conv_phase(U_C1, 5, lambda sl, j: A_ACC1 + (sl * 8 + j) * 4, c1_areads, True)
    stamp()
    epi1()
    stamp()
    a.c("---- conv2 ----")
    flag_issue()
    conv_phase(U_C2, 2, lambda sl, j: A_ACC2 + (sl * 8 + j) * 4, c2_areads, False)
    stamp()
    epi2()
    stamp()
    if os.environ.get("PAD") == "line":
        a.noins = 1
        for _ in range(2048):
            e("v_add3_u32 v16, v16, 0, 0")
        a.noins = 0
    if os.environ.get("PAD") == "loop":
        a.noins = 1
        e("s_mov_b32 s94, 0")
        a.lab("L_pad")
        for _ in range(64):
            e("v_add3_u32 v16, v16, 0, 0")
        e("s_add_u32 s94, s94, 1")
        e("s_cmp_lt_u32 s94, 32")
        e("s_cbranch_scc1 L_pad")
        a.noins = 0
    phase_f()
    stamp()
    epi3()
    stamp()
    phase_wo()
    stamp()
    a.noins = 1
    front = schedule(a.l)
    a.l = []
    e("s_cmp_lg_u32 s%d, 0" % S_FLAG)
    e("s_cbranch_scc1 L_slow")
    phase_out(False)
    a.lab("L_slow")
    phase_out(True)
    producer()
    a.lab("L_end")
    e("s_endpgm")
    for _ in range(300):
        e("s_endpgm")
    back = []
    for k, arg, cost, noins in a.l:
        back.append(arg + ":" if k == "l" else ("  ; " + arg if k == "c" else "  " + arg))

    hdr = open("standalone__seq2seq_rnn_t_joint__speech.s.ref").read().split("\n")
    top = [l for l in hdr if l.startswith(";") and "@launch" not in l and "Override" not in l and "grid=ceil" not in l]
    out = "\n".join(top) + "\n"
    out += "; @launch grid=(252,1,1) block=(256,1,1) lds=%d\n" % LDS_TOTAL
    out += '.amdgcn_target "amdgcn-amd-amdhsa--gfx950"\n.text\n.globl %s\n.p2align 8\n.type %s,@function\n%s:\n' % (KN, KN, KN)
    out += "\n".join(front + back) + "\n"
    out += """.section .rodata,"a"
.p2align 6
.amdhsa_kernel %s
  .amdhsa_next_free_vgpr 512
  .amdhsa_next_free_sgpr 102
  .amdhsa_accum_offset 256
  .amdhsa_group_segment_fixed_size 0
  .amdhsa_kernarg_size 80
  .amdhsa_user_sgpr_count 2
  .amdhsa_user_sgpr_kernarg_segment_ptr 1
  .amdhsa_system_sgpr_workgroup_id_x 1
.end_amdhsa_kernel
""" % KN
    dst = sys.argv[1] if len(sys.argv) > 1 else "standalone__seq2seq_rnn_t_joint__speech.s"
    open(dst, "w").write(out)
    if PROF:
        sys.stderr.write("stamps %d\n" % NSTAMP[0])


main()
```

```python
import sys, os, struct

DEBUG = os.environ.get("DBG", "")
PROF = os.environ.get("PROF", "")
PACE = int(os.environ.get("PACE", "64"))
PACE0 = int(os.environ.get("PACE0", "30"))
NFAST = int(os.environ.get("NFAST", "60"))
PK = int(os.environ.get("PK", "0"))
STMOD = os.environ.get("STMOD", " nt")
CODEPF = int(os.environ.get("CODEPF", "1"))
NASLOT = int(os.environ.get("NASLOT", "3"))
ATAIL = int(os.environ.get("ATAIL", "3"))
W1WARM = int(os.environ.get("W1WARM", "1"))
PACE1 = int(os.environ.get("PACE1", "80"))
WUPOS = int(os.environ.get("WUPOS", "8"))
XPOS = [int(v) for v in os.environ.get("XPOS", "2,5,7").split(",")]
XS2 = int(os.environ.get("XS2", "0"))
XS3 = int(os.environ.get("XS3", "1"))
XWU = int(os.environ.get("XWU", "3"))
WARM = int(os.environ.get("WARM", "1"))
NSTAMP = [0]

KN = "standalone__seq2seq_rnn_t_joint__speech_kernel"

XBP = 1152
XS = 17 * XBP
XB = 0
EXB = 78848
EX1S = 18432
HB = 0
HP = 528
FB = 36864
FP = 544
FLG = 114688
EAB = 122368
EAP = 1040
EBB = 155648
LDS_TOTAL = 163840

V_OFF16, V_OFF32, V_LD = 1, 2, 3
V_A0, V_A1, V_A2 = 4, 5, 6
V_EXW, V_EXR = 7, 8
V_W0, V_W1 = 9, 10
V_MASK = 11
V_C0 = 12
V_LANE = 14
V_T0, V_T1 = 15, 16
V_OFF32W = 18
TMP = 20
RING = 64

S_X, S_W1, S_W2, S_G, S_WF, S_WG, S_WO, S_OUT = 4, 6, 8, 10, 12, 14, 16, 18
SRD_X, SRD_G, SRD_O = 20, 24, 28
S_W, S_NH, S_KH, S_B, S_T0, S_CNT = 56, 57, 58, 59, 60, 61
S_SELLO, S_SELHI = 62, 63
S_C1 = 64
S_ONE = 66
S_FLAG = 68
S_T = 69
S_SCL = 76
S_OBASE = 79
S_WSP = 80
S_SO = 82
S_R = 83
S_DBG = 84
SRD_WS = 88
S_TILE = 86

A_ACC1 = 0
A_AF = 160
A_ACCG = 200
A_GF = 232
A_ACC2 = 64
A_ACC3 = 0


def f32bits(x):
    return struct.unpack("<I", struct.pack("<f", x))[0]


LOG2E = 1.4426950408889634
GC0 = -2.0 * 0.7978845608028654 * LOG2E
GC1 = GC0 * 0.044715
TSC = 2.0 * LOG2E


class A:
    def __init__(self):
        self.l = []
        self.noins = 0

    def cost(self, s):
        op = s.split()[0]
        if op.startswith("v_mfma_f32_16x16"):
            return 10
        if op.startswith("v_mfma"):
            return 32
        if op in ("v_exp_f32", "v_rcp_f32"):
            return 8
        if op.startswith("v_"):
            return 4
        if op.startswith("ds_write_b128"):
            return 12
        if op.startswith("ds_"):
            return 4
        if op.startswith("buffer_") or op.startswith("global_"):
            return 8
        if op == "s_barrier":
            return 60
        if op == "s_nop":
            return 4 * (int(s.split()[1]) + 1)
        return 2

    def e(self, s):
        self.l.append(["i", s, self.cost(s), self.noins])

    def vm(self, s):
        self.l.append(["v", s, 8, 1])

    def lab(self, s):
        self.l.append(["l", s, 0, 1])

    def c(self, s):
        self.l.append(["c", s, 0, self.noins])

    def op(self, kind, arg):
        self.l.append([kind, arg, 0, self.noins])


a = A()
e = a.e


def vr(b, n=4):
    return "v[%d:%d]" % (b, b + n - 1)


def ar(b, n=4):
    return "a[%d:%d]" % (b, b + n - 1)


def sr(b, n=2):
    return "s[%d:%d]" % (b, b + n - 1)


def slot(u):
    return RING + 32 * (u % 6)


def conv_off(it, u):
    return (u >> 1) * 131072 + (u & 1) * 32768 + it * 65536


UNITS = []
for k in range(12):
    UNITS.append((S_W1, V_OFF16, (k % 3) * 131072 + (k // 3) * 32768))
for k in range(12):
    UNITS.append((S_W2, V_OFF16, (k % 3) * 131072 + (k // 3) * 32768))
for u in range(4):
    UNITS.append((S_WF, V_OFF16, u * 32768))
for i in range(4):
    UNITS.append((S_WO, V_OFF32W, i * 32768))
UNITS.append((S_WO, V_OFF32, 14 * 8192))
UNITS.append((S_WO, V_OFF32, 15 * 8192))
U_C1, U_C2, U_F, U_O = 0, 12, 24, 28


def perms(unit, j, dst):
    R = slot(unit)
    d = j >> 1
    sel = S_SELHI if (j & 1) else S_SELLO
    return ["v_perm_b32 v%d, v%d, v%d, s%d" % (dst + p, R + 4 * (2 * p + 1) + d, R + 4 * (2 * p) + d, sel)
            for p in range(4)]


FBUF = TMP


def prime(unit):
    a.op("need", unit)
    for j in (0, 1):
        for s in perms(unit, j, FBUF + 4 * j):
            e(s)


def emit_units(units, nM, acc):
    for ui, u in enumerate(units):
        for s in u.get("pre", []):
            if isinstance(s, tuple) and s[0] == "call":
                s[1]()
            elif isinstance(s, tuple):
                a.op(s[0], s[1])
            else:
                e(s)
        e("s_waitcnt lgkmcnt(0)")
        areads = list(u.get("areads", []))
        un = u["unit"]
        for j in range(8):
            fill = []
            jt = j + 2
            if jt < 8:
                fill += perms(un, jt, FBUF + 4 * (jt & 3))
                if jt == 7:
                    fill.append(("free", un))
            elif not u["last"]:
                if j == 6:
                    fill.append(("need", un + 1))
                fill += perms(un + 1, jt - 8, FBUF + 4 * (jt & 3))
            if areads and j < 6:
                fill.append(areads.pop(0))
            fb = FBUF + 4 * (j & 3)
            k = 0
            for sl in range(nM):
                d = acc(sl, j)
                e("v_mfma_f32_16x16x32_bf16 %s, %s, %s, %s" % (ar(d), ar(u["aset"][sl]), vr(fb), ar(d)))
                take = 2 if sl < nM - 1 else len(fill) - k
                for s in fill[k:k + take]:
                    if isinstance(s, tuple):
                        a.op(s[0], s[1])
                    else:
                        e(s)
                k += take
        assert not areads


def zero_acc(base, n, zreg):
    for b in range(base, base + n, 16):
        e("v_mfma_f32_32x32x16_bf16 %s, %s, %s, 0" % (ar(b, 16), vr(zreg), vr(zreg)))


DEFER = []


def e_d(s_):
    e(s_)
    if DEFER:
        e(DEFER.pop(0))


def gelu_pairs(xs, ts):
    for x, t in zip(xs, ts):
        e("v_pk_mul_f32 %s, %s, %s" % (vr(t, 2), vr(x, 2), vr(x, 2)))
    for x, t in zip(xs, ts):
        e("v_pk_fma_f32 %s, %s, %s, %s" % (vr(t, 2), vr(t, 2), sr(S_C1), vr(V_C0, 2)))
    for x, t in zip(xs, ts):
        e("v_pk_mul_f32 %s, %s, %s" % (vr(t, 2), vr(x, 2), vr(t, 2)))
    for i, (x, t) in enumerate(zip(xs, ts)):
        e("v_exp_f32 v%d, v%d" % (t, t))
        (e_d if i & 1 else e)("v_exp_f32 v%d, v%d" % (t + 1, t + 1))
    for x, t in zip(xs, ts):
        e("v_pk_add_f32 %s, %s, %s" % (vr(t, 2), vr(t, 2), sr(S_ONE)))
    for i, (x, t) in enumerate(zip(xs, ts)):
        e("v_rcp_f32 v%d, v%d" % (t, t))
        (e_d if i & 1 else e)("v_rcp_f32 v%d, v%d" % (t + 1, t + 1))
    for x, t in zip(xs, ts):
        e("v_pk_mul_f32 %s, %s, %s" % (vr(t, 2), vr(x, 2), vr(t, 2)))
    assert not DEFER


def stamp():
    if not PROF:
        return
    i = NSTAMP[0]
    NSTAMP[0] += 1
    assert i < 60
    e("s_memtime s[98:99]")
    e("s_waitcnt lgkmcnt(0)")
    e("v_writelane_b32 v19, s98, %d" % i)


def stamp_store():
    if not PROF:
        return
    e("s_waitcnt vmcnt(0)")
    stamp()
    e("s_lshl_b32 s98, s2, 10")
    e("s_lshl_b32 s99, s%d, 8" % S_W)
    e("s_add_u32 s98, s98, s99")
    e("s_add_u32 s98, s98, 0x10000")
    e("v_lshlrev_b32 v17, 2, v%d" % V_LANE)
    e("v_add_u32 v17, s98, v17")
    e("global_store_dword v17, v19, %s" % sr(S_WSP))


V_XL = 13


def x_slice(sl_):
    sv = a.noins
    a.noins = 1
    for i in range(4):
        e("s_add_u32 s94, s92, %d" % (sl_ * 128 + i * 16384))
        e("s_add_u32 s95, s93, %d" % (sl_ * XS + i * 4 * XBP))
        e("v_add_u32 v%d, s94, v%d" % (V_W0 + (i & 1), V_XL))
        e("s_mov_b32 m0, s95")
        e("s_nop 0")
        a.vm("buffer_load_dwordx4 v%d, %s, 0 offen nt lds" % (V_W0 + (i & 1), sr(SRD_X, 4)))
    a.op("mark", "x%d" % sl_)
    a.noins = sv


def w1warm():
    e("s_lshr_b32 s94, s2, 3")
    e("s_and_b32 s94, s94, 31")
    e("s_lshl_b32 s94, s94, 2")
    e("s_add_u32 s94, s94, s%d" % S_W)
    e("s_mul_i32 s95, s94, 3072")
    e("v_lshlrev_b32 v28, 4, v%d" % V_LANE)
    e("v_add_u32 v28, s95, v28")
    for i in range(3):
        a.vm("global_load_dwordx4 a[252:255], v28, %s offset:%d" % (sr(S_W1), i * 1024))


def prologue():
    a.noins = 1
    e("s_cmp_ge_u32 s2, 252")
    e("s_cbranch_scc1 L_end")
    stamp()
    e("s_load_dwordx16 s[4:19], s[0:1], 0")
    e("s_load_dwordx2 %s, s[0:1], 64" % sr(S_DBG))
    e("s_load_dwordx2 %s, s[0:1], 72" % sr(S_WSP))
    e("v_lshrrev_b32 v20, 6, v0")
    e("v_and_b32 v%d, 63, v0" % V_LANE)
    e("s_sub_u32 s%d, s2, 2" % S_TILE)
    e("s_cmp_ge_u32 s%d, 125" % S_TILE)
    e("v_readfirstlane_b32 s%d, v20" % S_W)
    e("s_cselect_b32 s%d, 1, 0" % S_B)
    e("s_mul_i32 s%d, s%d, 125" % (S_T, S_B))
    e("s_sub_u32 s%d, s%d, s%d" % (S_T0, S_TILE, S_T))
    e("s_lshl_b32 s%d, s%d, 5" % (S_T0, S_T0))
    e("s_and_b32 s%d, s%d, 1" % (S_NH, S_W))
    e("s_lshr_b32 s%d, s%d, 1" % (S_KH, S_W))
    if CODEPF:
        e("s_getpc_b64 s[96:97]")
        a.lab("L_pc")
        e("s_lshr_b32 s94, s2, 3")
        e("s_and_b32 s94, s94, 31")
        e("s_lshl_b32 s94, s94, 2")
        e("s_add_u32 s94, s94, s%d" % S_W)
        e("s_min_u32 s94, s94, (L_end - L_pc) / 1024")
        e("s_lshl_b32 s94, s94, 10")
        e("v_lshlrev_b32 v21, 4, v%d" % V_LANE)
        e("v_add_u32 v21, s94, v21")
        a.vm("global_load_dwordx4 a[252:255], v21, s[96:97]")
    e("s_mov_b32 s%d, 0x05040100" % S_SELLO)
    e("s_mov_b32 s%d, 0x07060302" % S_SELHI)
    e("s_mov_b32 s%d, 0x%x" % (S_SCL, f32bits(TSC)))
    e("v_lshrrev_b32 v21, 4, v%d" % V_LANE)
    e("v_and_b32 v22, 15, v%d" % V_LANE)
    e("v_lshrrev_b32 v23, 5, v%d" % V_LANE)
    e("v_and_b32 v24, 31, v%d" % V_LANE)
    e("s_lshl_b32 s%d, s%d, 8" % (S_T, S_NH))
    e("s_lshl_b32 s%d, s%d, 14" % (S_T + 1, S_KH))
    e("s_add_u32 s%d, s%d, s%d" % (S_T, S_T, S_T + 1))
    e("v_lshlrev_b32 v25, 12, v21")
    e("v_lshl_add_u32 v25, v22, 4, v25")
    e("v_add_u32 v%d, s%d, v25" % (V_OFF16, S_T))
    e("v_lshrrev_b32 v26, 3, v%d" % V_LANE)
    e("v_and_b32 v25, 6, v26")
    e("v_and_b32 v27, 7, v%d" % V_LANE)
    e("v_xor_b32 v25, v25, v27")
    e("v_lshlrev_b32 v26, 9, v26")
    e("v_lshl_add_u32 v26, v25, 4, v26")
    e("v_lshlrev_b32 v25, 4, v%d" % V_LANE)
    e("s_mul_i32 s%d, s%d, %d" % (S_T, S_W, EX1S))
    e("s_add_u32 s%d, s%d, %d" % (S_T, S_T, EXB))
    e("v_add_u32 v%d, s%d, v25" % (V_EXW, S_T))
    e("s_xor_b32 s%d, s%d, 2" % (S_T + 1, S_W))
    e("s_mul_i32 s%d, s%d, %d" % (S_T, S_T + 1, EX1S))
    e("s_add_u32 s%d, s%d, %d" % (S_T, S_T, EXB))
    e("v_add_u32 v%d, s%d, v25" % (V_EXR, S_T))
    e("s_cmp_lt_u32 s2, 2")
    e("s_cbranch_scc1 L_prod")
    e("s_lshl_b32 s%d, s%d, 11" % (S_T, S_T0))
    e("s_sub_u32 s%d, s%d, 1536" % (S_T, S_T))
    e("s_lshl_b32 s%d, s%d, 7" % (S_T + 3, S_W))
    e("s_add_u32 s%d, s%d, s%d" % (S_T + 3, S_T + 3, S_T))
    e("s_add_u32 s%d, s%d, 65536" % (S_T + 3, S_T + 3))
    e("s_mul_i32 s%d, s%d, %d" % (S_T + 4, S_W, XS))
    e("s_add_u32 s%d, s%d, %d" % (S_T + 4, S_T + 4, 16 * XBP))
    e("s_lshl_b32 s%d, s%d, 12" % (S_T + 1, S_W))
    e("s_add_u32 s%d, s%d, s%d" % (S_T, S_T, S_T + 1))
    e("s_mul_i32 s%d, s%d, %d" % (S_T + 1, S_W, XBP))
    e("s_mul_i32 s%d, s%d, 8192000" % (S_T + 2, S_B))
    e("s_waitcnt lgkmcnt(0)")
    e("s_add_u32 s%d, s%d, s%d" % (SRD_X, S_X, S_T + 2))
    e("s_addc_u32 s%d, s%d, 0" % (SRD_X + 1, S_X + 1))
    e("s_and_b32 s%d, s%d, 0xffff" % (SRD_X + 1, SRD_X + 1))
    e("s_mov_b32 s%d, 8192000" % (SRD_X + 2))
    e("s_mov_b32 s%d, 0x00020000" % (SRD_X + 3))
    stamp()
    if W1WARM == 1:
        w1warm()
    e("v_add_u32 v27, s%d, v26" % (S_T + 3))
    e("s_mov_b32 m0, s%d" % (S_T + 4))
    e("s_nop 0")
    a.vm("buffer_load_dwordx4 v27, %s, 0 offen nt lds" % sr(SRD_X, 4))
    e("s_mov_b32 s92, s%d" % S_T)
    e("s_mov_b32 s93, s%d" % (S_T + 1))
    e("v_mov_b32 v%d, v26" % V_XL)
    x_slice(0)
    if W1WARM == 2:
        w1warm()
    a.op("flush", 0)
    stamp()
    a.noins = 0
    e("s_mov_b32 s%d, s%d" % (SRD_O, S_OUT))
    e("s_and_b32 s%d, s%d, 0xffff" % (SRD_O + 1, S_OUT + 1))
    e("s_mov_b32 s%d, 32768000" % (SRD_O + 2))
    e("s_mov_b32 s%d, 0x00020000" % (SRD_O + 3))
    e("s_mov_b32 s%d, s%d" % (SRD_WS, S_WSP))
    e("s_and_b32 s%d, s%d, 0xffff" % (SRD_WS + 1, S_WSP + 1))
    e("s_mov_b32 s%d, 32768" % (SRD_WS + 2))
    e("s_mov_b32 s%d, 0x00020000" % (SRD_WS + 3))
    e("s_mov_b32 s%d, 0x%x" % (S_C1, f32bits(GC1)))
    e("s_mov_b32 s%d, 0x%x" % (S_C1 + 1, f32bits(GC1)))
    e("s_mov_b32 s%d, 1.0" % S_ONE)
    e("s_mov_b32 s%d, 1.0" % (S_ONE + 1))
    e("s_mov_b32 s%d, 0" % S_FLAG)
    e("v_lshlrev_b32 v25, 12, v23")
    e("v_lshl_add_u32 v%d, v24, 4, v25" % V_OFF32)
    e("s_lshl_b32 s%d, s%d, 13" % (S_T, S_W))
    e("v_add_u32 v%d, s%d, v%d" % (V_OFF32W, S_T, V_OFF32))
    for i in range(4):
        e("v_mov_b32 v%d, 0" % (28 + i))
    e("s_nop 1")
    zero_acc(A_ACC1, 160, 28)
    e("s_or_b32 s%d, s%d, s%d" % (S_T, S_T0, S_KH))
    e("v_or_b32 v25, s%d, v21" % S_T)
    e("v_cmp_eq_u32 vcc, 0, v25")
    e("v_mov_b32 v25, 1.0")
    e("s_nop 1")
    e("v_cndmask_b32 v%d, v25, 0, vcc" % V_MASK)
    e("s_lshl_b32 s%d, s%d, 2" % (S_T, S_KH))
    e("v_add_u32 v25, s%d, v21" % S_T)
    e("s_mul_i32 s%d, s%d, 9216" % (S_T, S_KH))
    e("s_sub_u32 s%d, 9216, s%d" % (S_T + 1, S_T))
    for cls, dst in ((0, V_A0), (1, 15)):
        e("v_add_u32 v26, %d, v22" % cls)
        e("v_and_b32 v27, 3, v26")
        e("v_lshlrev_b32 v27, 1, v27")
        e("v_lshrrev_b32 v26, 2, v26")
        e("v_mul_u32_u24 v26, %d, v26" % XBP)
        e("v_lshl_add_u32 v26, v27, 7, v26")
        e("v_xor_b32 v27, v27, v25")
        e("v_lshl_add_u32 v26, v27, 4, v26")
        e("v_add_u32 v%d, s%d, v26" % (dst, S_T))
        e("v_add_u32 v%d, s%d, v26" % (dst + 1, S_T + 1))
        e("v_add_u32 v%d, 0x%x, v26" % (dst + 2, 18432))
    a.op("needmark", "x0")
    e("s_barrier")


def warmup():
    if not WARM:
        return
    e("s_lshr_b32 s94, s2, 3")
    e("s_and_b32 s94, s94, 31")
    e("s_lshl_b32 s94, s94, 2")
    e("s_add_u32 s94, s94, s%d" % S_W)
    e("v_lshlrev_b32 v%d, 4, v%d" % (V_W1, V_LANE))
    e("s_mul_i32 s95, s94, 3072")
    e("v_add_u32 v%d, s95, v%d" % (V_W0, V_W1))
    for i in range(3):
        a.vm("global_load_dwordx4 a[252:255], v%d, %s offset:%d" % (V_W0, sr(S_W2), i * 1024))
    e("s_lshl_b32 s95, s94, 10")
    e("v_add_u32 v%d, s95, v%d" % (V_W0, V_W1))
    a.vm("global_load_dwordx4 a[252:255], v%d, %s" % (V_W0, sr(S_WF)))
    a.vm("global_load_dwordx4 a[252:255], v%d, %s" % (V_W0, sr(S_WO)))


def producer():
    a.lab("L_prod")
    e("s_lshl_b32 s%d, s2, 12" % S_T)
    e("s_lshl_b32 s%d, s%d, 6" % (S_T + 1, S_KH))
    e("s_add_u32 s%d, s%d, s%d" % (S_T, S_T, S_T + 1))
    e("v_lshlrev_b32 v25, 9, v22")
    e("v_lshl_add_u32 v25, v21, 4, v25")
    e("v_add_u32 v25, s%d, v25" % S_T)
    e("s_waitcnt lgkmcnt(0)")
    e("s_mov_b32 s%d, s%d" % (SRD_G, S_G))
    e("s_and_b32 s%d, s%d, 0xffff" % (SRD_G + 1, S_G + 1))
    e("s_mov_b32 s%d, 8192" % (SRD_G + 2))
    e("s_mov_b32 s%d, 0x00020000" % (SRD_G + 3))
    for u in range(4):
        e("buffer_load_dwordx4 %s, v25, %s, 0 offen offset:%d" % (ar(A_GF + 4 * u), sr(SRD_G, 4), u * 128))
    for u in range(4):
        e("v_add_u32 v%d, 0x%x, v%d" % (V_LD, u * 32768, V_OFF16))
        for i in range(8):
            e("global_load_dwordx4 %s, v%d, %s offset:%d" % (vr(slot(u) + 4 * i), V_LD, sr(S_WG), i * 512))
    for i in range(4):
        e("v_mov_b32 v%d, 0" % (28 + i))
    e("s_nop 1")
    zero_acc(A_ACCG, 32, 28)
    e("s_waitcnt vmcnt(0)")
    for u in range(4):
        for j in range(8):
            for s_ in perms(u, j, FBUF + 4 * (j & 3)):
                e(s_)
            e("s_nop 1")
            d = A_ACCG + 4 * j
            e("v_mfma_f32_16x16x32_bf16 %s, %s, %s, %s" % (ar(d), ar(A_GF + 4 * u), vr(FBUF + 4 * (j & 3)), ar(d)))
    e("s_nop 7")
    e("s_nop 1")
    for j in range(8):
        e("ds_write_b128 v%d, %s offset:%d" % (V_EXW, ar(A_ACCG + 4 * j), j * 1024))
    e("v_lshrrev_b32 v20, 4, v%d" % V_LANE)
    e("v_and_b32 v21, 15, v%d" % V_LANE)
    e("v_and_b32 v20, 1, v20")
    e("v_lshlrev_b32 v20, 12, v20")
    e("v_lshl_add_u32 v20, v21, 5, v20")
    e("s_lshl_b32 s%d, s%d, 9" % (S_T, S_NH))
    e("s_lshl_b32 s%d, s2, 14" % (S_T + 1))
    e("s_add_u32 s%d, s%d, s%d" % (S_T, S_T, S_T + 1))
    e("v_add_u32 v%d, s%d, v20" % (V_W0, S_T))
    e("v_add_u32 v%d, 0x2000, v%d" % (V_A0, V_W0))
    e("v_mov_b32 v%d, 0" % V_W1)
    e("s_waitcnt lgkmcnt(0)")
    e("s_barrier")
    for j in range(8):
        e("ds_read_b128 %s, v%d offset:%d" % (vr(TMP + 4 * j), V_EXR, j * 1024))
    T = TMP + 32
    R = RING
    e("s_waitcnt lgkmcnt(0)")
    for j in range(8):
        P = TMP + 4 * j
        for r in range(4):
            e("v_accvgpr_read_b32 v%d, a%d" % (T + r, A_ACCG + 4 * j + r))
        e("v_pk_add_f32 %s, %s, %s" % (vr(P, 2), vr(P, 2), vr(T, 2)))
        e("v_pk_add_f32 %s, %s, %s" % (vr(P + 2, 2), vr(P + 2, 2), vr(T + 2, 2)))
        e("v_cvt_pk_bf16_f32 v%d, v%d, v%d" % (T, P, P + 1))
        e("v_cvt_pk_bf16_f32 v%d, v%d, v%d" % (T + 1, P + 2, P + 3))
        e("v_lshlrev_b32 v%d, 16, v%d" % (P, T))
        e("v_and_b32 v%d, 0xffff0000, v%d" % (P + 1, T))
        e("v_lshlrev_b32 v%d, 16, v%d" % (P + 2, T + 1))
        e("v_and_b32 v%d, 0xffff0000, v%d" % (P + 3, T + 1))
        for r in range(4):
            e("v_mul_f32 v%d, s%d, v%d" % (R + 8 * r + j, S_SCL, P + r))
        e("v_max3_f32 v%d, |v%d|, |v%d|, v%d" % (V_W1, R + j, R + 8 + j, V_W1))
        e("v_max3_f32 v%d, |v%d|, |v%d|, v%d" % (V_W1, R + 16 + j, R + 24 + j, V_W1))
        for r in range(4):
            e("v_exp_f32 v%d, v%d" % (R + 32 + 8 * r + j, R + 8 * r + j))
    e("v_mov_b32 v%d, 0x42fa0000" % T)
    e("s_mov_b32 exec_hi, 0")
    e("v_cmp_nle_f32 vcc, v%d, v%d" % (V_W1, T))
    for r in range(4):
        for hh in range(2):
            e("global_store_dwordx4 v%d, %s, %s offset:%d sc0 sc1" % (V_W0, vr(R + 32 + 8 * r + 4 * hh), sr(S_WSP), r * 1024 + hh * 16))
            e("global_store_dwordx4 v%d, %s, %s offset:%d sc0 sc1" % (V_A0, vr(R + 8 * r + 4 * hh), sr(S_WSP), r * 1024 + hh * 16))
    e("s_mov_b64 exec, -1")
    e("s_or_b32 s%d, vcc_lo, vcc_hi" % S_FLAG)
    e("s_cmp_lg_u32 s%d, 0" % S_FLAG)
    e("s_cselect_b32 s%d, 3, 1" % S_FLAG)
    e("s_lshl_b32 s%d, s2, 4" % S_T)
    e("s_lshl_b32 s%d, s%d, 2" % (S_T + 1, S_W))
    e("s_add_u32 s%d, s%d, s%d" % (S_T, S_T, S_T + 1))
    e("v_mov_b32 v20, s%d" % S_T)
    e("v_mov_b32 v21, s%d" % S_FLAG)
    e("s_waitcnt vmcnt(0)")
    e("s_mov_b32 exec_lo, 1")
    e("s_mov_b32 exec_hi, 0")
    e("global_store_dword v20, v21, %s sc0 sc1" % sr(S_DBG))
    e("s_endpgm")


def flag_issue():
    e("s_lshl_b32 s%d, s%d, 4" % (S_T, S_B))
    e("v_mov_b32 v15, s%d" % S_T)
    a.vm("global_load_dwordx4 v[60:63], v15, %s sc0 sc1" % sr(S_DBG))
    a.op("mark", "flag")


def eb_dma(wsoff):
    e("s_lshl_b32 s%d, s%d, 14" % (S_T, S_B))
    e("s_lshl_b32 s%d, s%d, 11" % (S_T + 1, S_W))
    e("s_add_u32 s%d, s%d, s%d" % (S_T, S_T, S_T + 1))
    e("s_add_u32 s%d, s%d, %d" % (S_T, S_T, wsoff))
    e("v_lshlrev_b32 v16, 4, v%d" % V_LANE)
    e("v_add_u32 v16, s%d, v16" % S_T)
    e("s_add_u32 s%d, s%d, %d" % (S_T + 1, S_T + 1, EBB))
    e("s_mov_b32 m0, s%d" % (S_T + 1))
    e("s_nop 0")


def flag_check():
    a.op("needmark", "flag")
    sv = a.noins
    a.noins = 1
    a.lab("L_flag_chk")
    e("v_min_u32 v16, v60, v61")
    e("v_min3_u32 v16, v62, v63, v16")
    e("v_or3_b32 v17, v60, v61, v62")
    e("v_or_b32 v17, v17, v63")
    e("v_readfirstlane_b32 s%d, v16" % (S_T))
    e("v_readfirstlane_b32 s%d, v17" % (S_T + 1))
    e("s_nop 3")
    e("s_cmp_lg_u32 s%d, 0" % S_T)
    e("s_cbranch_scc1 L_flag_ok")
    a.op("rare", 1)
    e("s_sleep 4")
    e("global_load_dwordx4 v[60:63], v15, %s sc0 sc1" % sr(S_DBG))
    e("s_waitcnt vmcnt(0)")
    e("s_branch L_flag_chk")
    a.op("rare", 0)
    a.lab("L_flag_ok")
    e("s_and_b32 s%d, s%d, 2" % (S_FLAG, S_T + 1))
    eb_dma(0)
    a.vm("buffer_load_dwordx4 v16, %s, 0 offen sc0 sc1 lds" % sr(SRD_WS, 4))
    a.vm("buffer_load_dwordx4 v16, %s, 0 offen offset:1024 sc0 sc1 lds" % sr(SRD_WS, 4))
    a.op("mark", "eb")
    a.noins = sv


TAPH = [0, HP, 2 * HP]


def c1_areads(k, aset):
    tap = k % 3
    out = []
    for sl in range(5):
        b0 = V_A0 if tap < 2 else 15
        base = b0 if sl < 2 else (b0 + 1 if sl < 4 else b0 + 2)
        off = ((sl & 1) * 4608 if sl < 4 else 0) + (128 if tap == 1 else 0)
        out.append("ds_read_b128 %s, v%d offset:%d" % (ar(aset + 4 * sl), base, off))
    return out


def c2_areads(k, aset):
    tap, sl_ = k % 3, k // 3
    return ["ds_read_b128 %s, v%d offset:%d" % (ar(aset + 4 * sl), V_A0 + sl, HB + TAPH[tap] + sl_ * 128)
            for sl in range(2)]


def conv_phase(u0, nM, acc, areads_fn, isx):
    A_AF, AST = (160, 20) if isx else (232, 8)
    for s in areads_fn(0, A_AF):
        e(s)
    prime(u0)
    units = []
    for k in range(12):
        nk = k + 1
        pre = []
        if isx and k % 3 == 2 and k < 11:
            pre = [("needmark", "x%d" % (k // 3 + 1)), "s_barrier"]
            pre += ["v_add_u32 v%d, 0x%x, v%d" % (r, XS, r) for r in (V_A0, V_A1, V_A2)]
        if isx and k % 3 == 0 and k > 0:
            pre = ["v_add_u32 v%d, 0x%x, v%d" % (r, XS, r) for r in (15, 16, 17)]
        if isx and PROF == "2":
            pre = pre + [("call", stamp)]
        units.append(dict(unit=u0 + k, aset=[A_AF + AST * (k & 1) + 4 * s for s in range(nM)], last=(k == 11), pre=pre,
                          areads=(areads_fn(nk, A_AF + AST * (nk & 1)) if k < 11 else [])))
    emit_units(units, nM, acc)


def lane_fields():
    e("v_lshrrev_b32 v16, 4, v%d" % V_LANE)
    e("v_and_b32 v17, 15, v%d" % V_LANE)


P0, P1 = TMP, TMP + 8
TT = TMP + 16
OWN = TMP + 24
OUTR = TMP + 28


def add_own(P, accbase):
    for i in range(0, 8, 4):
        for k in range(4):
            e("v_accvgpr_read_b32 v%d, a%d" % (OWN + k, accbase + i + k))
        e("v_pk_add_f32 %s, %s, %s" % (vr(P + i, 2), vr(P + i, 2), vr(OWN, 2)))
        e("v_pk_add_f32 %s, %s, %s" % (vr(P + i + 2, 2), vr(P + i + 2, 2), vr(OWN + 2, 2)))


def epi_gelu_slot(accbase, rdoff, nblocks_after, wr, mask):
    for jp in range(4):
        P = P0 if (jp & 1) == 0 else P1
        Pn = P1 if (jp & 1) == 0 else P0
        nxt = rdoff + (2 * jp + 2) * 1024
        more = jp < 3 or nblocks_after
        if more:
            e("ds_read_b128 %s, v%d offset:%d" % (vr(Pn), V_EXR, nxt))
            e("ds_read_b128 %s, v%d offset:%d" % (vr(Pn + 4), V_EXR, nxt + 1024))
            e("s_waitcnt lgkmcnt(2)")
        else:
            e("s_waitcnt lgkmcnt(0)")
        add_own(P, accbase + 8 * jp)
        gelu_pairs([P, P + 2, P + 4, P + 6], [TT, TT + 2, TT + 4, TT + 6])
        if mask:
            e("v_mul_f32 v%d, v%d, v%d" % (TT, V_MASK, TT))
            e("v_mul_f32 v%d, v%d, v%d" % (TT + 4, V_MASK, TT + 4))
        for r in range(4):
            e("v_cvt_pk_bf16_f32 v%d, v%d, v%d" % (OUTR + 4 * r + jp, TT + r, TT + 4 + r))
    for r in range(4):
        if nblocks_after:
            DEFER.append(wr(r))
        else:
            e(wr(r))


def epi1():
    a.c("---- epilogue conv1 ----")
    a.op("pace", PACE)
    a.op("aslot", 160)
    e("v_mov_b32 v%d, 0x%x" % (V_C0, f32bits(GC0)))
    e("v_mov_b32 v%d, 0x%x" % (V_C0 + 1, f32bits(GC0)))
    e("s_nop 7")
    e("s_nop 1")
    for j in range(8):
        e("v_accvgpr_read_b32 v%d, a%d" % (TMP + j, A_ACC1 + 128 + 4 * j))
    for i in range(16):
        e("ds_write_b128 v%d, %s offset:%d" % (V_EXW, ar(A_ACC1 + 64 + 4 * i), i * 1024))
    e("ds_write_b128 v%d, %s offset:%d" % (V_EXW, vr(TMP), 16384))
    e("ds_write_b128 v%d, %s offset:%d" % (V_EXW, vr(TMP + 4), 17408))
    lane_fields()
    e("s_mul_i32 s%d, s%d, %d" % (S_T, S_KH, 32 * HP))
    e("s_lshl_b32 s%d, s%d, 8" % (S_T + 1, S_NH))
    e("v_mul_u32_u24 v16, %d, v16" % (4 * HP))
    e("v_lshl_add_u32 v17, v17, 4, s%d" % (S_T + 1))
    e("v_add3_u32 v%d, v16, v17, s%d" % (V_W0, S_T))
    e("v_add_u32 v%d, 0x%x, v17" % (V_W1, HB + 64 * HP))
    for i in range(4):
        e("v_mov_b32 v%d, 0" % (TT + i))
    e("s_waitcnt lgkmcnt(0)")
    e("s_nop 1")
    zero_acc(A_ACC2, 64, TT)
    e("s_barrier")
    e("ds_read_b128 %s, v%d offset:0" % (vr(P0), V_EXR))
    e("ds_read_b128 %s, v%d offset:1024" % (vr(P0 + 4), V_EXR))
    for sl in range(2):
        epi_gelu_slot(A_ACC1 + 32 * sl, sl * 8192, True,
                      lambda r, sl=sl: "ds_write_b128 v%d, %s offset:%d" % (V_W0, vr(OUTR + 4 * r), HB + (16 * sl + r) * HP),
                      sl == 0)
    e("s_waitcnt lgkmcnt(0)")
    for j in range(8):
        e("v_accvgpr_read_b32 v%d, a%d" % (TT + j, A_ACC1 + 128 + 4 * j))
    for i in range(0, 8, 2):
        e("v_pk_add_f32 %s, %s, %s" % (vr(P0 + i, 2), vr(P0 + i, 2), vr(TT + i, 2)))
    a.op("aslot", 128)
    gelu_pairs([P0, P0 + 2, P0 + 4, P0 + 6], [TT, TT + 2, TT + 4, TT + 6])
    for i in range(4):
        e("v_cvt_pk_bf16_f32 v%d, v%d, v%d" % (P1 + i, TT + 2 * i, TT + 2 * i + 1))
    a.noins = 1
    e("s_mov_b32 exec_lo, 0xffff")
    e("s_mov_b32 exec_hi, 0")
    e("ds_write_b128 v%d, %s" % (V_W1, vr(P1)))
    e("s_mov_b64 exec, -1")
    a.noins = 0
    lane_fields()
    e("s_lshl_b32 s%d, s%d, 6" % (S_T, S_KH))
    e("v_mul_u32_u24 v17, %d, v17" % (2 * HP))
    e("v_lshl_add_u32 v17, v16, 4, v17")
    e("v_add_u32 v17, s%d, v17" % S_T)
    e("s_mul_i32 s%d, s%d, %d" % (S_T, S_KH, 32 * HP))
    e("v_add_u32 v%d, s%d, v17" % (V_A0, S_T))
    e("s_sub_u32 s%d, %d, s%d" % (S_T, 32 * HP, S_T))
    e("v_add_u32 v%d, s%d, v17" % (V_A1, S_T))
    e("v_lshlrev_b32 v16, 4, v%d" % V_LANE)
    e("s_lshl_b32 s%d, s%d, 13" % (S_T, S_W))
    e("s_add_u32 s%d, s%d, %d" % (S_T, S_T, EXB))
    e("v_add_u32 v%d, s%d, v16" % (V_EXW, S_T))
    e("s_xor_b32 s%d, s%d, 2" % (S_T, S_W))
    e("s_lshl_b32 s%d, s%d, 13" % (S_T, S_T))
    e("s_add_u32 s%d, s%d, %d" % (S_T, S_T, EXB))
    e("v_add_u32 v%d, s%d, v16" % (V_EXR, S_T))
    e("s_waitcnt lgkmcnt(0)")
    e("s_barrier")


def epi2():
    a.c("---- epilogue conv2 ----")
    flag_check()
    for i in range(8):
        e("ds_write_b128 v%d, %s offset:%d" % (V_EXW, ar(A_ACC2 + 32 + 4 * i), i * 1024))
    lane_fields()
    e("s_mul_i32 s%d, s%d, %d" % (S_T, S_KH, 16 * FP))
    e("s_lshl_b32 s%d, s%d, 8" % (S_T + 1, S_NH))
    e("v_mul_u32_u24 v16, %d, v16" % (4 * FP))
    e("v_lshl_add_u32 v17, v17, 4, s%d" % (S_T + 1))
    e("v_add3_u32 v%d, v16, v17, s%d" % (V_W0, S_T))
    for i in range(4):
        e("v_mov_b32 v%d, 0" % (TT + i))
    e("s_nop 1")
    zero_acc(A_ACC3, 64, TT)
    e("s_waitcnt lgkmcnt(0)")
    e("s_barrier")
    e("ds_read_b128 %s, v%d offset:0" % (vr(P0), V_EXR))
    e("ds_read_b128 %s, v%d offset:1024" % (vr(P0 + 4), V_EXR))
    epi_gelu_slot(A_ACC2, 0, False,
                  lambda r: "ds_write_b128 v%d, %s offset:%d" % (V_W0, vr(OUTR + 4 * r), FB + r * FP), False)
    lane_fields()
    e("s_lshl_b32 s%d, s%d, 6" % (S_T, S_KH))
    e("s_add_u32 s%d, s%d, %d" % (S_T, S_T, FB))
    e("v_mul_u32_u24 v17, %d, v17" % FP)
    e("v_lshl_add_u32 v17, v16, 4, v17")
    e("v_add_u32 v17, s%d, v17" % S_T)
    e("s_mul_i32 s%d, s%d, %d" % (S_T, S_KH, 16 * FP))
    e("v_add_u32 v%d, s%d, v17" % (V_A0, S_T))
    e("s_sub_u32 s%d, %d, s%d" % (S_T, 16 * FP, S_T))
    e("v_add_u32 v%d, s%d, v17" % (V_A1, S_T))
    e("s_waitcnt lgkmcnt(0)")
    e("s_barrier")


def f_areads(u, aset):
    return ["ds_read_b128 %s, v%d offset:%d" % (ar(aset + 4 * sl), V_A0 + sl, u * 128) for sl in range(2)]


def phase_f():
    a.c("---- fe ----")
    A_AF = 232
    for s in f_areads(0, A_AF):
        e(s)
    prime(U_F)
    units = []
    for u in range(4):
        units.append(dict(unit=U_F + u, aset=[A_AF + 8 * (u & 1) + 4 * s for s in range(2)], last=(u == 3),
                          areads=(f_areads(u + 1, A_AF + 8 * ((u + 1) & 1)) if u < 3 else [])))
    emit_units(units, 2, lambda sl, j: A_ACC3 + (sl * 8 + j) * 4)


def epi3_body(raw):
    e("ds_read_b128 %s, v%d offset:0" % (vr(P0), V_EXR))
    e("ds_read_b128 %s, v%d offset:1024" % (vr(P0 + 4), V_EXR))
    for jp in range(4):
        P = P0 if (jp & 1) == 0 else P1
        Pn = P1 if (jp & 1) == 0 else P0
        if jp < 3:
            e("ds_read_b128 %s, v%d offset:%d" % (vr(Pn), V_EXR, (2 * jp + 2) * 1024))
            e("ds_read_b128 %s, v%d offset:%d" % (vr(Pn + 4), V_EXR, (2 * jp + 3) * 1024))
            e("s_waitcnt lgkmcnt(2)")
        else:
            e("s_waitcnt lgkmcnt(0)")
        add_own(P, A_ACC3 + 8 * jp)
        for i in range(4):
            e("v_cvt_pk_bf16_f32 v%d, v%d, v%d" % (TT + i, P + 2 * i, P + 2 * i + 1))
        for i in range(4):
            e("v_lshlrev_b32 v%d, 16, v%d" % (P + 2 * i, TT + i))
            e("v_and_b32 v%d, 0xffff0000, v%d" % (P + 2 * i + 1, TT + i))
        for i in range(8):
            e("v_mul_f32 v%d, s%d, v%d" % (P + i, S_SCL, P + i))
        if not raw:
            for i in range(4):
                e("v_max3_f32 v%d, |v%d|, |v%d|, v%d" % (V_W1, P + 2 * i, P + 2 * i + 1, V_W1))
        for jj in range(2):
            for r in range(4):
                d = OUTR + 4 * r + (jp & 1) * 2 + jj
                if raw:
                    e("v_mov_b32 v%d, v%d" % (d, P + 4 * jj + r))
                else:
                    e("v_exp_f32 v%d, v%d" % (d, P + 4 * jj + r))
        if jp & 1:
            e("s_nop 0")
            for r in range(4):
                e("ds_write_b128 v%d, %s offset:%d" % (V_W0, vr(OUTR + 4 * r), r * EAP + (jp >> 1) * 16))


def epi3():
    a.c("---- epilogue fe ----")
    e("s_nop 7")
    e("s_nop 1")
    for i in range(8):
        e("ds_write_b128 v%d, %s offset:%d" % (V_EXW, ar(A_ACC3 + 32 + 4 * i), i * 1024))
    lane_fields()
    e("s_mul_i32 s%d, s%d, %d" % (S_T, S_KH, 16 * EAP))
    e("s_add_u32 s%d, s%d, %d" % (S_T, S_T, EAB))
    e("s_lshl_b32 s%d, s%d, 9" % (S_T + 1, S_NH))
    e("v_mul_u32_u24 v16, %d, v16" % (4 * EAP))
    e("v_lshl_add_u32 v17, v17, 5, s%d" % (S_T + 1))
    e("v_add3_u32 v%d, v16, v17, s%d" % (V_W0, S_T))
    e("v_mov_b32 v%d, 0" % V_W1)
    e("s_waitcnt lgkmcnt(0)")
    e("s_barrier")
    epi3_body(False)
    e("v_mov_b32 v16, 0x42fa0000")
    e("v_cmp_nle_f32 vcc, v%d, v16" % V_W1)
    e("s_lshl_b32 s%d, s%d, 2" % (S_T, S_W))
    e("s_add_u32 s%d, s%d, %d" % (S_T, S_T, FLG))
    e("s_or_b32 s%d, s%d, vcc_lo" % (S_FLAG, S_FLAG))
    e("s_or_b32 s%d, s%d, vcc_hi" % (S_FLAG, S_FLAG))
    e("v_mov_b32 v16, s%d" % S_T)
    e("v_mov_b32 v17, s%d" % S_FLAG)
    e("ds_write_b32 v16, v17")
    e("s_waitcnt lgkmcnt(0)")
    e("s_barrier")
    e("v_mov_b32 v16, 0x%x" % FLG)
    e("ds_read_b128 %s, v16" % vr(TMP))
    e("s_waitcnt lgkmcnt(0)")
    e("v_or3_b32 v16, v%d, v%d, v%d" % (TMP, TMP + 1, TMP + 2))
    e("v_or_b32 v16, v16, v%d" % (TMP + 3))
    e("s_nop 0")
    e("v_readfirstlane_b32 s%d, v16" % S_FLAG)
    e("s_nop 3")
    e("s_cmp_eq_u32 s%d, 0" % S_FLAG)
    e("s_cbranch_scc1 L_fast1")
    a.noins = 1
    a.op("rare", 1)
    epi3_body(True)
    e("s_waitcnt vmcnt(0)")
    e("s_barrier")
    eb_dma(8192)
    e("buffer_load_dwordx4 v16, %s, 0 offen sc0 sc1 lds" % sr(SRD_WS, 4))
    e("buffer_load_dwordx4 v16, %s, 0 offen offset:1024 sc0 sc1 lds" % sr(SRD_WS, 4))
    e("s_waitcnt vmcnt(0) lgkmcnt(0)")
    e("s_barrier")
    a.op("rare", 0)
    a.lab("L_fast1")
    a.noins = 0


ZL = []
OACC = 64


def phase_wo():
    a.c("---- w_o fragments ----")
    e("v_lshlrev_b32 v16, 4, v%d" % V_LANE)
    e("s_lshl_b32 s%d, s%d, 13" % (S_T, S_W))
    e("v_add_u32 v16, s%d, v16" % S_T)
    for i in range(4):
        e("v_mov_b32 v%d, 0" % (60 + i))
    zl = ["v_mfma_f32_32x32x16_bf16 %s, %s, %s, 0" % (ar(OACC + 16 * n, 16), vr(60), vr(60)) for n in range(8)]
    e("v_add_u32 v17, 0x10000, v16")
    lag = []

    def wo_unit(i):
        a.op("need", U_O + i)
        for n in range(8):
            dst = TMP + 4 * n
            for k_, s_ in enumerate(perms(U_O + i, n, dst)):
                e(s_)
                if k_ == 1 and len(lag) >= 4:
                    e(lag.pop(0))
            lag.append("ds_write_b128 v%d, %s offset:%d" % (16 + (i >> 1), vr(dst), (i & 1) * 32768 + n * 1024))

    for i in range(3):
        wo_unit(i)
    while lag:
        e(lag.pop(0))
    a.op("flush", len(UNITS) - 1)
    a.noins = 1
    e("s_cmp_ge_u32 s%d, 2" % S_W)
    e("s_cbranch_scc1 L_wo_skip")
    e("s_nop 4")
    wo_unit(3)
    while lag:
        e(lag.pop(0))
    a.lab("L_wo_skip")
    for i in (4, 5):
        a.op("need", U_O + i)
        for n in range(8):
            for s in perms(U_O + i, n, 192 + 32 * (i - 4) + 4 * n):
                e(s)
    for n in range(8):
        e("v_mfma_f32_32x32x16_bf16 %s, %s, %s, 0" % (vr(OACC + 16 * n, 16), vr(60), vr(60)))
    e("s_waitcnt lgkmcnt(0)")
    e("s_barrier")
    ZL.extend(zl)


EA = [20, 28]
EB = [36, 44]
JF = [52, 56]
V_EA, V_EB, V_B, V_ST = 4, 5, 6, 7
BB = [0, 32]
STG = [8, 60]


def out_valu(par, slow):
    ea, eb, jf = EA[par], EB[par], JF[par]
    v = []
    if os.environ.get("EXP") == "novalu":
        return ["v_cvt_pk_bf16_f32 v%d, v%d, v%d" % (jf + i, ea + 2 * i, ea + 2 * i + 1) for i in range(4)]
    if slow:
        for i in range(8):
            v.append("v_add_f32 v%d, v%d, v%d" % (ea + i, ea + i, eb + i))
        for i in range(8):
            v.append("v_exp_f32 v%d, v%d" % (ea + i, ea + i))
        for i in range(8):
            v.append("v_add_f32 v%d, 1.0, v%d" % (ea + i, ea + i))
    elif PK:
        for i in range(0, 8, 2):
            v.append("v_pk_fma_f32 %s, %s, %s, %s" % (vr(ea + i, 2), vr(ea + i, 2), vr(eb + i, 2), sr(S_ONE)))
    else:
        for i in range(8):
            v.append("v_fma_f32 v%d, v%d, v%d, 1.0" % (ea + i, ea + i, eb + i))
    for i in range(8):
        v.append("v_rcp_f32 v%d, v%d" % (ea + i, ea + i))
    if PK:
        for i in range(0, 8, 2):
            v.append("v_pk_fma_f32 %s, %s, %s, %s" % (vr(ea + i, 2), vr(ea + i, 2), vr(V_C0, 2), sr(S_ONE)))
    else:
        for i in range(8):
            v.append("v_fma_f32 v%d, v%d, -2.0, 1.0" % (ea + i, ea + i))
    for i in range(4):
        v.append("v_cvt_pk_bf16_f32 v%d, v%d, v%d" % (jf + i, ea + 2 * i, ea + 2 * i + 1))
    return v


def out_eloads(par, off):
    return ["ds_read_b128 %s, v%d offset:%d" % (vr(EA[par]), V_EA, off),
            "ds_read_b128 %s, v%d offset:%d" % (vr(EA[par] + 4), V_EA, off + 16),
            "ds_read_b128 %s, v%d offset:%d" % (vr(EB[par]), V_EB, off),
            "ds_read_b128 %s, v%d offset:%d" % (vr(EB[par] + 4), V_EB, off + 16)]


def out_bloads(par, off):
    if os.environ.get("EXP") == "halfb":
        return ["ds_read_b64 %s, v%d offset:%d" % (ar(BB[par] + 4 * n, 2), V_B, off + n * 1024) for n in range(8)]
    if os.environ.get("EXP") == "vb":
        return ["ds_read_b128 %s, v%d offset:%d" % (vr(192 + 32 * par + 4 * n), V_B, off + n * 1024) for n in range(8)]
    return ["ds_read_b128 %s, v%d offset:%d" % (ar(BB[par] + 4 * n), V_B, off + n * 1024) for n in range(8)]


def store_group(par, rstatic=None):
    st = STG[par]
    g = []
    if rstatic is None:
        g.append("s_set_gpr_idx_on s%d, 0x3" % S_R)
        g.append("s_nop 0")
        r = 0
    else:
        r = rstatic
    for i in range(4):
        g.append("v_cvt_pk_bf16_f32 v%d, v%d, v%d" % (st + i, OACC + 16 * (2 * i) + r, OACC + 16 * (2 * i + 1) + r))
    if rstatic is None:
        g.append("s_set_gpr_idx_off")
        g.append("s_add_u32 s%d, s%d, 1" % (S_R, S_R))
    g.append("buffer_store_dwordx4 %s, v%d, %s, s%d offen%s" % (vr(st), V_ST, sr(SRD_O, 4), S_SO, STMOD))
    return g


def out_kstep(par, bsrc, accf, valu, loads, stg=None, prev_b=8):
    gaps = [[] for _ in range(8)]
    nl = [2, 1, 2, 1, 2, 1, 2, 1]
    li = 0
    issued = [0] * 9
    for n in range(8):
        for _ in range(nl[n]):
            if li < len(loads):
                gaps[n].append(loads[li]); li += 1
        issued[n + 1] = li
    budget = [24 - 4 * len(gaps[n]) for n in range(8)]
    if stg:
        gaps[3] = gaps[3] + list(stg)
        budget[3] = 0
    vi = 0
    for n in range(8):
        c = 0
        while vi < len(valu) and (c < budget[n] or n == 7):
            gaps[n].append(valu[vi]); c += a.cost(valu[vi]); vi += 1
    for n in range(8):
        if n % 2 == 0:
            if prev_b:
                e("s_waitcnt lgkmcnt(%d)" % (prev_b - (n + 2) + issued[n]))
            elif n == 0:
                e("s_waitcnt lgkmcnt(0)")
            if n == 0:
                e("s_nop 0")
        d = accf(n)
        e("v_mfma_f32_32x32x16_bf16 %s, %s, %s, %s" % (d, vr(JF[par]), bsrc(n), d))
        for s in gaps[n]:
            e(s)


def out_pass(tag, slow, second):
    accf = (lambda n: ar(OACC + 16 * n, 16)) if second else (lambda n: vr(OACC + 16 * n, 16))
    if not second:
        e("v_lshrrev_b32 v16, 5, v%d" % V_LANE)
        e("v_and_b32 v17, 31, v%d" % V_LANE)
        e("v_mul_u32_u24 v%d, %d, v17" % (V_EA, EAP))
        e("v_lshl_add_u32 v%d, v16, 5, v%d" % (V_EA, V_EA))
        e("v_add_u32 v%d, 0x%x, v%d" % (V_EA, EAB, V_EA))
        e("s_lshl_b32 s%d, s%d, 11" % (S_T, S_W))
        e("s_add_u32 s%d, s%d, %d" % (S_T, S_T, EBB))
        e("v_lshlrev_b32 v%d, 5, v16" % V_EB)
        e("v_add_u32 v%d, s%d, v%d" % (V_EB, S_T, V_EB))
        e("v_lshlrev_b32 v%d, 4, v%d" % (V_B, V_LANE))
        for s in out_eloads(0, 0) + out_eloads(1, 64):
            e(s)
        e("s_waitcnt lgkmcnt(4)")
        for s in out_bloads(0, 0):
            e(s)
        for s in ZL:
            e(s)
        for s in out_valu(0, slow):
            e(s)
    e("s_mov_b32 s%d, 0" % S_CNT)
    if second:
        e("s_mov_b32 s%d, 0" % S_R)
        e("s_mov_b32 s%d, s%d" % (S_SO, S_OBASE))
    lab = "L_ok_%s%d" % (tag, int(second))
    a.lab(lab)
    sg0 = sg1 = None
    if second:
        sg0 = store_group(0) + ["s_add_u32 s%d, s%d, 4096" % (S_SO, S_SO)]
        sg1 = store_group(1) + ["s_and_b32 s%d, s%d, 1" % (S_T, S_CNT), "s_lshl_b32 s%d, s%d, 14" % (S_T, S_T),
                                "s_add_u32 s%d, s%d, s%d" % (S_SO, S_SO, S_T), "s_add_u32 s%d, s%d, 4096" % (S_SO, S_SO)]
    out_kstep(0, lambda n: ar(BB[0] + 4 * n), accf, out_valu(1, slow), out_eloads(0, 128) + out_bloads(1, 8192), sg0)
    out_kstep(1, lambda n: ar(BB[1] + 4 * n), accf, out_valu(0, slow), out_eloads(1, 192) + out_bloads(0, 16384), sg1)
    e("v_add_u32 v%d, 0x80, v%d" % (V_EA, V_EA))
    e("v_add_u32 v%d, 0x80, v%d" % (V_EB, V_EB))
    e("v_add_u32 v%d, 0x4000, v%d" % (V_B, V_B))
    e("s_add_u32 s%d, s%d, 1" % (S_CNT, S_CNT))
    e("s_cmp_lt_u32 s%d, 7" % S_CNT)
    e("s_cbranch_scc1 %s" % lab)
    if second:
        sg0 = store_group(0, 14) + ["s_add_u32 s%d, s%d, 4096" % (S_SO, S_SO)]
        sg1 = store_group(1, 15)
    if second:
        out_kstep(0, lambda n: vr(192 + 4 * n), accf, out_valu(1, slow), [], sg0, 0)
        out_kstep(1, lambda n: vr(224 + 4 * n), accf, [], [], sg1, 0)
    else:
        e("v_subrev_u32 v%d, 0x380, v%d" % (V_EA, V_EA))
        e("v_add_u32 v%d, 0x80, v%d" % (V_EB, V_EB))
        e("v_lshlrev_b32 v%d, 4, v%d" % (V_B, V_LANE))
        out_kstep(0, lambda n: vr(192 + 4 * n), accf, out_valu(1, slow), out_eloads(0, 0), None, 0)
        out_kstep(1, lambda n: vr(224 + 4 * n), accf, out_valu(0, slow), out_eloads(1, 64) + out_bloads(0, 0), None, 0)


def phase_out(slow):
    tag = "s" if slow else "f"
    a.c("---- out phase (%s) ----" % tag)
    e("v_mov_b32 v%d, -2.0" % V_C0)
    e("v_mov_b32 v%d, -2.0" % (V_C0 + 1))
    e("v_lshrrev_b32 v16, 5, v%d" % V_LANE)
    e("v_and_b32 v17, 31, v%d" % V_LANE)
    e("v_lshlrev_b32 v%d, 14, v16" % V_ST)
    e("v_lshl_add_u32 v%d, v17, 4, v%d" % (V_ST, V_ST))
    e("s_mul_i32 s%d, s%d, 4000" % (S_T, S_B))
    e("s_add_u32 s%d, s%d, s%d" % (S_T, S_T, S_T0))
    e("s_lshl_b32 s%d, s%d, 12" % (S_OBASE, S_T))
    e("s_lshl_b32 s%d, s%d, 10" % (S_T, S_W))
    e("s_add_u32 s%d, s%d, s%d" % (S_OBASE, S_OBASE, S_T))
    out_pass(tag, slow, False)
    if not slow:
        stamp()
    out_pass(tag, slow, True)
    if not slow:
        stamp()
    e("s_nop 7")
    e("s_nop 3")
    e("s_add_u32 s%d, s%d, 512" % (S_T, S_OBASE))
    stq = [20, 36]
    for r in range(16):
        tq = stq[r & 1]
        st = tq + 8 + 4 * ((r >> 1) & 1)
        t = 8 * (r >> 2) + (r & 3)
        for n in range(8):
            e("v_accvgpr_read_b32 v%d, a%d" % (tq + n, OACC + 16 * n + r))
        for i in range(4):
            e("v_cvt_pk_bf16_f32 v%d, v%d, v%d" % (st + i, tq + 2 * i, tq + 2 * i + 1))
        e("s_add_u32 s%d, s%d, %d" % (S_SO, S_T, t * 4096))
        e("buffer_store_dwordx4 %s, v%d, %s, s%d offen%s" % (vr(st), V_ST, sr(SRD_O, 4), S_SO, STMOD))
    if not slow:
        stamp()
        stamp_store()
    e("s_endpgm")


def x_item(sl_, i):
    return ["s_add_u32 s94, s92, %d" % (sl_ * 128 + i * 16384),
            "s_add_u32 s95, s93, %d" % (sl_ * XS + i * 4 * XBP),
            "v_add_u32 v%d, s94, v%d" % (V_W0, V_XL),
            "s_mov_b32 m0, s95",
            "s_nop 0",
            "buffer_load_dwordx4 v%d, %s, 0 offen nt lds" % (V_W0, sr(SRD_X, 4))]


def w_item(i):
    if i == 0:
        return ["s_lshr_b32 s94, s2, 3", "s_and_b32 s94, s94, 31", "s_lshl_b32 s94, s94, 2",
                "s_add_u32 s94, s94, s%d" % S_W,
                "v_lshlrev_b32 v%d, 4, v%d" % (V_W1, V_LANE),
                "s_mul_i32 s95, s94, 3072",
                "v_add_u32 v%d, s95, v%d" % (V_W0, V_W1),
                "global_load_dwordx4 a[252:255], v%d, %s" % (V_W0, sr(S_W2))]
    if i < 3:
        return ["global_load_dwordx4 a[252:255], v%d, %s offset:%d" % (V_W0, sr(S_W2), i * 1024)]
    if i == 3:
        return ["s_lshl_b32 s95, s94, 10", "v_add_u32 v%d, s95, v%d" % (V_W0, V_W1),
                "global_load_dwordx4 a[252:255], v%d, %s" % (V_W0, sr(S_WF))]
    return ["global_load_dwordx4 a[252:255], v%d, %s" % (V_W0, sr(S_WO))]


def schedule(entries):
    out = []
    pend = []
    for u in range(len(UNITS)):
        for i in range(8):
            pend.append(("u", u, i))
        for si, pos in enumerate(XPOS):
            if u == pos:
                pend += [("x", si + 1, i) for i in range(4)]
        if u == WUPOS and WARM:
            pend += [("w", 0, i) for i in range(5)]
    pi = 0
    freed = set()
    vcount = 0
    last = {}
    marks = {}
    t = 0
    next_t = 0
    rare = 0
    forced = {}
    over = []
    enabled = []
    pace = [PACE1]

    afree = []
    where = {}

    def can(it):
        if it[0] != "u" or it[1] in where:
            return True
        u = it[1]
        if u < 6 or (u - 6) in freed:
            where[u] = None
            return True
        if afree and NASLOT and u < len(UNITS) - ATAIL:
            where[u] = afree.pop(0)
            return True
        return False

    def issue():
        nonlocal pi, vcount, t, next_t
        k, u, i = pend[pi]
        if k == "u":
            sb, vo, cst = UNITS[u]
            if i == 0:
                out.append("  v_add_u32 v%d, 0x%x, v%d" % (V_LD, cst, vo))
                t += 4
            dst = vr(slot(u) + 4 * i) if where[u] is None else ar(where[u] + 4 * i)
            out.append("  global_load_dwordx4 %s, v%d, %s offset:%d" % (dst, V_LD, sr(sb), i * 512))
            vcount += 1
            last[u] = vcount
        else:
            for s_ in (x_item(u, i) if k == "x" else w_item(i)):
                out.append("  " + s_)
            vcount += 1
            if k == "x":
                marks["x%d" % u] = vcount
        pi += 1
        t += 8
        next_t = max(next_t, t - 8) + (PACE0 if pi < NFAST else pace[0])

    for k, arg, cost, noins in entries:
        if not noins and k in ("i",):
            while pi < len(pend) and t >= next_t and can(pend[pi]):
                issue()
        if k == "i":
            out.append("  " + arg)
            if not rare:
                t += cost
        elif k == "v":
            out.append("  " + arg)
            vcount += 1
            t += PACE
            next_t = max(next_t, t)
        elif k == "l":
            out.append(arg + ":")
        elif k == "c":
            out.append("  ; %s  [t=%d, loads issued %d]" % (arg, t, pi))
        elif k == "free":
            freed.add(arg)
        elif k == "rare":
            rare = arg
        elif k in ("need", "flush"):
            while pi < len(pend) and not (pend[pi][0] == "u" and pend[pi][1] > arg) and (arg not in last or pend[pi][0] == "u"):
                assert can(pend[pi]), ("slot not free", pend[pi], arg)
                if k == "need":
                    forced[arg] = forced.get(arg, 0) + 1
                t = max(t, next_t)
                issue()
            if k == "need":
                n = vcount - last[arg]
                out.append("  s_waitcnt vmcnt(%d)" % min(n, 63))
                if where[arg] is not None:
                    assert (arg - 6) in freed
                    for r_ in range(32):
                        out.append("  v_accvgpr_read_b32 v%d, a%d" % (slot(arg) + r_, where[arg] + r_))
                    t += 128
                    afree.append(where[arg])
                    over.append(arg)
        elif k == "pace":
            pace[0] = arg
        elif k == "aslot":
            if len(enabled) < NASLOT:
                enabled.append(arg)
                afree.append(arg)
        elif k == "mark":
            marks[arg] = vcount
        elif k == "needmark":
            while arg not in marks or (pi < len(pend) and pend[pi][0] == "x" and "x%d" % pend[pi][1] == arg):
                t = max(t, next_t)
                issue()
            out.append("  s_waitcnt vmcnt(%d)" % min(vcount - marks[arg], 63))
    assert pi == len(pend)
    sys.stderr.write("est front cycles %d, forced: %s overflow units %s\n" % (t, forced, over))
    return out


def main():
    prologue()
    stamp()
    if os.environ.get("EARLYFLAG"):
        a.noins = 1
        e("s_lshl_b32 s%d, s%d, 4" % (S_T, S_B))
        e("v_mov_b32 v40, s%d" % S_T)
        e("s_mov_b32 s94, 0")
        a.lab("L_ef")
        e("global_load_dwordx4 v[60:63], v40, %s sc0 sc1" % sr(S_DBG))
        e("s_waitcnt vmcnt(0)")
        e("v_min_u32 v41, v60, v61")
        e("v_min3_u32 v41, v62, v63, v41")
        e("s_nop 0")
        e("v_readfirstlane_b32 s95, v41")
        e("s_add_u32 s94, s94, 1")
        e("s_cmp_gt_u32 s94, 100000")
        e("s_cbranch_scc1 L_ef_done")
        e("s_cmp_eq_u32 s95, 0")
        e("s_cbranch_scc1 L_ef")
        a.lab("L_ef_done")
        e("v_mov_b32 v40, 0x80")
        e("v_mov_b32 v41, s94")
        e("global_atomic_umax v40, v41, %s" % sr(S_DBG))
        e("s_waitcnt vmcnt(0)")
        a.noins = 0
    a.c("---- conv1 ----")
    a.op("aslot", 200)
    conv_phase(U_C1, 5, lambda sl, j: A_ACC1 + (sl * 8 + j) * 4, c1_areads, True)
    stamp()
    epi1()
    stamp()
    a.c("---- conv2 ----")
    flag_issue()
    conv_phase(U_C2, 2, lambda sl, j: A_ACC2 + (sl * 8 + j) * 4, c2_areads, False)
    stamp()
    epi2()
    stamp()
    if os.environ.get("PAD") == "line":
        a.noins = 1
        for _ in range(2048):
            e("v_add3_u32 v16, v16, 0, 0")
        a.noins = 0
    if os.environ.get("PAD") == "loop":
        a.noins = 1
        e("s_mov_b32 s94, 0")
        a.lab("L_pad")
        for _ in range(64):
            e("v_add3_u32 v16, v16, 0, 0")
        e("s_add_u32 s94, s94, 1")
        e("s_cmp_lt_u32 s94, 32")
        e("s_cbranch_scc1 L_pad")
        a.noins = 0
    phase_f()
    stamp()
    epi3()
    stamp()
    phase_wo()
    stamp()
    a.noins = 1
    front = schedule(a.l)
    a.l = []
    e("s_cmp_lg_u32 s%d, 0" % S_FLAG)
    e("s_cbranch_scc1 L_slow")
    phase_out(False)
    a.lab("L_slow")
    phase_out(True)
    producer()
    a.lab("L_end")
    e("s_endpgm")
    for _ in range(300):
        e("s_endpgm")
    back = []
    for k, arg, cost, noins in a.l:
        back.append(arg + ":" if k == "l" else ("  ; " + arg if k == "c" else "  " + arg))

    hdr = open("standalone__seq2seq_rnn_t_joint__speech.s.ref").read().split("\n")
    top = [l for l in hdr if l.startswith(";") and "@launch" not in l and "Override" not in l and "grid=ceil" not in l]
    out = "\n".join(top) + "\n"
    out += "; @launch grid=(252,1,1) block=(256,1,1) lds=%d\n" % LDS_TOTAL
    out += '.amdgcn_target "amdgcn-amd-amdhsa--gfx950"\n.text\n.globl %s\n.p2align 8\n.type %s,@function\n%s:\n' % (KN, KN, KN)
    out += "\n".join(front + back) + "\n"
    out += """.section .rodata,"a"
.p2align 6
.amdhsa_kernel %s
  .amdhsa_next_free_vgpr 512
  .amdhsa_next_free_sgpr 102
  .amdhsa_accum_offset 256
  .amdhsa_group_segment_fixed_size 0
  .amdhsa_kernarg_size 80
  .amdhsa_user_sgpr_count 2
  .amdhsa_user_sgpr_kernarg_segment_ptr 1
  .amdhsa_system_sgpr_workgroup_id_x 1
.end_amdhsa_kernel
""" % KN
    dst = sys.argv[1] if len(sys.argv) > 1 else "standalone__seq2seq_rnn_t_joint__speech.s"
    open(dst, "w").write(out)
    if PROF:
        sys.stderr.write("stamps %d\n" % NSTAMP[0])


main()
```

```python
import sys, os, struct

DEBUG = os.environ.get("DBG", "")
PROF = os.environ.get("PROF", "")
PACE = int(os.environ.get("PACE", "64"))
PACE0 = int(os.environ.get("PACE0", "30"))
NFAST = int(os.environ.get("NFAST", "60"))
PK = int(os.environ.get("PK", "0"))
STMOD = os.environ.get("STMOD", " nt")
CODEPF = int(os.environ.get("CODEPF", "1"))
NASLOT = int(os.environ.get("NASLOT", "3"))
ATAIL = int(os.environ.get("ATAIL", "3"))
W1WARM = int(os.environ.get("W1WARM", "1"))
PACE1 = int(os.environ.get("PACE1", "80"))
WUPOS = int(os.environ.get("WUPOS", "8"))
XPOS = [int(v) for v in os.environ.get("XPOS", "2,5,7").split(",")]
XS2 = int(os.environ.get("XS2", "0"))
XS3 = int(os.environ.get("XS3", "1"))
XWU = int(os.environ.get("XWU", "3"))
WARM = int(os.environ.get("WARM", "1"))
NSTAMP = [0]

KN = "standalone__seq2seq_rnn_t_joint__speech_kernel"

XBP = 1152
XS = 17 * XBP
XB = 0
EXB = 78848
EX1S = 18432
HB = 0
HP = 528
FB = 36864
FP = 544
FLG = 114688
EAB = 122368
EAP = 1040
EBB = 155648
LDS_TOTAL = 163840

V_OFF16, V_OFF32, V_LD = 1, 2, 3
V_A0, V_A1, V_A2 = 4, 5, 6
V_EXW, V_EXR = 7, 8
V_W0, V_W1 = 9, 10
V_MASK = 11
V_C0 = 12
V_LANE = 14
V_T0, V_T1 = 15, 16
V_OFF32W = 18
TMP = 20
RING = 64

S_X, S_W1, S_W2, S_G, S_WF, S_WG, S_WO, S_OUT = 4, 6, 8, 10, 12, 14, 16, 18
SRD_X, SRD_G, SRD_O = 20, 24, 28
S_W, S_NH, S_KH, S_B, S_T0, S_CNT = 56, 57, 58, 59, 60, 61
S_SELLO, S_SELHI = 62, 63
S_C1 = 64
S_ONE = 66
S_FLAG = 68
S_T = 69
S_SCL = 76
S_OBASE = 79
S_WSP = 80
S_SO = 82
S_R = 83
S_DBG = 84
SRD_WS = 88
S_TILE = 86

A_ACC1 = 0
A_AF = 160
A_ACCG = 200
A_GF = 232
A_ACC2 = 64
A_ACC3 = 0


def f32bits(x):
    return struct.unpack("<I", struct.pack("<f", x))[0]


LOG2E = 1.4426950408889634
GC0 = -2.0 * 0.7978845608028654 * LOG2E
GC1 = GC0 * 0.044715
TSC = 2.0 * LOG2E


class A:
    def __init__(self):
        self.l = []
        self.noins = 0

    def cost(self, s):
        op = s.split()[0]
        if op.startswith("v_mfma_f32_16x16"):
            return 10
        if op.startswith("v_mfma"):
            return 32
        if op in ("v_exp_f32", "v_rcp_f32"):
            return 8
        if op.startswith("v_"):
            return 4
        if op.startswith("ds_write_b128"):
            return 12
        if op.startswith("ds_"):
            return 4
        if op.startswith("buffer_") or op.startswith("global_"):
            return 8
        if op == "s_barrier":
            return 60
        if op == "s_nop":
            return 4 * (int(s.split()[1]) + 1)
        return 2

    def e(self, s):
        self.l.append(["i", s, self.cost(s), self.noins])

    def vm(self, s):
        self.l.append(["v", s, 8, 1])

    def lab(self, s):
        self.l.append(["l", s, 0, 1])

    def c(self, s):
        self.l.append(["c", s, 0, self.noins])

    def op(self, kind, arg):
        self.l.append([kind, arg, 0, self.noins])


a = A()
e = a.e


def vr(b, n=4):
    return "v[%d:%d]" % (b, b + n - 1)


def ar(b, n=4):
    return "a[%d:%d]" % (b, b + n - 1)


def sr(b, n=2):
    return "s[%d:%d]" % (b, b + n - 1)


def slot(u):
    return RING + 32 * (u % 6)


def conv_off(it, u):
    return (u >> 1) * 131072 + (u & 1) * 32768 + it * 65536


UNITS = []
for k in range(12):
    UNITS.append((S_W1, V_OFF16, (k % 3) * 131072 + (k // 3) * 32768))
for k in range(12):
    UNITS.append((S_W2, V_OFF16, (k % 3) * 131072 + (k // 3) * 32768))
for u in range(4):
    UNITS.append((S_WF, V_OFF16, u * 32768))
for i in range(4):
    UNITS.append((S_WO, V_OFF32W, i * 32768))
UNITS.append((S_WO, V_OFF32, 14 * 8192))
UNITS.append((S_WO, V_OFF32, 15 * 8192))
U_C1, U_C2, U_F, U_O = 0, 12, 24, 28


def perms(unit, j, dst):
    R = slot(unit)
    d = j >> 1
    sel = S_SELHI if (j & 1) else S_SELLO
    return ["v_perm_b32 v%d, v%d, v%d, s%d" % (dst + p, R + 4 * (2 * p + 1) + d, R + 4 * (2 * p) + d, sel)
            for p in range(4)]


FBUF = TMP


def prime(unit):
    a.op("need", unit)
    for j in (0, 1):
        for s in perms(unit, j, FBUF + 4 * j):
            e(s)


def emit_units(units, nM, acc):
    for ui, u in enumerate(units):
        for s in u.get("pre", []):
            if isinstance(s, tuple) and s[0] == "call":
                s[1]()
            elif isinstance(s, tuple):
                a.op(s[0], s[1])
            else:
                e(s)
        e("s_waitcnt lgkmcnt(0)")
        areads = list(u.get("areads", []))
        un = u["unit"]
        for j in range(8):
            fill = []
            jt = j + 2
            if jt < 8:
                fill += perms(un, jt, FBUF + 4 * (jt & 3))
                if jt == 7:
                    fill.append(("free", un))
            elif not u["last"]:
                if j == 6:
                    fill.append(("need", un + 1))
                fill += perms(un + 1, jt - 8, FBUF + 4 * (jt & 3))
            if areads and j < 6:
                fill.append(areads.pop(0))
            fb = FBUF + 4 * (j & 3)
            k = 0
            for sl in range(nM):
                d = acc(sl, j)
                e("v_mfma_f32_16x16x32_bf16 %s, %s, %s, %s" % (ar(d), ar(u["aset"][sl]), vr(fb), ar(d)))
                take = 2 if sl < nM - 1 else len(fill) - k
                for s in fill[k:k + take]:
                    if isinstance(s, tuple):
                        a.op(s[0], s[1])
                    else:
                        e(s)
                k += take
        assert not areads


def zero_acc(base, n, zreg):
    for b in range(base, base + n, 16):
        e("v_mfma_f32_32x32x16_bf16 %s, %s, %s, 0" % (ar(b, 16), vr(zreg), vr(zreg)))


DEFER = []


def e_d(s_):
    e(s_)
    if DEFER:
        e(DEFER.pop(0))


def gelu_pairs(xs, ts):
    for x, t in zip(xs, ts):
        e("v_pk_mul_f32 %s, %s, %s" % (vr(t, 2), vr(x, 2), vr(x, 2)))
    for x, t in zip(xs, ts):
        e("v_pk_fma_f32 %s, %s, %s, %s" % (vr(t, 2), vr(t, 2), sr(S_C1), vr(V_C0, 2)))
    for x, t in zip(xs, ts):
        e("v_pk_mul_f32 %s, %s, %s" % (vr(t, 2), vr(x, 2), vr(t, 2)))
    for i, (x, t) in enumerate(zip(xs, ts)):
        e("v_exp_f32 v%d, v%d" % (t, t))
        (e_d if i & 1 else e)("v_exp_f32 v%d, v%d" % (t + 1, t + 1))
    for x, t in zip(xs, ts):
        e("v_pk_add_f32 %s, %s, %s" % (vr(t, 2), vr(t, 2), sr(S_ONE)))
    for i, (x, t) in enumerate(zip(xs, ts)):
        e("v_rcp_f32 v%d, v%d" % (t, t))
        (e_d if i & 1 else e)("v_rcp_f32 v%d, v%d" % (t + 1, t + 1))
    for x, t in zip(xs, ts):
        e("v_pk_mul_f32 %s, %s, %s" % (vr(t, 2), vr(x, 2), vr(t, 2)))
    assert not DEFER


def stamp():
    if not PROF:
        return
    i = NSTAMP[0]
    NSTAMP[0] += 1
    assert i < 60
    e("s_memtime s[98:99]")
    e("s_waitcnt lgkmcnt(0)")
    e("v_writelane_b32 v19, s98, %d" % i)


def stamp_store():
    if not PROF:
        return
    e("s_waitcnt vmcnt(0)")
    stamp()
    e("s_lshl_b32 s98, s2, 10")
    e("s_lshl_b32 s99, s%d, 8" % S_W)
    e("s_add_u32 s98, s98, s99")
    e("s_add_u32 s98, s98, 0x10000")
    e("v_lshlrev_b32 v17, 2, v%d" % V_LANE)
    e("v_add_u32 v17, s98, v17")
    e("global_store_dword v17, v19, %s" % sr(S_WSP))


V_XL = 13


def x_slice(sl_):
    sv = a.noins
    a.noins = 1
    for i in range(4):
        e("s_add_u32 s94, s92, %d" % (sl_ * 128 + i * 16384))
        e("s_add_u32 s95, s93, %d" % (sl_ * XS + i * 4 * XBP))
        e("v_add_u32 v%d, s94, v%d" % (V_W0 + (i & 1), V_XL))
        e("s_mov_b32 m0, s95")
        e("s_nop 0")
        a.vm("buffer_load_dwordx4 v%d, %s, 0 offen nt lds" % (V_W0 + (i & 1), sr(SRD_X, 4)))
    a.op("mark", "x%d" % sl_)
    a.noins = sv


def w1warm():
    e("s_lshr_b32 s94, s2, 3")
    e("s_and_b32 s94, s94, 31")
    e("s_lshl_b32 s94, s94, 2")
    e("s_add_u32 s94, s94, s%d" % S_W)
    e("s_mul_i32 s95, s94, 3072")
    e("v_lshlrev_b32 v28, 4, v%d" % V_LANE)
    e("v_add_u32 v28, s95, v28")
    for i in range(3):
        a.vm("global_load_dwordx4 a[252:255], v28, %s offset:%d" % (sr(S_W1), i * 1024))
    if WARM == 2:
        for i in range(3):
            a.vm("global_load_dwordx4 a[252:255], v28, %s offset:%d" % (sr(S_W2), i * 1024))
        e("s_lshl_b32 s95, s94, 10")
        e("v_lshlrev_b32 v28, 4, v%d" % V_LANE)
        e("v_add_u32 v28, s95, v28")
        a.vm("global_load_dwordx4 a[252:255], v28, %s" % sr(S_WF))
        a.vm("global_load_dwordx4 a[252:255], v28, %s" % sr(S_WO))


def prologue():
    a.noins = 1
    e("s_cmp_ge_u32 s2, 252")
    e("s_cbranch_scc1 L_end")
    stamp()
    e("s_load_dwordx16 s[4:19], s[0:1], 0")
    e("s_load_dwordx2 %s, s[0:1], 64" % sr(S_DBG))
    e("s_load_dwordx2 %s, s[0:1], 72" % sr(S_WSP))
    e("v_lshrrev_b32 v20, 6, v0")
    e("v_and_b32 v%d, 63, v0" % V_LANE)
    e("s_sub_u32 s%d, s2, 2" % S_TILE)
    e("s_cmp_ge_u32 s%d, 125" % S_TILE)
    e("v_readfirstlane_b32 s%d, v20" % S_W)
    e("s_cselect_b32 s%d, 1, 0" % S_B)
    e("s_mul_i32 s%d, s%d, 125" % (S_T, S_B))
    e("s_sub_u32 s%d, s%d, s%d" % (S_T0, S_TILE, S_T))
    e("s_lshl_b32 s%d, s%d, 5" % (S_T0, S_T0))
    e("s_and_b32 s%d, s%d, 1" % (S_NH, S_W))
    e("s_lshr_b32 s%d, s%d, 1" % (S_KH, S_W))
    if CODEPF:
        e("s_getpc_b64 s[96:97]")
        a.lab("L_pc")
        e("s_lshr_b32 s94, s2, 3")
        e("s_and_b32 s94, s94, 31")
        e("s_lshl_b32 s94, s94, 2")
        e("s_add_u32 s94, s94, s%d" % S_W)
        e("s_min_u32 s94, s94, (L_end - L_pc) / 1024")
        e("s_lshl_b32 s94, s94, 10")
        e("v_lshlrev_b32 v21, 4, v%d" % V_LANE)
        e("v_add_u32 v21, s94, v21")
        a.vm("global_load_dwordx4 a[252:255], v21, s[96:97]")
    e("s_mov_b32 s%d, 0x05040100" % S_SELLO)
    e("s_mov_b32 s%d, 0x07060302" % S_SELHI)
    e("s_mov_b32 s%d, 0x%x" % (S_SCL, f32bits(TSC)))
    e("v_lshrrev_b32 v21, 4, v%d" % V_LANE)
    e("v_and_b32 v22, 15, v%d" % V_LANE)
    e("v_lshrrev_b32 v23, 5, v%d" % V_LANE)
    e("v_and_b32 v24, 31, v%d" % V_LANE)
    e("s_lshl_b32 s%d, s%d, 8" % (S_T, S_NH))
    e("s_lshl_b32 s%d, s%d, 14" % (S_T + 1, S_KH))
    e("s_add_u32 s%d, s%d, s%d" % (S_T, S_T, S_T + 1))
    e("v_lshlrev_b32 v25, 12, v21")
    e("v_lshl_add_u32 v25, v22, 4, v25")
    e("v_add_u32 v%d, s%d, v25" % (V_OFF16, S_T))
    e("v_lshrrev_b32 v26, 3, v%d" % V_LANE)
    e("v_and_b32 v25, 6, v26")
    e("v_and_b32 v27, 7, v%d" % V_LANE)
    e("v_xor_b32 v25, v25, v27")
    e("v_lshlrev_b32 v26, 9, v26")
    e("v_lshl_add_u32 v26, v25, 4, v26")
    e("v_lshlrev_b32 v25, 4, v%d" % V_LANE)
    e("s_mul_i32 s%d, s%d, %d" % (S_T, S_W, EX1S))
    e("s_add_u32 s%d, s%d, %d" % (S_T, S_T, EXB))
    e("v_add_u32 v%d, s%d, v25" % (V_EXW, S_T))
    e("s_xor_b32 s%d, s%d, 2" % (S_T + 1, S_W))
    e("s_mul_i32 s%d, s%d, %d" % (S_T, S_T + 1, EX1S))
    e("s_add_u32 s%d, s%d, %d" % (S_T, S_T, EXB))
    e("v_add_u32 v%d, s%d, v25" % (V_EXR, S_T))
    e("s_cmp_lt_u32 s2, 2")
    e("s_cbranch_scc1 L_prod")
    e("s_lshl_b32 s%d, s%d, 11" % (S_T, S_T0))
    e("s_sub_u32 s%d, s%d, 1536" % (S_T, S_T))
    e("s_lshl_b32 s%d, s%d, 7" % (S_T + 3, S_W))
    e("s_add_u32 s%d, s%d, s%d" % (S_T + 3, S_T + 3, S_T))
    e("s_add_u32 s%d, s%d, 65536" % (S_T + 3, S_T + 3))
    e("s_mul_i32 s%d, s%d, %d" % (S_T + 4, S_W, XS))
    e("s_add_u32 s%d, s%d, %d" % (S_T + 4, S_T + 4, 16 * XBP))
    e("s_lshl_b32 s%d, s%d, 12" % (S_T + 1, S_W))
    e("s_add_u32 s%d, s%d, s%d" % (S_T, S_T, S_T + 1))
    e("s_mul_i32 s%d, s%d, %d" % (S_T + 1, S_W, XBP))
    e("s_mul_i32 s%d, s%d, 8192000" % (S_T + 2, S_B))
    e("s_waitcnt lgkmcnt(0)")
    e("s_add_u32 s%d, s%d, s%d" % (SRD_X, S_X, S_T + 2))
    e("s_addc_u32 s%d, s%d, 0" % (SRD_X + 1, S_X + 1))
    e("s_and_b32 s%d, s%d, 0xffff" % (SRD_X + 1, SRD_X + 1))
    e("s_mov_b32 s%d, 8192000" % (SRD_X + 2))
    e("s_mov_b32 s%d, 0x00020000" % (SRD_X + 3))
    stamp()
    if W1WARM == 1:
        w1warm()
    e("v_add_u32 v27, s%d, v26" % (S_T + 3))
    e("s_mov_b32 m0, s%d" % (S_T + 4))
    e("s_nop 0")
    a.vm("buffer_load_dwordx4 v27, %s, 0 offen nt lds" % sr(SRD_X, 4))
    e("s_mov_b32 s92, s%d" % S_T)
    e("s_mov_b32 s93, s%d" % (S_T + 1))
    e("v_mov_b32 v%d, v26" % V_XL)
    x_slice(0)
    if W1WARM == 2:
        w1warm()
    a.op("flush", 0)
    stamp()
    a.noins = 0
    e("s_mov_b32 s%d, s%d" % (SRD_O, S_OUT))
    e("s_and_b32 s%d, s%d, 0xffff" % (SRD_O + 1, S_OUT + 1))
    e("s_mov_b32 s%d, 32768000" % (SRD_O + 2))
    e("s_mov_b32 s%d, 0x00020000" % (SRD_O + 3))
    e("s_mov_b32 s%d, s%d" % (SRD_WS, S_WSP))
    e("s_and_b32 s%d, s%d, 0xffff" % (SRD_WS + 1, S_WSP + 1))
    e("s_mov_b32 s%d, 32768" % (SRD_WS + 2))
    e("s_mov_b32 s%d, 0x00020000" % (SRD_WS + 3))
    e("s_mov_b32 s%d, 0x%x" % (S_C1, f32bits(GC1)))
    e("s_mov_b32 s%d, 0x%x" % (S_C1 + 1, f32bits(GC1)))
    e("s_mov_b32 s%d, 1.0" % S_ONE)
    e("s_mov_b32 s%d, 1.0" % (S_ONE + 1))
    e("s_mov_b32 s%d, 0" % S_FLAG)
    e("v_lshlrev_b32 v25, 12, v23")
    e("v_lshl_add_u32 v%d, v24, 4, v25" % V_OFF32)
    e("s_lshl_b32 s%d, s%d, 13" % (S_T, S_W))
    e("v_add_u32 v%d, s%d, v%d" % (V_OFF32W, S_T, V_OFF32))
    for i in range(4):
        e("v_mov_b32 v%d, 0" % (28 + i))
    e("s_nop 1")
    zero_acc(A_ACC1, 160, 28)
    e("s_or_b32 s%d, s%d, s%d" % (S_T, S_T0, S_KH))
    e("v_or_b32 v25, s%d, v21" % S_T)
    e("v_cmp_eq_u32 vcc, 0, v25")
    e("v_mov_b32 v25, 1.0")
    e("s_nop 1")
    e("v_cndmask_b32 v%d, v25, 0, vcc" % V_MASK)
    e("s_lshl_b32 s%d, s%d, 2" % (S_T, S_KH))
    e("v_add_u32 v25, s%d, v21" % S_T)
    e("s_mul_i32 s%d, s%d, 9216" % (S_T, S_KH))
    e("s_sub_u32 s%d, 9216, s%d" % (S_T + 1, S_T))
    for cls, dst in ((0, V_A0), (1, 15)):
        e("v_add_u32 v26, %d, v22" % cls)
        e("v_and_b32 v27, 3, v26")
        e("v_lshlrev_b32 v27, 1, v27")
        e("v_lshrrev_b32 v26, 2, v26")
        e("v_mul_u32_u24 v26, %d, v26" % XBP)
        e("v_lshl_add_u32 v26, v27, 7, v26")
        e("v_xor_b32 v27, v27, v25")
        e("v_lshl_add_u32 v26, v27, 4, v26")
        e("v_add_u32 v%d, s%d, v26" % (dst, S_T))
        e("v_add_u32 v%d, s%d, v26" % (dst + 1, S_T + 1))
        e("v_add_u32 v%d, 0x%x, v26" % (dst + 2, 18432))
    a.op("needmark", "x0")
    e("s_barrier")


def warmup():
    if not WARM:
        return
    e("s_lshr_b32 s94, s2, 3")
    e("s_and_b32 s94, s94, 31")
    e("s_lshl_b32 s94, s94, 2")
    e("s_add_u32 s94, s94, s%d" % S_W)
    e("v_lshlrev_b32 v%d, 4, v%d" % (V_W1, V_LANE))
    e("s_mul_i32 s95, s94, 3072")
    e("v_add_u32 v%d, s95, v%d" % (V_W0, V_W1))
    for i in range(3):
        a.vm("global_load_dwordx4 a[252:255], v%d, %s offset:%d" % (V_W0, sr(S_W2), i * 1024))
    e("s_lshl_b32 s95, s94, 10")
    e("v_add_u32 v%d, s95, v%d" % (V_W0, V_W1))
    a.vm("global_load_dwordx4 a[252:255], v%d, %s" % (V_W0, sr(S_WF)))
    a.vm("global_load_dwordx4 a[252:255], v%d, %s" % (V_W0, sr(S_WO)))


def producer():
    a.lab("L_prod")
    e("s_lshl_b32 s%d, s2, 12" % S_T)
    e("s_lshl_b32 s%d, s%d, 6" % (S_T + 1, S_KH))
    e("s_add_u32 s%d, s%d, s%d" % (S_T, S_T, S_T + 1))
    e("v_lshlrev_b32 v25, 9, v22")
    e("v_lshl_add_u32 v25, v21, 4, v25")
    e("v_add_u32 v25, s%d, v25" % S_T)
    e("s_waitcnt lgkmcnt(0)")
    e("s_mov_b32 s%d, s%d" % (SRD_G, S_G))
    e("s_and_b32 s%d, s%d, 0xffff" % (SRD_G + 1, S_G + 1))
    e("s_mov_b32 s%d, 8192" % (SRD_G + 2))
    e("s_mov_b32 s%d, 0x00020000" % (SRD_G + 3))
    for u in range(4):
        e("buffer_load_dwordx4 %s, v25, %s, 0 offen offset:%d" % (ar(A_GF + 4 * u), sr(SRD_G, 4), u * 128))
    for u in range(4):
        e("v_add_u32 v%d, 0x%x, v%d" % (V_LD, u * 32768, V_OFF16))
        for i in range(8):
            e("global_load_dwordx4 %s, v%d, %s offset:%d" % (vr(slot(u) + 4 * i), V_LD, sr(S_WG), i * 512))
    for i in range(4):
        e("v_mov_b32 v%d, 0" % (28 + i))
    e("s_nop 1")
    zero_acc(A_ACCG, 32, 28)
    e("s_waitcnt vmcnt(0)")
    for u in range(4):
        for j in range(8):
            for s_ in perms(u, j, FBUF + 4 * (j & 3)):
                e(s_)
            e("s_nop 1")
            d = A_ACCG + 4 * j
            e("v_mfma_f32_16x16x32_bf16 %s, %s, %s, %s" % (ar(d), ar(A_GF + 4 * u), vr(FBUF + 4 * (j & 3)), ar(d)))
    e("s_nop 7")
    e("s_nop 1")
    for j in range(8):
        e("ds_write_b128 v%d, %s offset:%d" % (V_EXW, ar(A_ACCG + 4 * j), j * 1024))
    e("v_lshrrev_b32 v20, 4, v%d" % V_LANE)
    e("v_and_b32 v21, 15, v%d" % V_LANE)
    e("v_and_b32 v20, 1, v20")
    e("v_lshlrev_b32 v20, 12, v20")
    e("v_lshl_add_u32 v20, v21, 5, v20")
    e("s_lshl_b32 s%d, s%d, 9" % (S_T, S_NH))
    e("s_lshl_b32 s%d, s2, 14" % (S_T + 1))
    e("s_add_u32 s%d, s%d, s%d" % (S_T, S_T, S_T + 1))
    e("v_add_u32 v%d, s%d, v20" % (V_W0, S_T))
    e("v_add_u32 v%d, 0x2000, v%d" % (V_A0, V_W0))
    e("v_mov_b32 v%d, 0" % V_W1)
    e("s_waitcnt lgkmcnt(0)")
    e("s_barrier")
    for j in range(8):
        e("ds_read_b128 %s, v%d offset:%d" % (vr(TMP + 4 * j), V_EXR, j * 1024))
    T = TMP + 32
    R = RING
    e("s_waitcnt lgkmcnt(0)")
    for j in range(8):
        P = TMP + 4 * j
        for r in range(4):
            e("v_accvgpr_read_b32 v%d, a%d" % (T + r, A_ACCG + 4 * j + r))
        e("v_pk_add_f32 %s, %s, %s" % (vr(P, 2), vr(P, 2), vr(T, 2)))
        e("v_pk_add_f32 %s, %s, %s" % (vr(P + 2, 2), vr(P + 2, 2), vr(T + 2, 2)))
        e("v_cvt_pk_bf16_f32 v%d, v%d, v%d" % (T, P, P + 1))
        e("v_cvt_pk_bf16_f32 v%d, v%d, v%d" % (T + 1, P + 2, P + 3))
        e("v_lshlrev_b32 v%d, 16, v%d" % (P, T))
        e("v_and_b32 v%d, 0xffff0000, v%d" % (P + 1, T))
        e("v_lshlrev_b32 v%d, 16, v%d" % (P + 2, T + 1))
        e("v_and_b32 v%d, 0xffff0000, v%d" % (P + 3, T + 1))
        for r in range(4):
            e("v_mul_f32 v%d, s%d, v%d" % (R + 8 * r + j, S_SCL, P + r))
        e("v_max3_f32 v%d, |v%d|, |v%d|, v%d" % (V_W1, R + j, R + 8 + j, V_W1))
        e("v_max3_f32 v%d, |v%d|, |v%d|, v%d" % (V_W1, R + 16 + j, R + 24 + j, V_W1))
        for r in range(4):
            e("v_exp_f32 v%d, v%d" % (R + 32 + 8 * r + j, R + 8 * r + j))
    e("v_mov_b32 v%d, 0x42fa0000" % T)
    e("s_mov_b32 exec_hi, 0")
    e("v_cmp_nle_f32 vcc, v%d, v%d" % (V_W1, T))
    for r in range(4):
        for hh in range(2):
            e("global_store_dwordx4 v%d, %s, %s offset:%d sc0 sc1" % (V_W0, vr(R + 32 + 8 * r + 4 * hh), sr(S_WSP), r * 1024 + hh * 16))
            e("global_store_dwordx4 v%d, %s, %s offset:%d sc0 sc1" % (V_A0, vr(R + 8 * r + 4 * hh), sr(S_WSP), r * 1024 + hh * 16))
    e("s_mov_b64 exec, -1")
    e("s_or_b32 s%d, vcc_lo, vcc_hi" % S_FLAG)
    e("s_cmp_lg_u32 s%d, 0" % S_FLAG)
    e("s_cselect_b32 s%d, 3, 1" % S_FLAG)
    e("s_lshl_b32 s%d, s2, 4" % S_T)
    e("s_lshl_b32 s%d, s%d, 2" % (S_T + 1, S_W))
    e("s_add_u32 s%d, s%d, s%d" % (S_T, S_T, S_T + 1))
    e("v_mov_b32 v20, s%d" % S_T)
    e("v_mov_b32 v21, s%d" % S_FLAG)
    e("s_waitcnt vmcnt(0)")
    e("s_mov_b32 exec_lo, 1")
    e("s_mov_b32 exec_hi, 0")
    e("global_store_dword v20, v21, %s sc0 sc1" % sr(S_DBG))
    e("s_endpgm")


def flag_issue():
    e("s_lshl_b32 s%d, s%d, 4" % (S_T, S_B))
    e("v_mov_b32 v15, s%d" % S_T)
    a.vm("global_load_dwordx4 v[60:63], v15, %s sc0 sc1" % sr(S_DBG))
    a.op("mark", "flag")


def eb_dma(wsoff):
    e("s_lshl_b32 s%d, s%d, 14" % (S_T, S_B))
    e("s_lshl_b32 s%d, s%d, 11" % (S_T + 1, S_W))
    e("s_add_u32 s%d, s%d, s%d" % (S_T, S_T, S_T + 1))
    e("s_add_u32 s%d, s%d, %d" % (S_T, S_T, wsoff))
    e("v_lshlrev_b32 v16, 4, v%d" % V_LANE)
    e("v_add_u32 v16, s%d, v16" % S_T)
    e("s_add_u32 s%d, s%d, %d" % (S_T + 1, S_T + 1, EBB))
    e("s_mov_b32 m0, s%d" % (S_T + 1))
    e("s_nop 0")


def flag_check():
    a.op("needmark", "flag")
    sv = a.noins
    a.noins = 1
    a.lab("L_flag_chk")
    e("v_min_u32 v16, v60, v61")
    e("v_min3_u32 v16, v62, v63, v16")
    e("v_or3_b32 v17, v60, v61, v62")
    e("v_or_b32 v17, v17, v63")
    e("v_readfirstlane_b32 s%d, v16" % (S_T))
    e("v_readfirstlane_b32 s%d, v17" % (S_T + 1))
    e("s_nop 3")
    e("s_cmp_lg_u32 s%d, 0" % S_T)
    e("s_cbranch_scc1 L_flag_ok")
    a.op("rare", 1)
    e("s_sleep 4")
    e("global_load_dwordx4 v[60:63], v15, %s sc0 sc1" % sr(S_DBG))
    e("s_waitcnt vmcnt(0)")
    e("s_branch L_flag_chk")
    a.op("rare", 0)
    a.lab("L_flag_ok")
    e("s_and_b32 s%d, s%d, 2" % (S_FLAG, S_T + 1))
    eb_dma(0)
    a.vm("buffer_load_dwordx4 v16, %s, 0 offen sc0 sc1 lds" % sr(SRD_WS, 4))
    a.vm("buffer_load_dwordx4 v16, %s, 0 offen offset:1024 sc0 sc1 lds" % sr(SRD_WS, 4))
    a.op("mark", "eb")
    a.noins = sv


TAPH = [0, HP, 2 * HP]


def c1_areads(k, aset):
    tap = k % 3
    out = []
    for sl in range(5):
        b0 = V_A0 if tap < 2 else 15
        base = b0 if sl < 2 else (b0 + 1 if sl < 4 else b0 + 2)
        off = ((sl & 1) * 4608 if sl < 4 else 0) + (128 if tap == 1 else 0)
        out.append("ds_read_b128 %s, v%d offset:%d" % (ar(aset + 4 * sl), base, off))
    return out


def c2_areads(k, aset):
    tap, sl_ = k % 3, k // 3
    return ["ds_read_b128 %s, v%d offset:%d" % (ar(aset + 4 * sl), V_A0 + sl, HB + TAPH[tap] + sl_ * 128)
            for sl in range(2)]


def conv_phase(u0, nM, acc, areads_fn, isx):
    A_AF, AST = (160, 20) if isx else (232, 8)
    for s in areads_fn(0, A_AF):
        e(s)
    prime(u0)
    units = []
    for k in range(12):
        nk = k + 1
        pre = []
        if isx and k % 3 == 2 and k < 11:
            pre = [("needmark", "x%d" % (k // 3 + 1)), "s_barrier"]
            pre += ["v_add_u32 v%d, 0x%x, v%d" % (r, XS, r) for r in (V_A0, V_A1, V_A2)]
        if isx and k % 3 == 0 and k > 0:
            pre = ["v_add_u32 v%d, 0x%x, v%d" % (r, XS, r) for r in (15, 16, 17)]
        if isx and PROF == "2":
            pre = pre + [("call", stamp)]
        units.append(dict(unit=u0 + k, aset=[A_AF + AST * (k & 1) + 4 * s for s in range(nM)], last=(k == 11), pre=pre,
                          areads=(areads_fn(nk, A_AF + AST * (nk & 1)) if k < 11 else [])))
    emit_units(units, nM, acc)


def lane_fields():
    e("v_lshrrev_b32 v16, 4, v%d" % V_LANE)
    e("v_and_b32 v17, 15, v%d" % V_LANE)


P0, P1 = TMP, TMP + 8
TT = TMP + 16
OWN = TMP + 24
OUTR = TMP + 28


def add_own(P, accbase):
    for i in range(0, 8, 4):
        for k in range(4):
            e("v_accvgpr_read_b32 v%d, a%d" % (OWN + k, accbase + i + k))
        e("v_pk_add_f32 %s, %s, %s" % (vr(P + i, 2), vr(P + i, 2), vr(OWN, 2)))
        e("v_pk_add_f32 %s, %s, %s" % (vr(P + i + 2, 2), vr(P + i + 2, 2), vr(OWN + 2, 2)))


def epi_gelu_slot(accbase, rdoff, nblocks_after, wr, mask):
    for jp in range(4):
        P = P0 if (jp & 1) == 0 else P1
        Pn = P1 if (jp & 1) == 0 else P0
        nxt = rdoff + (2 * jp + 2) * 1024
        more = jp < 3 or nblocks_after
        if more:
            e("ds_read_b128 %s, v%d offset:%d" % (vr(Pn), V_EXR, nxt))
            e("ds_read_b128 %s, v%d offset:%d" % (vr(Pn + 4), V_EXR, nxt + 1024))
            e("s_waitcnt lgkmcnt(2)")
        else:
            e("s_waitcnt lgkmcnt(0)")
        add_own(P, accbase + 8 * jp)
        gelu_pairs([P, P + 2, P + 4, P + 6], [TT, TT + 2, TT + 4, TT + 6])
        if mask:
            e("v_mul_f32 v%d, v%d, v%d" % (TT, V_MASK, TT))
            e("v_mul_f32 v%d, v%d, v%d" % (TT + 4, V_MASK, TT + 4))
        for r in range(4):
            e("v_cvt_pk_bf16_f32 v%d, v%d, v%d" % (OUTR + 4 * r + jp, TT + r, TT + 4 + r))
    for r in range(4):
        if nblocks_after:
            DEFER.append(wr(r))
        else:
            e(wr(r))


def epi1():
    a.c("---- epilogue conv1 ----")
    a.op("pace", PACE)
    a.op("aslot", 160)
    e("v_mov_b32 v%d, 0x%x" % (V_C0, f32bits(GC0)))
    e("v_mov_b32 v%d, 0x%x" % (V_C0 + 1, f32bits(GC0)))
    e("s_nop 7")
    e("s_nop 1")
    for j in range(8):
        e("v_accvgpr_read_b32 v%d, a%d" % (TMP + j, A_ACC1 + 128 + 4 * j))
    for i in range(16):
        e("ds_write_b128 v%d, %s offset:%d" % (V_EXW, ar(A_ACC1 + 64 + 4 * i), i * 1024))
    e("ds_write_b128 v%d, %s offset:%d" % (V_EXW, vr(TMP), 16384))
    e("ds_write_b128 v%d, %s offset:%d" % (V_EXW, vr(TMP + 4), 17408))
    lane_fields()
    e("s_mul_i32 s%d, s%d, %d" % (S_T, S_KH, 32 * HP))
    e("s_lshl_b32 s%d, s%d, 8" % (S_T + 1, S_NH))
    e("v_mul_u32_u24 v16, %d, v16" % (4 * HP))
    e("v_lshl_add_u32 v17, v17, 4, s%d" % (S_T + 1))
    e("v_add3_u32 v%d, v16, v17, s%d" % (V_W0, S_T))
    e("v_add_u32 v%d, 0x%x, v17" % (V_W1, HB + 64 * HP))
    for i in range(4):
        e("v_mov_b32 v%d, 0" % (TT + i))
    e("s_waitcnt lgkmcnt(0)")
    e("s_nop 1")
    zero_acc(A_ACC2, 64, TT)
    e("s_barrier")
    e("ds_read_b128 %s, v%d offset:0" % (vr(P0), V_EXR))
    e("ds_read_b128 %s, v%d offset:1024" % (vr(P0 + 4), V_EXR))
    for sl in range(2):
        epi_gelu_slot(A_ACC1 + 32 * sl, sl * 8192, True,
                      lambda r, sl=sl: "ds_write_b128 v%d, %s offset:%d" % (V_W0, vr(OUTR + 4 * r), HB + (16 * sl + r) * HP),
                      sl == 0)
    e("s_waitcnt lgkmcnt(0)")
    for j in range(8):
        e("v_accvgpr_read_b32 v%d, a%d" % (TT + j, A_ACC1 + 128 + 4 * j))
    for i in range(0, 8, 2):
        e("v_pk_add_f32 %s, %s, %s" % (vr(P0 + i, 2), vr(P0 + i, 2), vr(TT + i, 2)))
    a.op("aslot", 128)
    gelu_pairs([P0, P0 + 2, P0 + 4, P0 + 6], [TT, TT + 2, TT + 4, TT + 6])
    for i in range(4):
        e("v_cvt_pk_bf16_f32 v%d, v%d, v%d" % (P1 + i, TT + 2 * i, TT + 2 * i + 1))
    a.noins = 1
    e("s_mov_b32 exec_lo, 0xffff")
    e("s_mov_b32 exec_hi, 0")
    e("ds_write_b128 v%d, %s" % (V_W1, vr(P1)))
    e("s_mov_b64 exec, -1")
    a.noins = 0
    lane_fields()
    e("s_lshl_b32 s%d, s%d, 6" % (S_T, S_KH))
    e("v_mul_u32_u24 v17, %d, v17" % (2 * HP))
    e("v_lshl_add_u32 v17, v16, 4, v17")
    e("v_add_u32 v17, s%d, v17" % S_T)
    e("s_mul_i32 s%d, s%d, %d" % (S_T, S_KH, 32 * HP))
    e("v_add_u32 v%d, s%d, v17" % (V_A0, S_T))
    e("s_sub_u32 s%d, %d, s%d" % (S_T, 32 * HP, S_T))
    e("v_add_u32 v%d, s%d, v17" % (V_A1, S_T))
    e("v_lshlrev_b32 v16, 4, v%d" % V_LANE)
    e("s_lshl_b32 s%d, s%d, 13" % (S_T, S_W))
    e("s_add_u32 s%d, s%d, %d" % (S_T, S_T, EXB))
    e("v_add_u32 v%d, s%d, v16" % (V_EXW, S_T))
    e("s_xor_b32 s%d, s%d, 2" % (S_T, S_W))
    e("s_lshl_b32 s%d, s%d, 13" % (S_T, S_T))
    e("s_add_u32 s%d, s%d, %d" % (S_T, S_T, EXB))
    e("v_add_u32 v%d, s%d, v16" % (V_EXR, S_T))
    e("s_waitcnt lgkmcnt(0)")
    e("s_barrier")


def epi2():
    a.c("---- epilogue conv2 ----")
    flag_check()
    for i in range(8):
        e("ds_write_b128 v%d, %s offset:%d" % (V_EXW, ar(A_ACC2 + 32 + 4 * i), i * 1024))
    lane_fields()
    e("s_mul_i32 s%d, s%d, %d" % (S_T, S_KH, 16 * FP))
    e("s_lshl_b32 s%d, s%d, 8" % (S_T + 1, S_NH))
    e("v_mul_u32_u24 v16, %d, v16" % (4 * FP))
    e("v_lshl_add_u32 v17, v17, 4, s%d" % (S_T + 1))
    e("v_add3_u32 v%d, v16, v17, s%d" % (V_W0, S_T))
    for i in range(4):
        e("v_mov_b32 v%d, 0" % (TT + i))
    e("s_nop 1")
    zero_acc(A_ACC3, 64, TT)
    e("s_waitcnt lgkmcnt(0)")
    e("s_barrier")
    e("ds_read_b128 %s, v%d offset:0" % (vr(P0), V_EXR))
    e("ds_read_b128 %s, v%d offset:1024" % (vr(P0 + 4), V_EXR))
    epi_gelu_slot(A_ACC2, 0, False,
                  lambda r: "ds_write_b128 v%d, %s offset:%d" % (V_W0, vr(OUTR + 4 * r), FB + r * FP), False)
    lane_fields()
    e("s_lshl_b32 s%d, s%d, 6" % (S_T, S_KH))
    e("s_add_u32 s%d, s%d, %d" % (S_T, S_T, FB))
    e("v_mul_u32_u24 v17, %d, v17" % FP)
    e("v_lshl_add_u32 v17, v16, 4, v17")
    e("v_add_u32 v17, s%d, v17" % S_T)
    e("s_mul_i32 s%d, s%d, %d" % (S_T, S_KH, 16 * FP))
    e("v_add_u32 v%d, s%d, v17" % (V_A0, S_T))
    e("s_sub_u32 s%d, %d, s%d" % (S_T, 16 * FP, S_T))
    e("v_add_u32 v%d, s%d, v17" % (V_A1, S_T))
    e("s_waitcnt lgkmcnt(0)")
    e("s_barrier")


def f_areads(u, aset):
    return ["ds_read_b128 %s, v%d offset:%d" % (ar(aset + 4 * sl), V_A0 + sl, u * 128) for sl in range(2)]


def phase_f():
    a.c("---- fe ----")
    A_AF = 232
    for s in f_areads(0, A_AF):
        e(s)
    prime(U_F)
    units = []
    for u in range(4):
        units.append(dict(unit=U_F + u, aset=[A_AF + 8 * (u & 1) + 4 * s for s in range(2)], last=(u == 3),
                          areads=(f_areads(u + 1, A_AF + 8 * ((u + 1) & 1)) if u < 3 else [])))
    emit_units(units, 2, lambda sl, j: A_ACC3 + (sl * 8 + j) * 4)


def epi3_body(raw):
    e("ds_read_b128 %s, v%d offset:0" % (vr(P0), V_EXR))
    e("ds_read_b128 %s, v%d offset:1024" % (vr(P0 + 4), V_EXR))
    for jp in range(4):
        P = P0 if (jp & 1) == 0 else P1
        Pn = P1 if (jp & 1) == 0 else P0
        if jp < 3:
            e("ds_read_b128 %s, v%d offset:%d" % (vr(Pn), V_EXR, (2 * jp + 2) * 1024))
            e("ds_read_b128 %s, v%d offset:%d" % (vr(Pn + 4), V_EXR, (2 * jp + 3) * 1024))
            e("s_waitcnt lgkmcnt(2)")
        else:
            e("s_waitcnt lgkmcnt(0)")
        add_own(P, A_ACC3 + 8 * jp)
        for i in range(4):
            e("v_cvt_pk_bf16_f32 v%d, v%d, v%d" % (TT + i, P + 2 * i, P + 2 * i + 1))
        for i in range(4):
            e("v_lshlrev_b32 v%d, 16, v%d" % (P + 2 * i, TT + i))
            e("v_and_b32 v%d, 0xffff0000, v%d" % (P + 2 * i + 1, TT + i))
        for i in range(8):
            e("v_mul_f32 v%d, s%d, v%d" % (P + i, S_SCL, P + i))
        if not raw:
            for i in range(4):
                e("v_max3_f32 v%d, |v%d|, |v%d|, v%d" % (V_W1, P + 2 * i, P + 2 * i + 1, V_W1))
        for jj in range(2):
            for r in range(4):
                d = OUTR + 4 * r + (jp & 1) * 2 + jj
                if raw:
                    e("v_mov_b32 v%d, v%d" % (d, P + 4 * jj + r))
                else:
                    e("v_exp_f32 v%d, v%d" % (d, P + 4 * jj + r))
        if jp & 1:
            e("s_nop 0")
            for r in range(4):
                e("ds_write_b128 v%d, %s offset:%d" % (V_W0, vr(OUTR + 4 * r), r * EAP + (jp >> 1) * 16))


def epi3():
    a.c("---- epilogue fe ----")
    e("s_nop 7")
    e("s_nop 1")
    for i in range(8):
        e("ds_write_b128 v%d, %s offset:%d" % (V_EXW, ar(A_ACC3 + 32 + 4 * i), i * 1024))
    lane_fields()
    e("s_mul_i32 s%d, s%d, %d" % (S_T, S_KH, 16 * EAP))
    e("s_add_u32 s%d, s%d, %d" % (S_T, S_T, EAB))
    e("s_lshl_b32 s%d, s%d, 9" % (S_T + 1, S_NH))
    e("v_mul_u32_u24 v16, %d, v16" % (4 * EAP))
    e("v_lshl_add_u32 v17, v17, 5, s%d" % (S_T + 1))
    e("v_add3_u32 v%d, v16, v17, s%d" % (V_W0, S_T))
    e("v_mov_b32 v%d, 0" % V_W1)
    e("s_waitcnt lgkmcnt(0)")
    e("s_barrier")
    epi3_body(False)
    e("v_mov_b32 v16, 0x42fa0000")
    e("v_cmp_nle_f32 vcc, v%d, v16" % V_W1)
    e("s_lshl_b32 s%d, s%d, 2" % (S_T, S_W))
    e("s_add_u32 s%d, s%d, %d" % (S_T, S_T, FLG))
    e("s_or_b32 s%d, s%d, vcc_lo" % (S_FLAG, S_FLAG))
    e("s_or_b32 s%d, s%d, vcc_hi" % (S_FLAG, S_FLAG))
    e("v_mov_b32 v16, s%d" % S_T)
    e("v_mov_b32 v17, s%d" % S_FLAG)
    e("ds_write_b32 v16, v17")
    e("s_waitcnt lgkmcnt(0)")
    e("s_barrier")
    e("v_mov_b32 v16, 0x%x" % FLG)
    e("ds_read_b128 %s, v16" % vr(TMP))
    e("s_waitcnt lgkmcnt(0)")
    e("v_or3_b32 v16, v%d, v%d, v%d" % (TMP, TMP + 1, TMP + 2))
    e("v_or_b32 v16, v16, v%d" % (TMP + 3))
    e("s_nop 0")
    e("v_readfirstlane_b32 s%d, v16" % S_FLAG)
    e("s_nop 3")
    e("s_cmp_eq_u32 s%d, 0" % S_FLAG)
    e("s_cbranch_scc1 L_fast1")
    a.noins = 1
    a.op("rare", 1)
    epi3_body(True)
    e("s_waitcnt vmcnt(0)")
    e("s_barrier")
    eb_dma(8192)
    e("buffer_load_dwordx4 v16, %s, 0 offen sc0 sc1 lds" % sr(SRD_WS, 4))
    e("buffer_load_dwordx4 v16, %s, 0 offen offset:1024 sc0 sc1 lds" % sr(SRD_WS, 4))
    e("s_waitcnt vmcnt(0) lgkmcnt(0)")
    e("s_barrier")
    a.op("rare", 0)
    a.lab("L_fast1")
    a.noins = 0


ZL = []
OACC = 64


def phase_wo():
    a.c("---- w_o fragments ----")
    e("v_lshlrev_b32 v16, 4, v%d" % V_LANE)
    e("s_lshl_b32 s%d, s%d, 13" % (S_T, S_W))
    e("v_add_u32 v16, s%d, v16" % S_T)
    for i in range(4):
        e("v_mov_b32 v%d, 0" % (60 + i))
    zl = ["v_mfma_f32_32x32x16_bf16 %s, %s, %s, 0" % (ar(OACC + 16 * n, 16), vr(60), vr(60)) for n in range(8)]
    e("v_add_u32 v17, 0x10000, v16")
    lag = []

    def wo_unit(i):
        a.op("need", U_O + i)
        for n in range(8):
            dst = TMP + 4 * n
            for k_, s_ in enumerate(perms(U_O + i, n, dst)):
                e(s_)
                if k_ == 1 and len(lag) >= 4:
                    e(lag.pop(0))
            lag.append("ds_write_b128 v%d, %s offset:%d" % (16 + (i >> 1), vr(dst), (i & 1) * 32768 + n * 1024))

    for i in range(3):
        wo_unit(i)
    while lag:
        e(lag.pop(0))
    a.op("flush", len(UNITS) - 1)
    a.noins = 1
    e("s_cmp_ge_u32 s%d, 2" % S_W)
    e("s_cbranch_scc1 L_wo_skip")
    e("s_nop 4")
    wo_unit(3)
    while lag:
        e(lag.pop(0))
    a.lab("L_wo_skip")
    for i in (4, 5):
        a.op("need", U_O + i)
        for n in range(8):
            for s in perms(U_O + i, n, 192 + 32 * (i - 4) + 4 * n):
                e(s)
    for n in range(8):
        e("v_mfma_f32_32x32x16_bf16 %s, %s, %s, 0" % (vr(OACC + 16 * n, 16), vr(60), vr(60)))
    e("s_waitcnt lgkmcnt(0)")
    e("s_barrier")
    ZL.extend(zl)


EA = [20, 28]
EB = [36, 44]
JF = [52, 56]
V_EA, V_EB, V_B, V_ST = 4, 5, 6, 7
BB = [0, 32]
STG = [8, 60]


def out_valu(par, slow):
    ea, eb, jf = EA[par], EB[par], JF[par]
    v = []
    if os.environ.get("EXP") == "novalu":
        return ["v_cvt_pk_bf16_f32 v%d, v%d, v%d" % (jf + i, ea + 2 * i, ea + 2 * i + 1) for i in range(4)]
    if slow:
        for i in range(8):
            v.append("v_add_f32 v%d, v%d, v%d" % (ea + i, ea + i, eb + i))
        for i in range(8):
            v.append("v_exp_f32 v%d, v%d" % (ea + i, ea + i))
        for i in range(8):
            v.append("v_add_f32 v%d, 1.0, v%d" % (ea + i, ea + i))
    elif PK:
        for i in range(0, 8, 2):
            v.append("v_pk_fma_f32 %s, %s, %s, %s" % (vr(ea + i, 2), vr(ea + i, 2), vr(eb + i, 2), sr(S_ONE)))
    else:
        for i in range(8):
            v.append("v_fma_f32 v%d, v%d, v%d, 1.0" % (ea + i, ea + i, eb + i))
    for i in range(8):
        v.append("v_rcp_f32 v%d, v%d" % (ea + i, ea + i))
    if PK:
        for i in range(0, 8, 2):
            v.append("v_pk_fma_f32 %s, %s, %s, %s" % (vr(ea + i, 2), vr(ea + i, 2), vr(V_C0, 2), sr(S_ONE)))
    else:
        for i in range(8):
            v.append("v_fma_f32 v%d, v%d, -2.0, 1.0" % (ea + i, ea + i))
    for i in range(4):
        v.append("v_cvt_pk_bf16_f32 v%d, v%d, v%d" % (jf + i, ea + 2 * i, ea + 2 * i + 1))
    return v


def out_eloads(par, off):
    return ["ds_read_b128 %s, v%d offset:%d" % (vr(EA[par]), V_EA, off),
            "ds_read_b128 %s, v%d offset:%d" % (vr(EA[par] + 4), V_EA, off + 16),
            "ds_read_b128 %s, v%d offset:%d" % (vr(EB[par]), V_EB, off),
            "ds_read_b128 %s, v%d offset:%d" % (vr(EB[par] + 4), V_EB, off + 16)]


def out_bloads(par, off):
    if os.environ.get("EXP") == "halfb":
        return ["ds_read_b64 %s, v%d offset:%d" % (ar(BB[par] + 4 * n, 2), V_B, off + n * 1024) for n in range(8)]
    if os.environ.get("EXP") == "vb":
        return ["ds_read_b128 %s, v%d offset:%d" % (vr(192 + 32 * par + 4 * n), V_B, off + n * 1024) for n in range(8)]
    return ["ds_read_b128 %s, v%d offset:%d" % (ar(BB[par] + 4 * n), V_B, off + n * 1024) for n in range(8)]


def store_group(par, rstatic=None):
    st = STG[par]
    g = []
    if rstatic is None:
        g.append("s_set_gpr_idx_on s%d, 0x3" % S_R)
        g.append("s_nop 0")
        r = 0
    else:
        r = rstatic
    for i in range(4):
        g.append("v_cvt_pk_bf16_f32 v%d, v%d, v%d" % (st + i, OACC + 16 * (2 * i) + r, OACC + 16 * (2 * i + 1) + r))
    if rstatic is None:
        g.append("s_set_gpr_idx_off")
        g.append("s_add_u32 s%d, s%d, 1" % (S_R, S_R))
    g.append("buffer_store_dwordx4 %s, v%d, %s, s%d offen%s" % (vr(st), V_ST, sr(SRD_O, 4), S_SO, STMOD))
    return g


def out_kstep(par, bsrc, accf, valu, loads, stg=None, prev_b=8):
    gaps = [[] for _ in range(8)]
    nl = [2, 1, 2, 1, 2, 1, 2, 1]
    li = 0
    issued = [0] * 9
    for n in range(8):
        for _ in range(nl[n]):
            if li < len(loads):
                gaps[n].append(loads[li]); li += 1
        issued[n + 1] = li
    budget = [24 - 4 * len(gaps[n]) for n in range(8)]
    if stg:
        gaps[3] = gaps[3] + list(stg)
        budget[3] = 0
    vi = 0
    for n in range(8):
        c = 0
        while vi < len(valu) and (c < budget[n] or n == 7):
            gaps[n].append(valu[vi]); c += a.cost(valu[vi]); vi += 1
    for n in range(8):
        if n % 2 == 0:
            if prev_b:
                e("s_waitcnt lgkmcnt(%d)" % (prev_b - (n + 2) + issued[n]))
            elif n == 0:
                e("s_waitcnt lgkmcnt(0)")
            if n == 0:
                e("s_nop 0")
        d = accf(n)
        e("v_mfma_f32_32x32x16_bf16 %s, %s, %s, %s" % (d, vr(JF[par]), bsrc(n), d))
        for s in gaps[n]:
            e(s)


def out_pass(tag, slow, second):
    accf = (lambda n: ar(OACC + 16 * n, 16)) if second else (lambda n: vr(OACC + 16 * n, 16))
    if not second:
        e("v_lshrrev_b32 v16, 5, v%d" % V_LANE)
        e("v_and_b32 v17, 31, v%d" % V_LANE)
        e("v_mul_u32_u24 v%d, %d, v17" % (V_EA, EAP))
        e("v_lshl_add_u32 v%d, v16, 5, v%d" % (V_EA, V_EA))
        e("v_add_u32 v%d, 0x%x, v%d" % (V_EA, EAB, V_EA))
        e("s_lshl_b32 s%d, s%d, 11" % (S_T, S_W))
        e("s_add_u32 s%d, s%d, %d" % (S_T, S_T, EBB))
        e("v_lshlrev_b32 v%d, 5, v16" % V_EB)
        e("v_add_u32 v%d, s%d, v%d" % (V_EB, S_T, V_EB))
        e("v_lshlrev_b32 v%d, 4, v%d" % (V_B, V_LANE))
        for s in out_eloads(0, 0) + out_eloads(1, 64):
            e(s)
        e("s_waitcnt lgkmcnt(4)")
        for s in out_bloads(0, 0):
            e(s)
        for s in ZL:
            e(s)
        for s in out_valu(0, slow):
            e(s)
    e("s_mov_b32 s%d, 0" % S_CNT)
    if second:
        e("s_mov_b32 s%d, 0" % S_R)
        e("s_mov_b32 s%d, s%d" % (S_SO, S_OBASE))
    lab = "L_ok_%s%d" % (tag, int(second))
    a.lab(lab)
    sg0 = sg1 = None
    if second:
        sg0 = store_group(0) + ["s_add_u32 s%d, s%d, 4096" % (S_SO, S_SO)]
        sg1 = store_group(1) + ["s_and_b32 s%d, s%d, 1" % (S_T, S_CNT), "s_lshl_b32 s%d, s%d, 14" % (S_T, S_T),
                                "s_add_u32 s%d, s%d, s%d" % (S_SO, S_SO, S_T), "s_add_u32 s%d, s%d, 4096" % (S_SO, S_SO)]
    out_kstep(0, lambda n: ar(BB[0] + 4 * n), accf, out_valu(1, slow), out_eloads(0, 128) + out_bloads(1, 8192), sg0)
    out_kstep(1, lambda n: ar(BB[1] + 4 * n), accf, out_valu(0, slow), out_eloads(1, 192) + out_bloads(0, 16384), sg1)
    e("v_add_u32 v%d, 0x80, v%d" % (V_EA, V_EA))
    e("v_add_u32 v%d, 0x80, v%d" % (V_EB, V_EB))
    e("v_add_u32 v%d, 0x4000, v%d" % (V_B, V_B))
    e("s_add_u32 s%d, s%d, 1" % (S_CNT, S_CNT))
    e("s_cmp_lt_u32 s%d, 7" % S_CNT)
    e("s_cbranch_scc1 %s" % lab)
    if second:
        sg0 = store_group(0, 14) + ["s_add_u32 s%d, s%d, 4096" % (S_SO, S_SO)]
        sg1 = store_group(1, 15)
    if second:
        out_kstep(0, lambda n: vr(192 + 4 * n), accf, out_valu(1, slow), [], sg0, 0)
        out_kstep(1, lambda n: vr(224 + 4 * n), accf, [], [], sg1, 0)
    else:
        e("v_subrev_u32 v%d, 0x380, v%d" % (V_EA, V_EA))
        e("v_add_u32 v%d, 0x80, v%d" % (V_EB, V_EB))
        e("v_lshlrev_b32 v%d, 4, v%d" % (V_B, V_LANE))
        out_kstep(0, lambda n: vr(192 + 4 * n), accf, out_valu(1, slow), out_eloads(0, 0), None, 0)
        out_kstep(1, lambda n: vr(224 + 4 * n), accf, out_valu(0, slow), out_eloads(1, 64) + out_bloads(0, 0), None, 0)


def phase_out(slow):
    tag = "s" if slow else "f"
    a.c("---- out phase (%s) ----" % tag)
    e("v_mov_b32 v%d, -2.0" % V_C0)
    e("v_mov_b32 v%d, -2.0" % (V_C0 + 1))
    e("v_lshrrev_b32 v16, 5, v%d" % V_LANE)
    e("v_and_b32 v17, 31, v%d" % V_LANE)
    e("v_lshlrev_b32 v%d, 14, v16" % V_ST)
    e("v_lshl_add_u32 v%d, v17, 4, v%d" % (V_ST, V_ST))
    e("s_mul_i32 s%d, s%d, 4000" % (S_T, S_B))
    e("s_add_u32 s%d, s%d, s%d" % (S_T, S_T, S_T0))
    e("s_lshl_b32 s%d, s%d, 12" % (S_OBASE, S_T))
    e("s_lshl_b32 s%d, s%d, 10" % (S_T, S_W))
    e("s_add_u32 s%d, s%d, s%d" % (S_OBASE, S_OBASE, S_T))
    out_pass(tag, slow, False)
    if not slow:
        stamp()
    out_pass(tag, slow, True)
    if not slow:
        stamp()
    e("s_nop 7")
    e("s_nop 3")
    e("s_add_u32 s%d, s%d, 512" % (S_T, S_OBASE))
    stq = [20, 36]
    for r in range(16):
        tq = stq[r & 1]
        st = tq + 8 + 4 * ((r >> 1) & 1)
        t = 8 * (r >> 2) + (r & 3)
        for n in range(8):
            e("v_accvgpr_read_b32 v%d, a%d" % (tq + n, OACC + 16 * n + r))
        for i in range(4):
            e("v_cvt_pk_bf16_f32 v%d, v%d, v%d" % (st + i, tq + 2 * i, tq + 2 * i + 1))
        e("s_add_u32 s%d, s%d, %d" % (S_SO, S_T, t * 4096))
        e("buffer_store_dwordx4 %s, v%d, %s, s%d offen%s" % (vr(st), V_ST, sr(SRD_O, 4), S_SO, STMOD))
    if not slow:
        stamp()
        stamp_store()
    e("s_endpgm")


def x_item(sl_, i):
    return ["s_add_u32 s94, s92, %d" % (sl_ * 128 + i * 16384),
            "s_add_u32 s95, s93, %d" % (sl_ * XS + i * 4 * XBP),
            "v_add_u32 v%d, s94, v%d" % (V_W0, V_XL),
            "s_mov_b32 m0, s95",
            "s_nop 0",
            "buffer_load_dwordx4 v%d, %s, 0 offen nt lds" % (V_W0, sr(SRD_X, 4))]


def w_item(i):
    if i == 0:
        return ["s_lshr_b32 s94, s2, 3", "s_and_b32 s94, s94, 31", "s_lshl_b32 s94, s94, 2",
                "s_add_u32 s94, s94, s%d" % S_W,
                "v_lshlrev_b32 v%d, 4, v%d" % (V_W1, V_LANE),
                "s_mul_i32 s95, s94, 3072",
                "v_add_u32 v%d, s95, v%d" % (V_W0, V_W1),
                "global_load_dwordx4 a[252:255], v%d, %s" % (V_W0, sr(S_W2))]
    if i < 3:
        return ["global_load_dwordx4 a[252:255], v%d, %s offset:%d" % (V_W0, sr(S_W2), i * 1024)]
    if i == 3:
        return ["s_lshl_b32 s95, s94, 10", "v_add_u32 v%d, s95, v%d" % (V_W0, V_W1),
                "global_load_dwordx4 a[252:255], v%d, %s" % (V_W0, sr(S_WF))]
    return ["global_load_dwordx4 a[252:255], v%d, %s" % (V_W0, sr(S_WO))]


def schedule(entries):
    out = []
    pend = []
    for u in range(len(UNITS)):
        for i in range(8):
            pend.append(("u", u, i))
        for si, pos in enumerate(XPOS):
            if u == pos:
                pend += [("x", si + 1, i) for i in range(4)]
        if u == WUPOS and WARM == 1:
            pend += [("w", 0, i) for i in range(5)]
    pi = 0
    freed = set()
    vcount = 0
    last = {}
    marks = {}
    t = 0
    next_t = 0
    rare = 0
    forced = {}
    over = []
    enabled = []
    pace = [PACE1]

    afree = []
    where = {}

    def can(it):
        if it[0] != "u" or it[1] in where:
            return True
        u = it[1]
        if u < 6 or (u - 6) in freed:
            where[u] = None
            return True
        if afree and NASLOT and u < len(UNITS) - ATAIL:
            where[u] = afree.pop(0)
            return True
        return False

    def issue():
        nonlocal pi, vcount, t, next_t
        k, u, i = pend[pi]
        if k == "u":
            sb, vo, cst = UNITS[u]
            if i == 0:
                out.append("  v_add_u32 v%d, 0x%x, v%d" % (V_LD, cst, vo))
                t += 4
            dst = vr(slot(u) + 4 * i) if where[u] is None else ar(where[u] + 4 * i)
            out.append("  global_load_dwordx4 %s, v%d, %s offset:%d" % (dst, V_LD, sr(sb), i * 512))
            vcount += 1
            last[u] = vcount
        else:
            for s_ in (x_item(u, i) if k == "x" else w_item(i)):
                out.append("  " + s_)
            vcount += 1
            if k == "x":
                marks["x%d" % u] = vcount
        pi += 1
        t += 8
        next_t = max(next_t, t - 8) + (PACE0 if pi < NFAST else pace[0])

    for k, arg, cost, noins in entries:
        if not noins and k in ("i",):
            while pi < len(pend) and t >= next_t and can(pend[pi]):
                issue()
        if k == "i":
            out.append("  " + arg)
            if not rare:
                t += cost
        elif k == "v":
            out.append("  " + arg)
            vcount += 1
            t += PACE
            next_t = max(next_t, t)
        elif k == "l":
            out.append(arg + ":")
        elif k == "c":
            out.append("  ; %s  [t=%d, loads issued %d]" % (arg, t, pi))
        elif k == "free":
            freed.add(arg)
        elif k == "rare":
            rare = arg
        elif k in ("need", "flush"):
            while pi < len(pend) and not (pend[pi][0] == "u" and pend[pi][1] > arg) and (arg not in last or pend[pi][0] == "u"):
                assert can(pend[pi]), ("slot not free", pend[pi], arg)
                if k == "need":
                    forced[arg] = forced.get(arg, 0) + 1
                t = max(t, next_t)
                issue()
            if k == "need":
                n = vcount - last[arg]
                out.append("  s_waitcnt vmcnt(%d)" % min(n, 63))
                if where[arg] is not None:
                    assert (arg - 6) in freed
                    for r_ in range(32):
                        out.append("  v_accvgpr_read_b32 v%d, a%d" % (slot(arg) + r_, where[arg] + r_))
                    t += 128
                    afree.append(where[arg])
                    over.append(arg)
        elif k == "pace":
            pace[0] = arg
        elif k == "aslot":
            if len(enabled) < NASLOT:
                enabled.append(arg)
                afree.append(arg)
        elif k == "mark":
            marks[arg] = vcount
        elif k == "needmark":
            while arg not in marks or (pi < len(pend) and pend[pi][0] == "x" and "x%d" % pend[pi][1] == arg):
                t = max(t, next_t)
                issue()
            out.append("  s_waitcnt vmcnt(%d)" % min(vcount - marks[arg], 63))
    assert pi == len(pend)
    sys.stderr.write("est front cycles %d, forced: %s overflow units %s\n" % (t, forced, over))
    return out


def main():
    prologue()
    stamp()
    if os.environ.get("EARLYFLAG"):
        a.noins = 1
        e("s_lshl_b32 s%d, s%d, 4" % (S_T, S_B))
        e("v_mov_b32 v40, s%d" % S_T)
        e("s_mov_b32 s94, 0")
        a.lab("L_ef")
        e("global_load_dwordx4 v[60:63], v40, %s sc0 sc1" % sr(S_DBG))
        e("s_waitcnt vmcnt(0)")
        e("v_min_u32 v41, v60, v61")
        e("v_min3_u32 v41, v62, v63, v41")
        e("s_nop 0")
        e("v_readfirstlane_b32 s95, v41")
        e("s_add_u32 s94, s94, 1")
        e("s_cmp_gt_u32 s94, 100000")
        e("s_cbranch_scc1 L_ef_done")
        e("s_cmp_eq_u32 s95, 0")
        e("s_cbranch_scc1 L_ef")
        a.lab("L_ef_done")
        e("v_mov_b32 v40, 0x80")
        e("v_mov_b32 v41, s94")
        e("global_atomic_umax v40, v41, %s" % sr(S_DBG))
        e("s_waitcnt vmcnt(0)")
        a.noins = 0
    a.c("---- conv1 ----")
    a.op("aslot", 200)
    conv_phase(U_C1, 5, lambda sl, j: A_ACC1 + (sl * 8 + j) * 4, c1_areads, True)
    stamp()
    epi1()
    stamp()
    a.c("---- conv2 ----")
    flag_issue()
    conv_phase(U_C2, 2, lambda sl, j: A_ACC2 + (sl * 8 + j) * 4, c2_areads, False)
    stamp()
    epi2()
    stamp()
    if os.environ.get("PAD") == "line":
        a.noins = 1
        for _ in range(2048):
            e("v_add3_u32 v16, v16, 0, 0")
        a.noins = 0
    if os.environ.get("PAD") == "loop":
        a.noins = 1
        e("s_mov_b32 s94, 0")
        a.lab("L_pad")
        for _ in range(64):
            e("v_add3_u32 v16, v16, 0, 0")
        e("s_add_u32 s94, s94, 1")
        e("s_cmp_lt_u32 s94, 32")
        e("s_cbranch_scc1 L_pad")
        a.noins = 0
    phase_f()
    stamp()
    epi3()
    stamp()
    phase_wo()
    stamp()
    a.noins = 1
    front = schedule(a.l)
    a.l = []
    e("s_cmp_lg_u32 s%d, 0" % S_FLAG)
    e("s_cbranch_scc1 L_slow")
    phase_out(False)
    a.lab("L_slow")
    phase_out(True)
    producer()
    a.lab("L_end")
    e("s_endpgm")
    for _ in range(300):
        e("s_endpgm")
    back = []
    for k, arg, cost, noins in a.l:
        back.append(arg + ":" if k == "l" else ("  ; " + arg if k == "c" else "  " + arg))

    hdr = open("standalone__seq2seq_rnn_t_joint__speech.s.ref").read().split("\n")
    top = [l for l in hdr if l.startswith(";") and "@launch" not in l and "Override" not in l and "grid=ceil" not in l]
    out = "\n".join(top) + "\n"
    out += "; @launch grid=(252,1,1) block=(256,1,1) lds=%d\n" % LDS_TOTAL
    out += '.amdgcn_target "amdgcn-amd-amdhsa--gfx950"\n.text\n.globl %s\n.p2align 8\n.type %s,@function\n%s:\n' % (KN, KN, KN)
    out += "\n".join(front + back) + "\n"
    out += """.section .rodata,"a"
.p2align 6
.amdhsa_kernel %s
  .amdhsa_next_free_vgpr 512
  .amdhsa_next_free_sgpr 102
  .amdhsa_accum_offset 256
  .amdhsa_group_segment_fixed_size 0
  .amdhsa_kernarg_size 80
  .amdhsa_user_sgpr_count 2
  .amdhsa_user_sgpr_kernarg_segment_ptr 1
  .amdhsa_system_sgpr_workgroup_id_x 1
.end_amdhsa_kernel
""" % KN
    dst = sys.argv[1] if len(sys.argv) > 1 else "standalone__seq2seq_rnn_t_joint__speech.s"
    open(dst, "w").write(out)
    if PROF:
        sys.stderr.write("stamps %d\n" % NSTAMP[0])


main()
```

```python
import sys, os, struct

DEBUG = os.environ.get("DBG", "")
PROF = os.environ.get("PROF", "")
PACE = int(os.environ.get("PACE", "64"))
PACE0 = int(os.environ.get("PACE0", "30"))
NFAST = int(os.environ.get("NFAST", "60"))
PK = int(os.environ.get("PK", "0"))
STMOD = os.environ.get("STMOD", " nt")
CODEPF = int(os.environ.get("CODEPF", "1"))
NASLOT = int(os.environ.get("NASLOT", "3"))
ATAIL = int(os.environ.get("ATAIL", "0"))
W1WARM = int(os.environ.get("W1WARM", "1"))
PACE1 = int(os.environ.get("PACE1", "80"))
FCHK = int(os.environ.get("FCHK", "6"))
WUPOS = int(os.environ.get("WUPOS", "8"))
XPOS = [int(v) for v in os.environ.get("XPOS", "1,3,5").split(",")]
XS2 = int(os.environ.get("XS2", "0"))
XS3 = int(os.environ.get("XS3", "1"))
XWU = int(os.environ.get("XWU", "3"))
WARM = int(os.environ.get("WARM", "1"))
NSTAMP = [0]

KN = "standalone__seq2seq_rnn_t_joint__speech_kernel"

XBP = 1152
XS = 17 * XBP
XB = 0
EXB = 78848
EX1S = 18432
HB = 0
HP = 528
FB = 122368
FRF = 65536
FRO = FRF + 131072
WSZ = FRO + 131072
FP = 544
FLG = 114688
EAB = 122368
EAP = 1040
EBB = 155648
LDS_TOTAL = 163840

V_OFF16, V_OFF32, V_LD = 1, 2, 3
V_A0, V_A1, V_A2 = 4, 5, 6
V_EXW, V_EXR = 7, 8
V_W0, V_W1 = 9, 10
V_MASK = 11
V_C0 = 12
V_LANE = 14
V_T0, V_T1 = 15, 16
V_OFF32W = 18
TMP = 20
RING = 64

S_X, S_W1, S_W2, S_G, S_WF, S_WG, S_WO, S_OUT = 4, 6, 8, 10, 12, 14, 16, 18
SRD_X, SRD_G, SRD_O = 20, 24, 28
S_W, S_NH, S_KH, S_B, S_T0, S_CNT = 56, 57, 58, 59, 60, 61
S_SELLO, S_SELHI = 62, 63
S_C1 = 64
S_ONE = 66
S_FLAG = 68
S_T = 69
S_SCL = 76
S_OBASE = 79
S_WSP = 80
S_SO = 82
S_R = 83
S_DBG = 84
SRD_WS = 88
S_TILE = 86

A_ACC1 = 0
A_AF = 160
A_ACCG = 200
A_GF = 232
A_ACC2 = 64
A_ACC3 = 0


def f32bits(x):
    return struct.unpack("<I", struct.pack("<f", x))[0]


LOG2E = 1.4426950408889634
GC0 = -2.0 * 0.7978845608028654 * LOG2E
GC1 = GC0 * 0.044715
TSC = 2.0 * LOG2E


class A:
    def __init__(self):
        self.l = []
        self.noins = 0

    def cost(self, s):
        op = s.split()[0]
        if op.startswith("v_mfma_f32_16x16"):
            return 10
        if op.startswith("v_mfma"):
            return 32
        if op in ("v_exp_f32", "v_rcp_f32"):
            return 8
        if op.startswith("v_"):
            return 4
        if op.startswith("ds_write_b128"):
            return 12
        if op.startswith("ds_"):
            return 4
        if op.startswith("buffer_") or op.startswith("global_"):
            return 8
        if op == "s_barrier":
            return 60
        if op == "s_nop":
            return 4 * (int(s.split()[1]) + 1)
        return 2

    def e(self, s):
        self.l.append(["i", s, self.cost(s), self.noins])

    def vm(self, s):
        self.l.append(["v", s, 8, 1])

    def lab(self, s):
        self.l.append(["l", s, 0, 1])

    def c(self, s):
        self.l.append(["c", s, 0, self.noins])

    def op(self, kind, arg):
        self.l.append([kind, arg, 0, self.noins])


a = A()
e = a.e


def vr(b, n=4):
    return "v[%d:%d]" % (b, b + n - 1)


def ar(b, n=4):
    return "a[%d:%d]" % (b, b + n - 1)


def sr(b, n=2):
    return "s[%d:%d]" % (b, b + n - 1)


def slot(u):
    return RING + 32 * (u % 6)


def conv_off(it, u):
    return (u >> 1) * 131072 + (u & 1) * 32768 + it * 65536


UNITS = []
for k in range(12):
    UNITS.append((S_W1, V_OFF16, (k % 3) * 131072 + (k // 3) * 32768))
for k in range(12):
    UNITS.append((S_W2, V_OFF16, (k % 3) * 131072 + (k // 3) * 32768))
U_C1, U_C2 = 0, 12


def fslot(g):
    return RING + 16 * g


def perms(unit, j, dst):
    R = slot(unit)
    d = j >> 1
    sel = S_SELHI if (j & 1) else S_SELLO
    return ["v_perm_b32 v%d, v%d, v%d, s%d" % (dst + p, R + 4 * (2 * p + 1) + d, R + 4 * (2 * p) + d, sel)
            for p in range(4)]


FBUF = TMP


def prime(unit):
    a.op("need", unit)
    for j in (0, 1):
        for s in perms(unit, j, FBUF + 4 * j):
            e(s)


def emit_units(units, nM, acc):
    for ui, u in enumerate(units):
        for s in u.get("pre", []):
            if isinstance(s, tuple) and s[0] == "call":
                s[1]()
            elif isinstance(s, tuple):
                a.op(s[0], s[1])
            else:
                e(s)
        e("s_waitcnt lgkmcnt(0)")
        areads = list(u.get("areads", []))
        un = u["unit"]
        for j in range(8):
            fill = []
            jt = j + 2
            if jt < 8:
                fill += perms(un, jt, FBUF + 4 * (jt & 3))
                if jt == 7:
                    fill.append(("free", un))
            elif not u["last"]:
                if j == 6:
                    fill.append(("need", un + 1))
                fill += perms(un + 1, jt - 8, FBUF + 4 * (jt & 3))
            if areads and j < 6:
                fill.append(areads.pop(0))
            fb = FBUF + 4 * (j & 3)
            k = 0
            for sl in range(nM):
                d = acc(sl, j)
                e("v_mfma_f32_16x16x32_bf16 %s, %s, %s, %s" % (ar(d), ar(u["aset"][sl]), vr(fb), ar(d)))
                take = 2 if sl < nM - 1 else len(fill) - k
                for s in fill[k:k + take]:
                    if isinstance(s, tuple):
                        a.op(s[0], s[1])
                    else:
                        e(s)
                k += take
        assert not areads


def zero_acc(base, n, zreg):
    for b in range(base, base + n, 16):
        e("v_mfma_f32_32x32x16_bf16 %s, %s, %s, 0" % (ar(b, 16), vr(zreg), vr(zreg)))


DEFER = []


def e_d(s_):
    e(s_)
    if DEFER:
        e(DEFER.pop(0))


def gelu_pairs(xs, ts):
    for x, t in zip(xs, ts):
        e("v_pk_mul_f32 %s, %s, %s" % (vr(t, 2), vr(x, 2), vr(x, 2)))
    for x, t in zip(xs, ts):
        e("v_pk_fma_f32 %s, %s, %s, %s" % (vr(t, 2), vr(t, 2), sr(S_C1), vr(V_C0, 2)))
    for x, t in zip(xs, ts):
        e("v_pk_mul_f32 %s, %s, %s" % (vr(t, 2), vr(x, 2), vr(t, 2)))
    for i, (x, t) in enumerate(zip(xs, ts)):
        e("v_exp_f32 v%d, v%d" % (t, t))
        (e_d if i & 1 else e)("v_exp_f32 v%d, v%d" % (t + 1, t + 1))
    for x, t in zip(xs, ts):
        e("v_pk_add_f32 %s, %s, %s" % (vr(t, 2), vr(t, 2), sr(S_ONE)))
    for i, (x, t) in enumerate(zip(xs, ts)):
        e("v_rcp_f32 v%d, v%d" % (t, t))
        (e_d if i & 1 else e)("v_rcp_f32 v%d, v%d" % (t + 1, t + 1))
    for x, t in zip(xs, ts):
        e("v_pk_mul_f32 %s, %s, %s" % (vr(t, 2), vr(x, 2), vr(t, 2)))
    assert not DEFER


def stamp():
    if not PROF:
        return
    i = NSTAMP[0]
    NSTAMP[0] += 1
    assert i < 60
    e("s_memtime s[98:99]")
    e("s_waitcnt lgkmcnt(0)")
    e("v_writelane_b32 v19, s98, %d" % i)


def stamp_store():
    if not PROF:
        return
    e("s_waitcnt vmcnt(0)")
    stamp()
    e("s_lshl_b32 s98, s2, 10")
    e("s_lshl_b32 s99, s%d, 8" % S_W)
    e("s_add_u32 s98, s98, s99")
    e("s_add_u32 s98, s98, 0x100000")
    e("v_lshlrev_b32 v17, 2, v%d" % V_LANE)
    e("v_add_u32 v17, s98, v17")
    e("global_store_dword v17, v19, %s" % sr(S_WSP))


V_XL = 13


def x_slice(sl_):
    sv = a.noins
    a.noins = 1
    for i in range(4):
        e("s_add_u32 s94, s92, %d" % (sl_ * 128 + i * 16384))
        e("s_add_u32 s95, s93, %d" % (sl_ * XS + i * 4 * XBP))
        e("v_add_u32 v%d, s94, v%d" % (V_W0 + (i & 1), V_XL))
        e("s_mov_b32 m0, s95")
        e("s_nop 0")
        a.vm("buffer_load_dwordx4 v%d, %s, 0 offen nt lds" % (V_W0 + (i & 1), sr(SRD_X, 4)))
    a.op("mark", "x%d" % sl_)
    a.noins = sv


def w1warm():
    e("s_lshr_b32 s94, s2, 3")
    e("s_and_b32 s94, s94, 31")
    e("s_lshl_b32 s94, s94, 2")
    e("s_add_u32 s94, s94, s%d" % S_W)
    e("s_mul_i32 s95, s94, 3072")
    e("v_lshlrev_b32 v28, 4, v%d" % V_LANE)
    e("v_add_u32 v28, s95, v28")
    for i in range(3):
        a.vm("global_load_dwordx4 a[252:255], v28, %s offset:%d" % (sr(S_W1), i * 1024))
    if WARM == 2:
        for i in range(3):
            a.vm("global_load_dwordx4 a[252:255], v28, %s offset:%d" % (sr(S_W2), i * 1024))
        e("s_lshl_b32 s95, s94, 10")
        e("v_lshlrev_b32 v28, 4, v%d" % V_LANE)
        e("v_add_u32 v28, s95, v28")
        a.vm("global_load_dwordx4 a[252:255], v28, %s" % sr(S_WF))
        a.vm("global_load_dwordx4 a[252:255], v28, %s" % sr(S_WO))


def prologue():
    a.noins = 1
    e("s_cmp_ge_u32 s2, 254")
    e("s_cbranch_scc1 L_end")
    stamp()
    e("s_load_dwordx16 s[4:19], s[0:1], 0")
    e("s_load_dwordx2 %s, s[0:1], 64" % sr(S_DBG))
    e("s_load_dwordx2 %s, s[0:1], 72" % sr(S_WSP))
    e("v_lshrrev_b32 v20, 6, v0")
    e("v_and_b32 v%d, 63, v0" % V_LANE)
    e("s_sub_u32 s%d, s2, 4" % S_TILE)
    e("s_cmp_ge_u32 s%d, 125" % S_TILE)
    e("v_readfirstlane_b32 s%d, v20" % S_W)
    e("s_cselect_b32 s%d, 1, 0" % S_B)
    e("s_mul_i32 s%d, s%d, 125" % (S_T, S_B))
    e("s_sub_u32 s%d, s%d, s%d" % (S_T0, S_TILE, S_T))
    e("s_lshl_b32 s%d, s%d, 5" % (S_T0, S_T0))
    e("s_and_b32 s%d, s%d, 1" % (S_NH, S_W))
    e("s_lshr_b32 s%d, s%d, 1" % (S_KH, S_W))
    if CODEPF:
        e("s_getpc_b64 s[96:97]")
        a.lab("L_pc")
        e("s_lshr_b32 s94, s2, 3")
        e("s_and_b32 s94, s94, 31")
        e("s_lshl_b32 s94, s94, 2")
        e("s_add_u32 s94, s94, s%d" % S_W)
        e("s_min_u32 s94, s94, (L_end - L_pc) / 1024")
        e("s_lshl_b32 s94, s94, 10")
        e("v_lshlrev_b32 v21, 4, v%d" % V_LANE)
        e("v_add_u32 v21, s94, v21")
        a.vm("global_load_dwordx4 a[252:255], v21, s[96:97]")
    e("s_mov_b32 s%d, 0x05040100" % S_SELLO)
    e("s_mov_b32 s%d, 0x07060302" % S_SELHI)
    e("s_mov_b32 s%d, 0x%x" % (S_SCL, f32bits(TSC)))
    e("v_lshrrev_b32 v21, 4, v%d" % V_LANE)
    e("v_and_b32 v22, 15, v%d" % V_LANE)
    e("v_lshrrev_b32 v23, 5, v%d" % V_LANE)
    e("v_and_b32 v24, 31, v%d" % V_LANE)
    e("s_lshl_b32 s%d, s%d, 8" % (S_T, S_NH))
    e("s_lshl_b32 s%d, s%d, 14" % (S_T + 1, S_KH))
    e("s_add_u32 s%d, s%d, s%d" % (S_T, S_T, S_T + 1))
    e("v_lshlrev_b32 v25, 12, v21")
    e("v_lshl_add_u32 v25, v22, 4, v25")
    e("v_add_u32 v%d, s%d, v25" % (V_OFF16, S_T))
    e("v_lshrrev_b32 v26, 3, v%d" % V_LANE)
    e("v_and_b32 v25, 6, v26")
    e("v_and_b32 v27, 7, v%d" % V_LANE)
    e("v_xor_b32 v25, v25, v27")
    e("v_lshlrev_b32 v26, 9, v26")
    e("v_lshl_add_u32 v26, v25, 4, v26")
    e("v_lshlrev_b32 v25, 4, v%d" % V_LANE)
    e("s_mul_i32 s%d, s%d, %d" % (S_T, S_W, EX1S))
    e("s_add_u32 s%d, s%d, %d" % (S_T, S_T, EXB))
    e("v_add_u32 v%d, s%d, v25" % (V_EXW, S_T))
    e("s_xor_b32 s%d, s%d, 2" % (S_T + 1, S_W))
    e("s_mul_i32 s%d, s%d, %d" % (S_T, S_T + 1, EX1S))
    e("s_add_u32 s%d, s%d, %d" % (S_T, S_T, EXB))
    e("v_add_u32 v%d, s%d, v25" % (V_EXR, S_T))
    e("s_cmp_lt_u32 s2, 4")
    e("s_cbranch_scc1 L_prod")
    e("s_lshl_b32 s%d, s%d, 11" % (S_T, S_T0))
    e("s_sub_u32 s%d, s%d, 1536" % (S_T, S_T))
    e("s_lshl_b32 s%d, s%d, 7" % (S_T + 3, S_W))
    e("s_add_u32 s%d, s%d, s%d" % (S_T + 3, S_T + 3, S_T))
    e("s_add_u32 s%d, s%d, 65536" % (S_T + 3, S_T + 3))
    e("s_mul_i32 s%d, s%d, %d" % (S_T + 4, S_W, XS))
    e("s_add_u32 s%d, s%d, %d" % (S_T + 4, S_T + 4, 16 * XBP))
    e("s_lshl_b32 s%d, s%d, 12" % (S_T + 1, S_W))
    e("s_add_u32 s%d, s%d, s%d" % (S_T, S_T, S_T + 1))
    e("s_mul_i32 s%d, s%d, %d" % (S_T + 1, S_W, XBP))
    e("s_mul_i32 s%d, s%d, 8192000" % (S_T + 2, S_B))
    e("s_waitcnt lgkmcnt(0)")
    e("s_add_u32 s%d, s%d, s%d" % (SRD_X, S_X, S_T + 2))
    e("s_addc_u32 s%d, s%d, 0" % (SRD_X + 1, S_X + 1))
    e("s_and_b32 s%d, s%d, 0xffff" % (SRD_X + 1, SRD_X + 1))
    e("s_mov_b32 s%d, 8192000" % (SRD_X + 2))
    e("s_mov_b32 s%d, 0x00020000" % (SRD_X + 3))
    stamp()
    if W1WARM == 1:
        w1warm()
    e("v_add_u32 v27, s%d, v26" % (S_T + 3))
    e("s_mov_b32 m0, s%d" % (S_T + 4))
    e("s_nop 0")
    a.vm("buffer_load_dwordx4 v27, %s, 0 offen nt lds" % sr(SRD_X, 4))
    e("s_mov_b32 s92, s%d" % S_T)
    e("s_mov_b32 s93, s%d" % (S_T + 1))
    e("v_mov_b32 v%d, v26" % V_XL)
    x_slice(0)
    if W1WARM == 2:
        w1warm()
    a.op("flush", 0)
    stamp()
    a.noins = 0
    e("s_mov_b32 s%d, s%d" % (SRD_O, S_OUT))
    e("s_and_b32 s%d, s%d, 0xffff" % (SRD_O + 1, S_OUT + 1))
    e("s_mov_b32 s%d, 32768000" % (SRD_O + 2))
    e("s_mov_b32 s%d, 0x00020000" % (SRD_O + 3))
    e("s_mov_b32 s%d, s%d" % (SRD_WS, S_WSP))
    e("s_and_b32 s%d, s%d, 0xffff" % (SRD_WS + 1, S_WSP + 1))
    e("s_mov_b32 s%d, %d" % (SRD_WS + 2, WSZ))
    e("s_mov_b32 s%d, 0x00020000" % (SRD_WS + 3))
    e("s_mov_b32 s%d, 0x%x" % (S_C1, f32bits(GC1)))
    e("s_mov_b32 s%d, 0x%x" % (S_C1 + 1, f32bits(GC1)))
    e("s_mov_b32 s%d, 1.0" % S_ONE)
    e("s_mov_b32 s%d, 1.0" % (S_ONE + 1))
    e("s_mov_b32 s%d, 0" % S_FLAG)
    e("v_lshlrev_b32 v25, 4, v%d" % V_LANE)
    e("s_lshl_b32 s%d, s%d, 12" % (S_T, S_W))
    e("v_add_u32 v%d, s%d, v25" % (V_OFF32, S_T))
    e("s_lshl_b32 s%d, s%d, 11" % (S_T, S_W))
    e("s_add_u32 s%d, s%d, %d" % (S_T, S_T, FRO))
    e("v_add_u32 v%d, s%d, v25" % (V_OFF32W, S_T))
    for i in range(4):
        e("v_mov_b32 v%d, 0" % (28 + i))
    e("s_nop 1")
    zero_acc(A_ACC1, 160, 28)
    e("s_or_b32 s%d, s%d, s%d" % (S_T, S_T0, S_KH))
    e("v_or_b32 v25, s%d, v21" % S_T)
    e("v_cmp_eq_u32 vcc, 0, v25")
    e("v_mov_b32 v25, 1.0")
    e("s_nop 1")
    e("v_cndmask_b32 v%d, v25, 0, vcc" % V_MASK)
    e("s_lshl_b32 s%d, s%d, 2" % (S_T, S_KH))
    e("v_add_u32 v25, s%d, v21" % S_T)
    e("s_mul_i32 s%d, s%d, 9216" % (S_T, S_KH))
    e("s_sub_u32 s%d, 9216, s%d" % (S_T + 1, S_T))
    for cls, dst in ((0, V_A0), (1, 15)):
        e("v_add_u32 v26, %d, v22" % cls)
        e("v_and_b32 v27, 3, v26")
        e("v_lshlrev_b32 v27, 1, v27")
        e("v_lshrrev_b32 v26, 2, v26")
        e("v_mul_u32_u24 v26, %d, v26" % XBP)
        e("v_lshl_add_u32 v26, v27, 7, v26")
        e("v_xor_b32 v27, v27, v25")
        e("v_lshl_add_u32 v26, v27, 4, v26")
        e("v_add_u32 v%d, s%d, v26" % (dst, S_T))
        e("v_add_u32 v%d, s%d, v26" % (dst + 1, S_T + 1))
        e("v_add_u32 v%d, 0x%x, v26" % (dst + 2, 18432))
    a.op("needmark", "x0")
    e("s_barrier")


def warmup():
    if not WARM:
        return
    e("s_lshr_b32 s94, s2, 3")
    e("s_and_b32 s94, s94, 31")
    e("s_lshl_b32 s94, s94, 2")
    e("s_add_u32 s94, s94, s%d" % S_W)
    e("v_lshlrev_b32 v%d, 4, v%d" % (V_W1, V_LANE))
    e("s_mul_i32 s95, s94, 3072")
    e("v_add_u32 v%d, s95, v%d" % (V_W0, V_W1))
    for i in range(3):
        a.vm("global_load_dwordx4 a[252:255], v%d, %s offset:%d" % (V_W0, sr(S_W2), i * 1024))
    e("s_lshl_b32 s95, s94, 10")
    e("v_add_u32 v%d, s95, v%d" % (V_W0, V_W1))
    a.vm("global_load_dwordx4 a[252:255], v%d, %s" % (V_W0, sr(S_WF)))
    a.vm("global_load_dwordx4 a[252:255], v%d, %s" % (V_W0, sr(S_WO)))


def producer():
    a.lab("L_prod")
    e("s_cmp_lt_u32 s2, 2")
    e("s_cbranch_scc1 L_prodg")
    e("s_sub_u32 s92, s2, 2")
    e("s_lshl_b32 s92, s92, 2")
    e("s_add_u32 s92, s92, s%d" % S_W)
    e("s_lshl_b32 s94, s92, 14")
    e("v_lshlrev_b32 v30, 12, v21")
    e("v_lshl_add_u32 v30, v22, 4, v30")
    e("v_add_u32 v30, s94, v30")
    e("v_lshlrev_b32 v31, 12, v23")
    e("v_lshl_add_u32 v31, v24, 4, v31")
    e("v_add_u32 v31, s94, v31")
    e("v_lshlrev_b32 v32, 4, v%d" % V_LANE)
    e("v_add_u32 v32, s94, v32")
    e("s_waitcnt lgkmcnt(0)")
    for i in range(4):
        if i < 2:
            e("v_add_u32 v%d, 0x%x, v30" % (V_LD, i * 256))
        else:
            e("v_add_u32 v%d, 0x%x, v31" % (V_LD, (i - 2) * 8192))
        for k_ in range(8):
            e("global_load_dwordx4 %s, v%d, %s offset:%d" % (vr(slot(i) + 4 * k_), V_LD, sr(S_WF if i < 2 else S_WO), k_ * 512))
    for i in range(4):
        e("s_waitcnt vmcnt(24)")
        e("v_add_u32 v34, 0x%x, v32" % ((FRF if i < 2 else FRO) + (i & 1) * 8192))
        e("v_add_u32 v35, 0x1000, v34")
        for jj in range(8):
            d = 36 + 4 * (jj & 3)
            for s_ in perms(i, jj, d):
                e(s_)
            e("global_store_dwordx4 v%d, %s, %s offset:%d sc0 sc1" % (34 + (jj >> 2), vr(d), sr(S_WSP), (jj & 3) * 1024))
    e("s_lshl_b32 s94, s92, 2")
    e("s_add_u32 s94, s94, 32")
    e("v_mov_b32 v34, s94")
    e("v_mov_b32 v35, 1")
    e("s_waitcnt vmcnt(0)")
    e("s_mov_b32 exec_lo, 1")
    e("s_mov_b32 exec_hi, 0")
    e("global_store_dword v34, v35, %s sc0 sc1" % sr(S_DBG))
    e("s_endpgm")
    a.lab("L_prodg")
    e("s_lshl_b32 s%d, s2, 12" % S_T)
    e("s_lshl_b32 s%d, s%d, 6" % (S_T + 1, S_KH))
    e("s_add_u32 s%d, s%d, s%d" % (S_T, S_T, S_T + 1))
    e("v_lshlrev_b32 v25, 9, v22")
    e("v_lshl_add_u32 v25, v21, 4, v25")
    e("v_add_u32 v25, s%d, v25" % S_T)
    e("s_waitcnt lgkmcnt(0)")
    e("s_mov_b32 s%d, s%d" % (SRD_G, S_G))
    e("s_and_b32 s%d, s%d, 0xffff" % (SRD_G + 1, S_G + 1))
    e("s_mov_b32 s%d, 8192" % (SRD_G + 2))
    e("s_mov_b32 s%d, 0x00020000" % (SRD_G + 3))
    for u in range(4):
        e("buffer_load_dwordx4 %s, v25, %s, 0 offen offset:%d" % (ar(A_GF + 4 * u), sr(SRD_G, 4), u * 128))
    for u in range(4):
        e("v_add_u32 v%d, 0x%x, v%d" % (V_LD, u * 32768, V_OFF16))
        for i in range(8):
            e("global_load_dwordx4 %s, v%d, %s offset:%d" % (vr(slot(u) + 4 * i), V_LD, sr(S_WG), i * 512))
    for i in range(4):
        e("v_mov_b32 v%d, 0" % (28 + i))
    e("s_nop 1")
    zero_acc(A_ACCG, 32, 28)
    e("s_nop 3")
    e("s_waitcnt vmcnt(0)")
    for u in range(4):
        for j in range(8):
            for s_ in perms(u, j, FBUF + 4 * (j & 3)):
                e(s_)
            e("s_nop 1")
            d = A_ACCG + 4 * j
            e("v_mfma_f32_16x16x32_bf16 %s, %s, %s, %s" % (ar(d), ar(A_GF + 4 * u), vr(FBUF + 4 * (j & 3)), ar(d)))
    e("s_nop 7")
    e("s_nop 1")
    for j in range(8):
        e("ds_write_b128 v%d, %s offset:%d" % (V_EXW, ar(A_ACCG + 4 * j), j * 1024))
    e("v_lshrrev_b32 v20, 4, v%d" % V_LANE)
    e("v_and_b32 v21, 15, v%d" % V_LANE)
    e("v_and_b32 v20, 1, v20")
    e("v_lshlrev_b32 v20, 12, v20")
    e("v_lshl_add_u32 v20, v21, 5, v20")
    e("s_lshl_b32 s%d, s%d, 9" % (S_T, S_NH))
    e("s_lshl_b32 s%d, s2, 14" % (S_T + 1))
    e("s_add_u32 s%d, s%d, s%d" % (S_T, S_T, S_T + 1))
    e("v_add_u32 v%d, s%d, v20" % (V_W0, S_T))
    e("v_add_u32 v%d, 0x2000, v%d" % (V_A0, V_W0))
    e("v_mov_b32 v%d, 0" % V_W1)
    e("s_waitcnt lgkmcnt(0)")
    e("s_barrier")
    for j in range(8):
        e("ds_read_b128 %s, v%d offset:%d" % (vr(TMP + 4 * j), V_EXR, j * 1024))
    T = TMP + 32
    R = RING
    e("s_waitcnt lgkmcnt(0)")
    for j in range(8):
        P = TMP + 4 * j
        for r in range(4):
            e("v_accvgpr_read_b32 v%d, a%d" % (T + r, A_ACCG + 4 * j + r))
        e("v_pk_add_f32 %s, %s, %s" % (vr(P, 2), vr(P, 2), vr(T, 2)))
        e("v_pk_add_f32 %s, %s, %s" % (vr(P + 2, 2), vr(P + 2, 2), vr(T + 2, 2)))
        e("v_cvt_pk_bf16_f32 v%d, v%d, v%d" % (T, P, P + 1))
        e("v_cvt_pk_bf16_f32 v%d, v%d, v%d" % (T + 1, P + 2, P + 3))
        e("v_lshlrev_b32 v%d, 16, v%d" % (P, T))
        e("v_and_b32 v%d, 0xffff0000, v%d" % (P + 1, T))
        e("v_lshlrev_b32 v%d, 16, v%d" % (P + 2, T + 1))
        e("v_and_b32 v%d, 0xffff0000, v%d" % (P + 3, T + 1))
        for r in range(4):
            e("v_mul_f32 v%d, s%d, v%d" % (R + 8 * r + j, S_SCL, P + r))
        e("v_max3_f32 v%d, |v%d|, |v%d|, v%d" % (V_W1, R + j, R + 8 + j, V_W1))
        e("v_max3_f32 v%d, |v%d|, |v%d|, v%d" % (V_W1, R + 16 + j, R + 24 + j, V_W1))
        for r in range(4):
            e("v_exp_f32 v%d, v%d" % (R + 32 + 8 * r + j, R + 8 * r + j))
    e("v_mov_b32 v%d, 0x42fa0000" % T)
    e("s_mov_b32 exec_hi, 0")
    e("v_cmp_nle_f32 vcc, v%d, v%d" % (V_W1, T))
    for r in range(4):
        for hh in range(2):
            e("global_store_dwordx4 v%d, %s, %s offset:%d sc0 sc1" % (V_W0, vr(R + 32 + 8 * r + 4 * hh), sr(S_WSP), r * 1024 + hh * 16))
            e("global_store_dwordx4 v%d, %s, %s offset:%d sc0 sc1" % (V_A0, vr(R + 8 * r + 4 * hh), sr(S_WSP), r * 1024 + hh * 16))
    e("s_mov_b64 exec, -1")
    e("s_or_b32 s%d, vcc_lo, vcc_hi" % S_FLAG)
    e("s_cmp_lg_u32 s%d, 0" % S_FLAG)
    e("s_cselect_b32 s%d, 3, 1" % S_FLAG)
    e("s_lshl_b32 s%d, s2, 4" % S_T)
    e("s_lshl_b32 s%d, s%d, 2" % (S_T + 1, S_W))
    e("s_add_u32 s%d, s%d, s%d" % (S_T, S_T, S_T + 1))
    e("v_mov_b32 v20, s%d" % S_T)
    e("v_mov_b32 v21, s%d" % S_FLAG)
    e("s_waitcnt vmcnt(0)")
    e("s_mov_b32 exec_lo, 1")
    e("s_mov_b32 exec_hi, 0")
    e("global_store_dword v20, v21, %s sc0 sc1" % sr(S_DBG))
    e("s_endpgm")


def flag_issue():
    e("s_lshl_b32 s%d, s%d, 4" % (S_T, S_B))
    e("v_mov_b32 v15, s%d" % S_T)
    e("v_mov_b32 v16, 32")
    a.vm("global_load_dwordx4 v[60:63], v15, %s sc0 sc1" % sr(S_DBG))
    a.vm("global_load_dwordx4 v[56:59], v16, %s sc0 sc1" % sr(S_DBG))
    a.vm("global_load_dwordx4 v[52:55], v16, %s offset:16 sc0 sc1" % sr(S_DBG))
    a.op("mark", "flag")


def eb_dma(wsoff):
    e("s_lshl_b32 s%d, s%d, 14" % (S_T, S_B))
    e("s_lshl_b32 s%d, s%d, 11" % (S_T + 1, S_W))
    e("s_add_u32 s%d, s%d, s%d" % (S_T, S_T, S_T + 1))
    e("s_add_u32 s%d, s%d, %d" % (S_T, S_T, wsoff))
    e("v_lshlrev_b32 v16, 4, v%d" % V_LANE)
    e("v_add_u32 v16, s%d, v16" % S_T)
    e("s_add_u32 s%d, s%d, %d" % (S_T + 1, S_T + 1, EBB))
    e("s_mov_b32 m0, s%d" % (S_T + 1))
    e("s_nop 0")


def flag_check():
    a.op("needmark", "flag")
    sv = a.noins
    a.noins = 1
    a.lab("L_flag_chk")
    e("v_min_u32 v17, v60, v61")
    e("v_min3_u32 v17, v62, v63, v17")
    e("v_min3_u32 v17, v56, v57, v17")
    e("v_min3_u32 v17, v58, v59, v17")
    e("v_min3_u32 v17, v52, v53, v17")
    e("v_min3_u32 v51, v54, v55, v17")
    e("v_or3_b32 v17, v60, v61, v62")
    e("v_or_b32 v17, v17, v63")
    e("v_readfirstlane_b32 s%d, v51" % (S_T))
    e("v_readfirstlane_b32 s%d, v17" % (S_T + 1))
    e("s_nop 3")
    e("s_cmp_lg_u32 s%d, 0" % S_T)
    e("s_cbranch_scc1 L_flag_ok")
    a.op("rare", 1)
    e("s_sleep 4")
    e("global_load_dwordx4 v[60:63], v15, %s sc0 sc1" % sr(S_DBG))
    e("global_load_dwordx4 v[56:59], v16, %s sc0 sc1" % sr(S_DBG))
    e("global_load_dwordx4 v[52:55], v16, %s offset:16 sc0 sc1" % sr(S_DBG))
    e("s_waitcnt vmcnt(0)")
    e("s_branch L_flag_chk")
    a.op("rare", 0)
    a.lab("L_flag_ok")
    e("s_and_b32 s%d, s%d, 2" % (S_FLAG, S_T + 1))
    eb_dma(0)
    a.vm("buffer_load_dwordx4 v16, %s, 0 offen sc0 sc1 lds" % sr(SRD_WS, 4))
    a.vm("buffer_load_dwordx4 v16, %s, 0 offen offset:1024 sc0 sc1 lds" % sr(SRD_WS, 4))
    a.op("mark", "eb")
    a.op("gate", "T")
    a.noins = sv


TAPH = [0, HP, 2 * HP]


def c1_areads(k, aset):
    tap = k % 3
    out = []
    for sl in range(5):
        b0 = V_A0 if tap < 2 else 15
        base = b0 if sl < 2 else (b0 + 1 if sl < 4 else b0 + 2)
        off = ((sl & 1) * 4608 if sl < 4 else 0) + (128 if tap == 1 else 0)
        out.append("ds_read_b128 %s, v%d offset:%d" % (ar(aset + 4 * sl), base, off))
    return out


def c2_areads(k, aset):
    tap, sl_ = k % 3, k // 3
    return ["ds_read_b128 %s, v%d offset:%d" % (ar(aset + 4 * sl), V_A0 + sl, HB + TAPH[tap] + sl_ * 128)
            for sl in range(2)]


def conv_phase(u0, nM, acc, areads_fn, isx):
    A_AF, AST = (160, 20) if isx else (232, 8)
    for s in areads_fn(0, A_AF):
        e(s)
    prime(u0)
    units = []
    for k in range(12):
        nk = k + 1
        pre = []
        if isx and k % 3 == 2 and k < 11:
            pre = [("needmark", "x%d" % (k // 3 + 1)), "s_barrier"]
            pre += ["v_add_u32 v%d, 0x%x, v%d" % (r, XS, r) for r in (V_A0, V_A1, V_A2)]
        if isx and k % 3 == 0 and k > 0:
            pre = ["v_add_u32 v%d, 0x%x, v%d" % (r, XS, r) for r in (15, 16, 17)]
        if (not isx) and k == FCHK:
            pre = pre + [("call", flag_check)]
        if isx and PROF == "2":
            pre = pre + [("call", stamp)]
        units.append(dict(unit=u0 + k, aset=[A_AF + AST * (k & 1) + 4 * s for s in range(nM)], last=(k == 11), pre=pre,
                          areads=(areads_fn(nk, A_AF + AST * (nk & 1)) if k < 11 else [])))
    emit_units(units, nM, acc)


def lane_fields():
    e("v_lshrrev_b32 v16, 4, v%d" % V_LANE)
    e("v_and_b32 v17, 15, v%d" % V_LANE)


P0, P1 = TMP, TMP + 8
TT = TMP + 16
OWN = TMP + 24
OUTR = TMP + 28


def add_own(P, accbase):
    for i in range(0, 8, 4):
        for k in range(4):
            e("v_accvgpr_read_b32 v%d, a%d" % (OWN + k, accbase + i + k))
        e("v_pk_add_f32 %s, %s, %s" % (vr(P + i, 2), vr(P + i, 2), vr(OWN, 2)))
        e("v_pk_add_f32 %s, %s, %s" % (vr(P + i + 2, 2), vr(P + i + 2, 2), vr(OWN + 2, 2)))


def epi_gelu_slot(accbase, rdoff, nblocks_after, wr, mask):
    for jp in range(4):
        P = P0 if (jp & 1) == 0 else P1
        Pn = P1 if (jp & 1) == 0 else P0
        nxt = rdoff + (2 * jp + 2) * 1024
        more = jp < 3 or nblocks_after
        if more:
            e("ds_read_b128 %s, v%d offset:%d" % (vr(Pn), V_EXR, nxt))
            e("ds_read_b128 %s, v%d offset:%d" % (vr(Pn + 4), V_EXR, nxt + 1024))
            e("s_waitcnt lgkmcnt(2)")
        else:
            e("s_waitcnt lgkmcnt(0)")
        add_own(P, accbase + 8 * jp)
        gelu_pairs([P, P + 2, P + 4, P + 6], [TT, TT + 2, TT + 4, TT + 6])
        if mask:
            e("v_mul_f32 v%d, v%d, v%d" % (TT, V_MASK, TT))
            e("v_mul_f32 v%d, v%d, v%d" % (TT + 4, V_MASK, TT + 4))
        for r in range(4):
            e("v_cvt_pk_bf16_f32 v%d, v%d, v%d" % (OUTR + 4 * r + jp, TT + r, TT + 4 + r))
    for r in range(4):
        if nblocks_after:
            DEFER.append(wr(r))
        else:
            e(wr(r))


def epi1():
    a.c("---- epilogue conv1 ----")
    a.op("pace", PACE)
    a.op("aslot", 160)
    e("v_mov_b32 v%d, 0x%x" % (V_C0, f32bits(GC0)))
    e("v_mov_b32 v%d, 0x%x" % (V_C0 + 1, f32bits(GC0)))
    e("s_nop 7")
    e("s_nop 1")
    for j in range(8):
        e("v_accvgpr_read_b32 v%d, a%d" % (TMP + j, A_ACC1 + 128 + 4 * j))
    for i in range(16):
        e("ds_write_b128 v%d, %s offset:%d" % (V_EXW, ar(A_ACC1 + 64 + 4 * i), i * 1024))
    e("ds_write_b128 v%d, %s offset:%d" % (V_EXW, vr(TMP), 16384))
    e("ds_write_b128 v%d, %s offset:%d" % (V_EXW, vr(TMP + 4), 17408))
    lane_fields()
    e("s_mul_i32 s%d, s%d, %d" % (S_T, S_KH, 32 * HP))
    e("s_lshl_b32 s%d, s%d, 8" % (S_T + 1, S_NH))
    e("v_mul_u32_u24 v16, %d, v16" % (4 * HP))
    e("v_lshl_add_u32 v17, v17, 4, s%d" % (S_T + 1))
    e("v_add3_u32 v%d, v16, v17, s%d" % (V_W0, S_T))
    e("v_add_u32 v%d, 0x%x, v17" % (V_W1, HB + 64 * HP))
    for i in range(4):
        e("v_mov_b32 v%d, 0" % (TT + i))
    e("s_waitcnt lgkmcnt(0)")
    e("s_nop 1")
    zero_acc(A_ACC2, 64, TT)
    e("s_barrier")
    e("ds_read_b128 %s, v%d offset:0" % (vr(P0), V_EXR))
    e("ds_read_b128 %s, v%d offset:1024" % (vr(P0 + 4), V_EXR))
    for sl in range(2):
        epi_gelu_slot(A_ACC1 + 32 * sl, sl * 8192, True,
                      lambda r, sl=sl: "ds_write_b128 v%d, %s offset:%d" % (V_W0, vr(OUTR + 4 * r), HB + (16 * sl + r) * HP),
                      sl == 0)
    e("s_waitcnt lgkmcnt(0)")
    for j in range(8):
        e("v_accvgpr_read_b32 v%d, a%d" % (TT + j, A_ACC1 + 128 + 4 * j))
    for i in range(0, 8, 2):
        e("v_pk_add_f32 %s, %s, %s" % (vr(P0 + i, 2), vr(P0 + i, 2), vr(TT + i, 2)))
    a.op("aslot", 128)
    gelu_pairs([P0, P0 + 2, P0 + 4, P0 + 6], [TT, TT + 2, TT + 4, TT + 6])
    for i in range(4):
        e("v_cvt_pk_bf16_f32 v%d, v%d, v%d" % (P1 + i, TT + 2 * i, TT + 2 * i + 1))
    a.noins = 1
    e("s_mov_b32 exec_lo, 0xffff")
    e("s_mov_b32 exec_hi, 0")
    e("ds_write_b128 v%d, %s" % (V_W1, vr(P1)))
    e("s_mov_b64 exec, -1")
    a.noins = 0
    lane_fields()
    e("s_lshl_b32 s%d, s%d, 6" % (S_T, S_KH))
    e("v_mul_u32_u24 v17, %d, v17" % (2 * HP))
    e("v_lshl_add_u32 v17, v16, 4, v17")
    e("v_add_u32 v17, s%d, v17" % S_T)
    e("s_mul_i32 s%d, s%d, %d" % (S_T, S_KH, 32 * HP))
    e("v_add_u32 v%d, s%d, v17" % (V_A0, S_T))
    e("s_sub_u32 s%d, %d, s%d" % (S_T, 32 * HP, S_T))
    e("v_add_u32 v%d, s%d, v17" % (V_A1, S_T))
    e("v_lshlrev_b32 v16, 4, v%d" % V_LANE)
    e("s_lshl_b32 s%d, s%d, 13" % (S_T, S_W))
    e("s_add_u32 s%d, s%d, %d" % (S_T, S_T, EXB))
    e("v_add_u32 v%d, s%d, v16" % (V_EXW, S_T))
    e("s_xor_b32 s%d, s%d, 2" % (S_T, S_W))
    e("s_lshl_b32 s%d, s%d, 13" % (S_T, S_T))
    e("s_add_u32 s%d, s%d, %d" % (S_T, S_T, EXB))
    e("v_add_u32 v%d, s%d, v16" % (V_EXR, S_T))
    e("s_waitcnt lgkmcnt(0)")
    e("s_barrier")


def epi2():
    a.c("---- epilogue conv2 ----")
    e("s_nop 7")
    e("s_nop 1")
    for i in range(8):
        e("ds_write_b128 v%d, %s offset:%d" % (V_EXW, ar(A_ACC2 + 32 + 4 * i), i * 1024))
    lane_fields()
    e("s_mul_i32 s%d, s%d, %d" % (S_T, S_KH, 16 * FP))
    e("s_add_u32 s%d, s%d, %d" % (S_T, S_T, FB))
    e("s_lshl_b32 s%d, s%d, 8" % (S_T + 1, S_NH))
    e("v_mul_u32_u24 v16, %d, v16" % (4 * FP))
    e("v_lshl_add_u32 v17, v17, 4, s%d" % (S_T + 1))
    e("v_add3_u32 v%d, v16, v17, s%d" % (V_W0, S_T))
    for i in range(4):
        e("v_mov_b32 v%d, 0" % (TT + i))
    e("s_nop 1")
    zero_acc(A_C3, 32, TT)
    e("s_waitcnt lgkmcnt(0)")
    e("s_barrier")
    a.op("gate", "O1")
    e("ds_read_b128 %s, v%d offset:0" % (vr(P0), V_EXR))
    e("ds_read_b128 %s, v%d offset:1024" % (vr(P0 + 4), V_EXR))
    epi_gelu_slot(A_ACC2, 0, False,
                  lambda r: "ds_write_b128 v%d, %s offset:%d" % (V_W0, vr(OUTR + 4 * r), r * FP), False)
    lane_fields()
    e("v_mul_u32_u24 v%d, %d, v17" % (V_A1, FP))
    e("v_lshl_add_u32 v%d, v16, 4, v%d" % (V_A1, V_A1))
    e("v_add_u32 v%d, 0x%x, v%d" % (V_A1, FB, V_A1))
    e("s_waitcnt lgkmcnt(0)")
    e("s_barrier")
    a.op("gate", "O")


A_C3, A_AF2 = 0, 232


def frag_phase(g0, nks, accb, aread):
    for s_ in aread(0, A_AF2):
        e(s_)
    for k in range(nks):
        g = g0 + k
        a.op("needf", g)
        e("s_waitcnt lgkmcnt(0)")
        nxt = aread(k + 1, A_AF2 + 8 * ((k + 1) & 1)) if k + 1 < nks else []
        i = 0
        for j in range(4):
            for mt in range(2):
                d = accb + (mt * 4 + j) * 4
                e("v_mfma_f32_16x16x32_bf16 %s, %s, %s, %s" % (ar(d), ar(A_AF2 + 8 * (k & 1) + 4 * mt), vr(fslot(g) + 4 * j), ar(d)))
                if i < len(nxt):
                    e(nxt[i]); i += 1
        a.op("freef", g)


def f_aread(k, aset):
    return ["ds_read_b128 %s, v%d offset:%d" % (ar(aset + 4 * mt), V_A1, mt * 16 * FP + k * 64) for mt in range(2)]


def epi3_body(raw):
    for mt in range(2):
        for i in range(16):
            e("v_accvgpr_read_b32 v%d, a%d" % (20 + i, A_C3 + 16 * mt + i))
        for i in range(8):
            e("v_cvt_pk_bf16_f32 v%d, v%d, v%d" % (36 + i, 20 + 2 * i, 21 + 2 * i))
        for i in range(8):
            e("v_lshlrev_b32 v%d, 16, v%d" % (20 + 2 * i, 36 + i))
            e("v_and_b32 v%d, 0xffff0000, v%d" % (21 + 2 * i, 36 + i))
        for i in range(16):
            e("v_mul_f32 v%d, s%d, v%d" % (20 + i, S_SCL, 20 + i))
        if not raw:
            for i in range(8):
                e("v_max3_f32 v%d, |v%d|, |v%d|, v%d" % (V_W1, 20 + 2 * i, 21 + 2 * i, V_W1))
        o = 44
        for j in range(4):
            for r in range(4):
                e(("v_mov_b32 v%d, v%d" if raw else "v_exp_f32 v%d, v%d") % (o + 4 * r + j, 20 + 4 * j + r))
        if mt == 0 and not raw:
            e("s_barrier")
        e("s_nop 0")
        for r in range(4):
            e("ds_write_b128 v%d, %s offset:%d" % (V_W0, vr(o + 4 * r), (16 * mt + r) * EAP))


def epi3():
    a.c("---- epilogue fe ----")
    lane_fields()
    e("s_lshl_b32 s%d, s%d, 9" % (S_T, S_KH))
    e("s_lshl_b32 s%d, s%d, 4" % (S_T + 1, S_NH))
    e("s_add_u32 s%d, s%d, s%d" % (S_T, S_T, S_T + 1))
    e("s_add_u32 s%d, s%d, %d" % (S_T, S_T, EAB))
    e("v_mul_u32_u24 v16, %d, v16" % (4 * EAP))
    e("v_lshl_add_u32 v16, v17, 5, v16")
    e("v_add_u32 v%d, s%d, v16" % (V_W0, S_T))
    e("v_mov_b32 v%d, 0" % V_W1)
    e("s_nop 4")
    epi3_body(False)
    e("v_mov_b32 v16, 0x42fa0000")
    e("v_cmp_nle_f32 vcc, v%d, v16" % V_W1)
    e("s_lshl_b32 s%d, s%d, 2" % (S_T, S_W))
    e("s_add_u32 s%d, s%d, %d" % (S_T, S_T, FLG))
    e("s_or_b32 s%d, s%d, vcc_lo" % (S_FLAG, S_FLAG))
    e("s_or_b32 s%d, s%d, vcc_hi" % (S_FLAG, S_FLAG))
    e("v_mov_b32 v16, s%d" % S_T)
    e("v_mov_b32 v17, s%d" % S_FLAG)
    e("ds_write_b32 v16, v17")
    for i in range(4):
        e("v_mov_b32 v%d, 0" % (60 + i))
    a.op("flushall", 0)
    a.noins = 1
    e("s_nop 1")
    for n in range(8):
        e("v_mfma_f32_32x32x16_bf16 %s, %s, %s, 0" % (vr(OACC + 16 * n, 16), vr(60), vr(60)))
    for n in range(8):
        e("v_mfma_f32_32x32x16_bf16 %s, %s, %s, 0" % (ar(OACC + 16 * n, 16), vr(60), vr(60)))
    e("s_waitcnt vmcnt(0) lgkmcnt(0)")
    e("s_barrier")
    e("v_mov_b32 v16, 0x%x" % FLG)
    e("ds_read_b128 %s, v16" % vr(TMP))
    e("s_waitcnt lgkmcnt(0)")
    e("v_or3_b32 v16, v%d, v%d, v%d" % (TMP, TMP + 1, TMP + 2))
    e("v_or_b32 v16, v16, v%d" % (TMP + 3))
    e("s_nop 0")
    e("v_readfirstlane_b32 s%d, v16" % S_FLAG)
    e("s_nop 3")
    e("s_cmp_eq_u32 s%d, 0" % S_FLAG)
    e("s_cbranch_scc1 L_fast1")
    a.op("rare", 1)
    epi3_body(True)
    eb_dma(8192)
    e("buffer_load_dwordx4 v16, %s, 0 offen sc0 sc1 lds" % sr(SRD_WS, 4))
    e("buffer_load_dwordx4 v16, %s, 0 offen offset:1024 sc0 sc1 lds" % sr(SRD_WS, 4))
    e("s_waitcnt vmcnt(0) lgkmcnt(0)")
    e("s_barrier")
    a.op("rare", 0)
    a.lab("L_fast1")


ZL = []
OACC = 64


EA = [20, 28]
EB = [36, 44]
JF = [52, 56]
V_EA, V_EB, V_B, V_ST = 4, 5, 6, 7
BB = [0, 32]
STG = [8, 60]


def out_valu(par, slow):
    ea, eb, jf = EA[par], EB[par], JF[par]
    v = []
    if os.environ.get("EXP") == "novalu":
        return ["v_cvt_pk_bf16_f32 v%d, v%d, v%d" % (jf + i, ea + 2 * i, ea + 2 * i + 1) for i in range(4)]
    if slow:
        for i in range(8):
            v.append("v_add_f32 v%d, v%d, v%d" % (ea + i, ea + i, eb + i))
        for i in range(8):
            v.append("v_exp_f32 v%d, v%d" % (ea + i, ea + i))
        for i in range(8):
            v.append("v_add_f32 v%d, 1.0, v%d" % (ea + i, ea + i))
    elif PK:
        for i in range(0, 8, 2):
            v.append("v_pk_fma_f32 %s, %s, %s, %s" % (vr(ea + i, 2), vr(ea + i, 2), vr(eb + i, 2), sr(S_ONE)))
    else:
        for i in range(8):
            v.append("v_fma_f32 v%d, v%d, v%d, 1.0" % (ea + i, ea + i, eb + i))
    for i in range(8):
        v.append("v_rcp_f32 v%d, v%d" % (ea + i, ea + i))
    if PK:
        for i in range(0, 8, 2):
            v.append("v_pk_fma_f32 %s, %s, %s, %s" % (vr(ea + i, 2), vr(ea + i, 2), vr(V_C0, 2), sr(S_ONE)))
    else:
        for i in range(8):
            v.append("v_fma_f32 v%d, v%d, -2.0, 1.0" % (ea + i, ea + i))
    for i in range(4):
        v.append("v_cvt_pk_bf16_f32 v%d, v%d, v%d" % (jf + i, ea + 2 * i, ea + 2 * i + 1))
    return v


def out_eloads(par, off):
    return ["ds_read_b128 %s, v%d offset:%d" % (vr(EA[par]), V_EA, off),
            "ds_read_b128 %s, v%d offset:%d" % (vr(EA[par] + 4), V_EA, off + 16),
            "ds_read_b128 %s, v%d offset:%d" % (vr(EB[par]), V_EB, off),
            "ds_read_b128 %s, v%d offset:%d" % (vr(EB[par] + 4), V_EB, off + 16)]


def out_bloads(par, off):
    if os.environ.get("EXP") == "halfb":
        return ["ds_read_b64 %s, v%d offset:%d" % (ar(BB[par] + 4 * n, 2), V_B, off + n * 1024) for n in range(8)]
    if os.environ.get("EXP") == "vb":
        return ["ds_read_b128 %s, v%d offset:%d" % (vr(192 + 32 * par + 4 * n), V_B, off + n * 1024) for n in range(8)]
    return ["ds_read_b128 %s, v%d offset:%d" % (ar(BB[par] + 4 * n), V_B, off + n * 1024) for n in range(8)]


def store_group(par, rstatic=None):
    st = STG[par]
    g = []
    if rstatic is None:
        g.append("s_set_gpr_idx_on s%d, 0x3" % S_R)
        g.append("s_nop 0")
        r = 0
    else:
        r = rstatic
    for i in range(4):
        g.append("v_cvt_pk_bf16_f32 v%d, v%d, v%d" % (st + i, OACC + 16 * (2 * i) + r, OACC + 16 * (2 * i + 1) + r))
    if rstatic is None:
        g.append("s_set_gpr_idx_off")
        g.append("s_add_u32 s%d, s%d, 1" % (S_R, S_R))
    g.append("buffer_store_dwordx4 %s, v%d, %s, s%d offen%s" % (vr(st), V_ST, sr(SRD_O, 4), S_SO, STMOD))
    return g


def out_kstep(par, bsrc, accf, valu, loads, stg=None, prev_b=8):
    gaps = [[] for _ in range(8)]
    nl = [2, 1, 2, 1, 2, 1, 2, 1]
    li = 0
    issued = [0] * 9
    for n in range(8):
        for _ in range(nl[n]):
            if li < len(loads):
                gaps[n].append(loads[li]); li += 1
        issued[n + 1] = li
    budget = [24 - 4 * len(gaps[n]) for n in range(8)]
    if stg:
        gaps[3] = gaps[3] + list(stg)
        budget[3] = 0
    vi = 0
    for n in range(8):
        c = 0
        while vi < len(valu) and (c < budget[n] or n == 7):
            gaps[n].append(valu[vi]); c += a.cost(valu[vi]); vi += 1
    for n in range(8):
        if n % 2 == 0:
            if prev_b:
                e("s_waitcnt lgkmcnt(%d)" % (prev_b - (n + 2) + issued[n]))
            elif n == 0:
                e("s_waitcnt lgkmcnt(0)")
            if n == 0:
                e("s_nop 0")
        d = accf(n)
        e("v_mfma_f32_32x32x16_bf16 %s, %s, %s, %s" % (d, vr(JF[par]), bsrc(n), d))
        for s in gaps[n]:
            e(s)


def out_pass(tag, slow, second):
    accf = (lambda n: ar(OACC + 16 * n, 16)) if second else (lambda n: vr(OACC + 16 * n, 16))
    if not second:
        e("v_lshrrev_b32 v16, 5, v%d" % V_LANE)
        e("v_and_b32 v17, 31, v%d" % V_LANE)
        e("v_mul_u32_u24 v%d, %d, v17" % (V_EA, EAP))
        e("v_lshl_add_u32 v%d, v16, 5, v%d" % (V_EA, V_EA))
        e("v_add_u32 v%d, 0x%x, v%d" % (V_EA, EAB, V_EA))
        e("s_lshl_b32 s%d, s%d, 11" % (S_T, S_W))
        e("s_add_u32 s%d, s%d, %d" % (S_T, S_T, EBB))
        e("v_lshlrev_b32 v%d, 5, v16" % V_EB)
        e("v_add_u32 v%d, s%d, v%d" % (V_EB, S_T, V_EB))
        e("v_lshlrev_b32 v%d, 4, v%d" % (V_B, V_LANE))
        for s in out_eloads(0, 0) + out_eloads(1, 64):
            e(s)
        e("s_waitcnt lgkmcnt(4)")
        for s in out_bloads(0, 0):
            e(s)
        for s in ZL:
            e(s)
        for s in out_valu(0, slow):
            e(s)
    e("s_mov_b32 s%d, 0" % S_CNT)
    if second:
        e("s_mov_b32 s%d, 0" % S_R)
        e("s_mov_b32 s%d, s%d" % (S_SO, S_OBASE))
    lab = "L_ok_%s%d" % (tag, int(second))
    a.lab(lab)
    sg0 = sg1 = None
    if second:
        sg0 = store_group(0) + ["s_add_u32 s%d, s%d, 4096" % (S_SO, S_SO)]
        sg1 = store_group(1) + ["s_and_b32 s%d, s%d, 1" % (S_T, S_CNT), "s_lshl_b32 s%d, s%d, 14" % (S_T, S_T),
                                "s_add_u32 s%d, s%d, s%d" % (S_SO, S_SO, S_T), "s_add_u32 s%d, s%d, 4096" % (S_SO, S_SO)]
    out_kstep(0, lambda n: ar(BB[0] + 4 * n), accf, out_valu(1, slow), out_eloads(0, 128) + out_bloads(1, 8192), sg0)
    out_kstep(1, lambda n: ar(BB[1] + 4 * n), accf, out_valu(0, slow), out_eloads(1, 192) + out_bloads(0, 16384), sg1)
    e("v_add_u32 v%d, 0x80, v%d" % (V_EA, V_EA))
    e("v_add_u32 v%d, 0x80, v%d" % (V_EB, V_EB))
    e("v_add_u32 v%d, 0x4000, v%d" % (V_B, V_B))
    e("s_add_u32 s%d, s%d, 1" % (S_CNT, S_CNT))
    e("s_cmp_lt_u32 s%d, 7" % S_CNT)
    e("s_cbranch_scc1 %s" % lab)
    if second:
        sg0 = store_group(0, 14) + ["s_add_u32 s%d, s%d, 4096" % (S_SO, S_SO)]
        sg1 = store_group(1, 15)
    if second:
        out_kstep(0, lambda n: vr(192 + 4 * n), accf, out_valu(1, slow), [], sg0, 0)
        out_kstep(1, lambda n: vr(224 + 4 * n), accf, [], [], sg1, 0)
    else:
        e("v_subrev_u32 v%d, 0x380, v%d" % (V_EA, V_EA))
        e("v_add_u32 v%d, 0x80, v%d" % (V_EB, V_EB))
        e("v_lshlrev_b32 v%d, 4, v%d" % (V_B, V_LANE))
        out_kstep(0, lambda n: vr(192 + 4 * n), accf, out_valu(1, slow), out_eloads(0, 0), None, 0)
        out_kstep(1, lambda n: vr(224 + 4 * n), accf, out_valu(0, slow), out_eloads(1, 64) + out_bloads(0, 0), None, 0)


def phase_out(slow):
    tag = "s" if slow else "f"
    a.c("---- out phase (%s) ----" % tag)
    e("v_mov_b32 v%d, -2.0" % V_C0)
    e("v_mov_b32 v%d, -2.0" % (V_C0 + 1))
    e("v_lshrrev_b32 v16, 5, v%d" % V_LANE)
    e("v_and_b32 v17, 31, v%d" % V_LANE)
    e("v_lshlrev_b32 v%d, 14, v16" % V_ST)
    e("v_lshl_add_u32 v%d, v17, 4, v%d" % (V_ST, V_ST))
    e("s_mul_i32 s%d, s%d, 4000" % (S_T, S_B))
    e("s_add_u32 s%d, s%d, s%d" % (S_T, S_T, S_T0))
    e("s_lshl_b32 s%d, s%d, 12" % (S_OBASE, S_T))
    e("s_lshl_b32 s%d, s%d, 10" % (S_T, S_W))
    e("s_add_u32 s%d, s%d, s%d" % (S_OBASE, S_OBASE, S_T))
    out_pass(tag, slow, False)
    if not slow:
        stamp()
    out_pass(tag, slow, True)
    if not slow:
        stamp()
    e("s_nop 7")
    e("s_nop 3")
    e("s_add_u32 s%d, s%d, 512" % (S_T, S_OBASE))
    stq = [20, 36]
    for r in range(16):
        tq = stq[r & 1]
        st = tq + 8 + 4 * ((r >> 1) & 1)
        t = 8 * (r >> 2) + (r & 3)
        for n in range(8):
            e("v_accvgpr_read_b32 v%d, a%d" % (tq + n, OACC + 16 * n + r))
        for i in range(4):
            e("v_cvt_pk_bf16_f32 v%d, v%d, v%d" % (st + i, tq + 2 * i, tq + 2 * i + 1))
        e("s_add_u32 s%d, s%d, %d" % (S_SO, S_T, t * 4096))
        e("buffer_store_dwordx4 %s, v%d, %s, s%d offen%s" % (vr(st), V_ST, sr(SRD_O, 4), S_SO, STMOD))
    if not slow:
        stamp()
        stamp_store()
    e("s_endpgm")


def x_item(sl_, i):
    return ["s_add_u32 s94, s92, %d" % (sl_ * 128 + i * 16384),
            "s_add_u32 s95, s93, %d" % (sl_ * XS + i * 4 * XBP),
            "v_add_u32 v%d, s94, v%d" % (V_W0, V_XL),
            "s_mov_b32 m0, s95",
            "s_nop 0",
            "buffer_load_dwordx4 v%d, %s, 0 offen nt lds" % (V_W0, sr(SRD_X, 4))]


def w_item(i):
    if i == 0:
        return ["s_lshr_b32 s94, s2, 3", "s_and_b32 s94, s94, 31", "s_lshl_b32 s94, s94, 2",
                "s_add_u32 s94, s94, s%d" % S_W,
                "v_lshlrev_b32 v%d, 4, v%d" % (V_W1, V_LANE),
                "s_mul_i32 s95, s94, 3072",
                "v_add_u32 v%d, s95, v%d" % (V_W0, V_W1),
                "global_load_dwordx4 a[252:255], v%d, %s" % (V_W0, sr(S_W2))]
    if i < 3:
        return ["global_load_dwordx4 a[252:255], v%d, %s offset:%d" % (V_W0, sr(S_W2), i * 1024)]
    if i == 3:
        return ["s_lshl_b32 s95, s94, 10", "v_add_u32 v%d, s95, v%d" % (V_W0, V_W1),
                "global_load_dwordx4 a[252:255], v%d, %s" % (V_W0, sr(S_WF))]
    return ["global_load_dwordx4 a[252:255], v%d, %s" % (V_W0, sr(S_WO))]


def o_item(i):
    ks, h_ = i >> 1, i & 1
    return ["s_lshl_b32 s95, s%d, 11" % S_W,
            "s_add_u32 m0, s95, %d" % (ks * 8192 + h_ * 1024),
            "s_mov_b32 s94, %d" % (ks * 8192 + h_ * 1024),
            "buffer_load_dwordx4 v%d, %s, s94 offen sc1 lds" % (V_OFF32W, sr(SRD_WS, 4))]


def schedule(entries):
    out = []
    pend = []
    for u in range(len(UNITS)):
        for i in range(8):
            pend.append(("u", u, i))
        for si, pos in enumerate(XPOS):
            if u == pos:
                pend += [("x", si + 1, i) for i in range(4)]
        if u == WUPOS and WARM == 1:
            pend += [("w", 0, i) for i in range(3)]
    for g in range(8):
        pend += [("f", g, j) for j in range(4)]
    pend += [("o", 0, i) for i in range(10, 18)]
    pend += [("r", 0, i) for i in range(16)]
    pend += [("o", 0, i) for i in range(0, 10)]
    pend += [("o", 0, i) for i in range(18, 28)]
    pi = 0
    freed = set()
    gates = set()
    lastf = {}
    vcount = 0
    last = {}
    marks = {}
    t = 0
    next_t = 0
    rare = 0
    forced = {}
    over = []
    enabled = []
    pace = [PACE1]

    afree = []
    where = {}

    def can(it):
        if it[0] == "f":
            return "T" in gates and (18 + (it[1] >> 1)) in freed
        if it[0] == "r":
            return "T" in gates and (22 + (it[2] >> 3)) in freed
        if it[0] == "o":
            return ("T" if 10 <= it[2] < 18 else ("O1" if it[2] < 10 else "O")) in gates
        if it[0] != "u" or it[1] in where:
            return True
        u = it[1]
        if u < 6 or (u - 6) in freed:
            where[u] = None
            return True
        if afree and NASLOT and u < len(UNITS) - ATAIL:
            where[u] = afree.pop(0)
            return True
        return False

    def issue():
        nonlocal pi, vcount, t, next_t
        k, u, i = pend[pi]
        if k == "u":
            sb, vo, cst = UNITS[u]
            if i == 0:
                out.append("  v_add_u32 v%d, 0x%x, v%d" % (V_LD, cst, vo))
                t += 4
            dst = vr(slot(u) + 4 * i) if where[u] is None else ar(where[u] + 4 * i)
            out.append("  global_load_dwordx4 %s, v%d, %s offset:%d" % (dst, V_LD, sr(sb), i * 512))
            vcount += 1
            last[u] = vcount
        elif k == "f":
            if i == 0:
                out.append("  v_add_u32 v%d, 0x%x, v%d" % (V_LD, FRF + u * 16384, V_OFF32))
            out.append("  global_load_dwordx4 %s, v%d, %s offset:%d sc1" % (vr(fslot(u) + 4 * i), V_LD, sr(S_WSP), i * 1024))
            vcount += 1
            lastf[u] = vcount
        elif k == "r":
            if i % 4 == 0:
                out.append("  v_lshlrev_b32 v%d, 4, v%d" % (V_LD, V_LANE))
                out.append("  v_add_u32 v%d, 0x%x, v%d" % (V_LD, FRO + 14 * 8192 + i * 1024, V_LD))
            out.append("  global_load_dwordx4 %s, v%d, %s offset:%d sc1" % (vr(192 + 4 * i), V_LD, sr(S_WSP), (i & 3) * 1024))
            vcount += 1
        else:
            for s_ in (x_item(u, i) if k == "x" else (w_item(i) if k == "w" else o_item(i))):
                out.append("  " + s_)
            vcount += 1
            if k == "x":
                marks["x%d" % u] = vcount
        pi += 1
        t += 8
        next_t = max(next_t, t - 8) + (PACE0 if pi < NFAST else pace[0])

    for k, arg, cost, noins in entries:
        if not noins and k in ("i",):
            while pi < len(pend) and t >= next_t and can(pend[pi]):
                issue()
        if k == "i":
            out.append("  " + arg)
            if not rare:
                t += cost
        elif k == "v":
            out.append("  " + arg)
            vcount += 1
            t += PACE
            next_t = max(next_t, t)
        elif k == "l":
            out.append(arg + ":")
        elif k == "c":
            out.append("  ; %s  [t=%d, loads issued %d]" % (arg, t, pi))
        elif k == "free":
            freed.add(arg)
        elif k == "rare":
            rare = arg
        elif k in ("need", "flush"):
            while ("u", arg, 7) in pend[pi:]:
                assert can(pend[pi]), ("slot not free", pend[pi], arg)
                if k == "need":
                    forced[arg] = forced.get(arg, 0) + 1
                t = max(t, next_t)
                issue()
            if k == "need":
                n = vcount - last[arg]
                out.append("  s_waitcnt vmcnt(%d)" % min(n, 63))
                if where[arg] is not None:
                    assert (arg - 6) in freed
                    for r_ in range(32):
                        out.append("  v_accvgpr_read_b32 v%d, a%d" % (slot(arg) + r_, where[arg] + r_))
                    t += 128
                    afree.append(where[arg])
                    over.append(arg)
        elif k == "gate":
            gates.add(arg)
        elif k == "freef":
            pass
        elif k == "needf":
            while ("f", arg, 3) in pend[pi:]:
                assert can(pend[pi]), ("blocked", pend[pi])
                forced["f%d" % arg] = forced.get("f%d" % arg, 0) + 1
                t = max(t, next_t)
                issue()
            out.append("  s_waitcnt vmcnt(%d)" % min(vcount - lastf[arg], 63))
        elif k == "flushall":
            while pi < len(pend):
                assert can(pend[pi]), ("blocked", pend[pi])
                t = max(t, next_t)
                issue()
        elif k == "pace":
            pace[0] = arg
        elif k == "aslot":
            if len(enabled) < NASLOT:
                enabled.append(arg)
                afree.append(arg)
        elif k == "mark":
            marks[arg] = vcount
        elif k == "needmark":
            while arg not in marks or (pi < len(pend) and pend[pi][0] == "x" and "x%d" % pend[pi][1] == arg):
                t = max(t, next_t)
                issue()
            out.append("  s_waitcnt vmcnt(%d)" % min(vcount - marks[arg], 63))
    assert pi == len(pend)
    sys.stderr.write("est front cycles %d, forced: %s overflow units %s\n" % (t, forced, over))
    return out


def main():
    prologue()
    stamp()
    if os.environ.get("EARLYFLAG"):
        a.noins = 1
        e("s_lshl_b32 s%d, s%d, 4" % (S_T, S_B))
        e("v_mov_b32 v40, s%d" % S_T)
        e("s_mov_b32 s94, 0")
        a.lab("L_ef")
        e("global_load_dwordx4 v[60:63], v40, %s sc0 sc1" % sr(S_DBG))
        e("s_waitcnt vmcnt(0)")
        e("v_min_u32 v41, v60, v61")
        e("v_min3_u32 v41, v62, v63, v41")
        e("s_nop 0")
        e("v_readfirstlane_b32 s95, v41")
        e("s_add_u32 s94, s94, 1")
        e("s_cmp_gt_u32 s94, 100000")
        e("s_cbranch_scc1 L_ef_done")
        e("s_cmp_eq_u32 s95, 0")
        e("s_cbranch_scc1 L_ef")
        a.lab("L_ef_done")
        e("v_mov_b32 v40, 0x80")
        e("v_mov_b32 v41, s94")
        e("global_atomic_umax v40, v41, %s" % sr(S_DBG))
        e("s_waitcnt vmcnt(0)")
        a.noins = 0
    a.c("---- conv1 ----")
    a.op("aslot", 200)
    conv_phase(U_C1, 5, lambda sl, j: A_ACC1 + (sl * 8 + j) * 4, c1_areads, True)
    stamp()
    epi1()
    stamp()
    a.c("---- conv2 ----")
    flag_issue()
    conv_phase(U_C2, 2, lambda sl, j: A_ACC2 + (sl * 8 + j) * 4, c2_areads, False)
    stamp()
    epi2()
    stamp()
    a.c("---- fe ----")
    frag_phase(0, 8, A_C3, f_aread)
    stamp()
    epi3()
    stamp()
    a.noins = 1
    front = schedule(a.l)
    a.l = []
    e("s_cmp_lg_u32 s%d, 0" % S_FLAG)
    e("s_cbranch_scc1 L_slow")
    phase_out(False)
    a.lab("L_slow")
    phase_out(True)
    producer()
    a.lab("L_end")
    e("s_endpgm")
    for _ in range(300):
        e("s_endpgm")
    back = []
    for k, arg, cost, noins in a.l:
        back.append(arg + ":" if k == "l" else ("  ; " + arg if k == "c" else "  " + arg))

    hdr = open("standalone__seq2seq_rnn_t_joint__speech.s.ref").read().split("\n")
    top = [l for l in hdr if l.startswith(";") and "@launch" not in l and "Override" not in l and "grid=ceil" not in l]
    out = "\n".join(top) + "\n"
    out += "; @launch grid=(254,1,1) block=(256,1,1) lds=%d\n" % LDS_TOTAL
    out += '.amdgcn_target "amdgcn-amd-amdhsa--gfx950"\n.text\n.globl %s\n.p2align 8\n.type %s,@function\n%s:\n' % (KN, KN, KN)
    out += "\n".join(front + back) + "\n"
    out += """.section .rodata,"a"
.p2align 6
.amdhsa_kernel %s
  .amdhsa_next_free_vgpr 512
  .amdhsa_next_free_sgpr 102
  .amdhsa_accum_offset 256
  .amdhsa_group_segment_fixed_size 0
  .amdhsa_kernarg_size 80
  .amdhsa_user_sgpr_count 2
  .amdhsa_user_sgpr_kernarg_segment_ptr 1
  .amdhsa_system_sgpr_workgroup_id_x 1
.end_amdhsa_kernel
""" % KN
    dst = sys.argv[1] if len(sys.argv) > 1 else "standalone__seq2seq_rnn_t_joint__speech.s"
    open(dst, "w").write(out)
    if PROF:
        sys.stderr.write("stamps %d\n" % NSTAMP[0])


main()
```

```python
import sys, os, struct

DEBUG = os.environ.get("DBG", "")
PROF = os.environ.get("PROF", "")
PACE = int(os.environ.get("PACE", "64"))
PACE0 = int(os.environ.get("PACE0", "30"))
NFAST = int(os.environ.get("NFAST", "60"))
PK = int(os.environ.get("PK", "0"))
STMOD = os.environ.get("STMOD", " nt")
CODEPF = int(os.environ.get("CODEPF", "1"))
NASLOT = int(os.environ.get("NASLOT", "3"))
ATAIL = int(os.environ.get("ATAIL", "0"))
W1WARM = int(os.environ.get("W1WARM", "1"))
PACE1 = int(os.environ.get("PACE1", "80"))
FCHK = int(os.environ.get("FCHK", "12"))
TGW = int(os.environ.get("TGW", "8"))
WUPOS = int(os.environ.get("WUPOS", "8"))
XPOS = [int(v) for v in os.environ.get("XPOS", "1,3,5").split(",")]
XS2 = int(os.environ.get("XS2", "0"))
XS3 = int(os.environ.get("XS3", "1"))
XWU = int(os.environ.get("XWU", "3"))
WARM = int(os.environ.get("WARM", "1"))
NSTAMP = [0]

KN = "standalone__seq2seq_rnn_t_joint__speech_kernel"

XBP = 1152
XS = 17 * XBP
XB = 0
EXB = 78848
EX1S = 18432
HB = 0
HP = 528
FB = 122368
FR2 = 65536
FRF = FR2 + 393216
FRO = FRF + 131072
WSZ = FRO + 131072
FP = 544
FLG = 114688
EAB = 122368
EAP = 1040
EBB = 155648
LDS_TOTAL = 163840

V_OFF16, V_OFF32, V_LD = 1, 2, 3
V_A0, V_A1, V_A2 = 4, 5, 6
V_EXW, V_EXR = 7, 8
V_W0, V_W1 = 9, 10
V_MASK = 11
V_C0 = 12
V_LANE = 14
V_T0, V_T1 = 15, 16
V_OFF32W = 18
TMP = 20
RING = 64

S_X, S_W1, S_W2, S_G, S_WF, S_WG, S_WO, S_OUT = 4, 6, 8, 10, 12, 14, 16, 18
SRD_X, SRD_G, SRD_O = 20, 24, 28
S_W, S_NH, S_KH, S_B, S_T0, S_CNT = 56, 57, 58, 59, 60, 61
S_SELLO, S_SELHI = 62, 63
S_C1 = 64
S_ONE = 66
S_FLAG = 68
S_T = 69
S_SCL = 76
S_OBASE = 79
S_WSP = 80
S_SO = 82
S_R = 83
S_DBG = 84
SRD_WS = 88
S_TILE = 86

A_ACC1 = 0
A_AF = 160
A_ACCG = 200
A_GF = 232
A_ACC2 = 64
A_ACC3 = 0


def f32bits(x):
    return struct.unpack("<I", struct.pack("<f", x))[0]


LOG2E = 1.4426950408889634
GC0 = -2.0 * 0.7978845608028654 * LOG2E
GC1 = GC0 * 0.044715
TSC = 2.0 * LOG2E


class A:
    def __init__(self):
        self.l = []
        self.noins = 0

    def cost(self, s):
        op = s.split()[0]
        if op.startswith("v_mfma_f32_16x16"):
            return 10
        if op.startswith("v_mfma"):
            return 32
        if op in ("v_exp_f32", "v_rcp_f32"):
            return 8
        if op.startswith("v_"):
            return 4
        if op.startswith("ds_write_b128"):
            return 12
        if op.startswith("ds_"):
            return 4
        if op.startswith("buffer_") or op.startswith("global_"):
            return 8
        if op == "s_barrier":
            return 60
        if op == "s_nop":
            return 4 * (int(s.split()[1]) + 1)
        return 2

    def e(self, s):
        self.l.append(["i", s, self.cost(s), self.noins])

    def vm(self, s):
        self.l.append(["v", s, 8, 1])

    def lab(self, s):
        self.l.append(["l", s, 0, 1])

    def c(self, s):
        self.l.append(["c", s, 0, self.noins])

    def op(self, kind, arg):
        self.l.append([kind, arg, 0, self.noins])


a = A()
e = a.e


def vr(b, n=4):
    return "v[%d:%d]" % (b, b + n - 1)


def ar(b, n=4):
    return "a[%d:%d]" % (b, b + n - 1)


def sr(b, n=2):
    return "s[%d:%d]" % (b, b + n - 1)


def slot(u):
    return RING + 32 * (u % 6)


def conv_off(it, u):
    return (u >> 1) * 131072 + (u & 1) * 32768 + it * 65536


UNITS = []
for k in range(12):
    UNITS.append((S_W1, V_OFF16, (k % 3) * 131072 + (k // 3) * 32768))
U_C1 = 0
FSL = [("a", 200, None), ("a", 216, None)] + [("v", RING + 16 * i, ("u", 6 + (i >> 1))) for i in range(12)] + \
      [("a", 160, ("g", "C1END")), ("a", 176, ("g", "C1END")), ("a", 128, ("g", "HALO")), ("a", 144, ("g", "HALO"))]
NF = len(FSL)


def fsl(g, j):
    k_, b_, _ = FSL[g % NF]
    return "%s[%d:%d]" % (k_, b_ + 4 * j, b_ + 4 * j + 3)


def perms(unit, j, dst):
    R = slot(unit)
    d = j >> 1
    sel = S_SELHI if (j & 1) else S_SELLO
    return ["v_perm_b32 v%d, v%d, v%d, s%d" % (dst + p, R + 4 * (2 * p + 1) + d, R + 4 * (2 * p) + d, sel)
            for p in range(4)]


FBUF = TMP


def prime(unit):
    a.op("need", unit)
    for j in (0, 1):
        for s in perms(unit, j, FBUF + 4 * j):
            e(s)


def emit_units(units, nM, acc):
    for ui, u in enumerate(units):
        for s in u.get("pre", []):
            if isinstance(s, tuple) and s[0] == "call":
                s[1]()
            elif isinstance(s, tuple):
                a.op(s[0], s[1])
            else:
                e(s)
        e("s_waitcnt lgkmcnt(0)")
        areads = list(u.get("areads", []))
        un = u["unit"]
        for j in range(8):
            fill = []
            jt = j + 2
            if jt < 8:
                fill += perms(un, jt, FBUF + 4 * (jt & 3))
                if jt == 7:
                    fill.append(("free", un))
            elif not u["last"]:
                if j == 6:
                    fill.append(("need", un + 1))
                fill += perms(un + 1, jt - 8, FBUF + 4 * (jt & 3))
            if areads and j < 6:
                fill.append(areads.pop(0))
            fb = FBUF + 4 * (j & 3)
            k = 0
            for sl in range(nM):
                d = acc(sl, j)
                e("v_mfma_f32_16x16x32_bf16 %s, %s, %s, %s" % (ar(d), ar(u["aset"][sl]), vr(fb), ar(d)))
                take = 2 if sl < nM - 1 else len(fill) - k
                for s in fill[k:k + take]:
                    if isinstance(s, tuple):
                        a.op(s[0], s[1])
                    else:
                        e(s)
                k += take
        assert not areads


def zero_acc(base, n, zreg):
    for b in range(base, base + n, 16):
        e("v_mfma_f32_32x32x16_bf16 %s, %s, %s, 0" % (ar(b, 16), vr(zreg), vr(zreg)))


DEFER = []


def e_d(s_):
    e(s_)
    if DEFER:
        e(DEFER.pop(0))


def gelu_pairs(xs, ts):
    for x, t in zip(xs, ts):
        e("v_pk_mul_f32 %s, %s, %s" % (vr(t, 2), vr(x, 2), vr(x, 2)))
    for x, t in zip(xs, ts):
        e("v_pk_fma_f32 %s, %s, %s, %s" % (vr(t, 2), vr(t, 2), sr(S_C1), vr(V_C0, 2)))
    for x, t in zip(xs, ts):
        e("v_pk_mul_f32 %s, %s, %s" % (vr(t, 2), vr(x, 2), vr(t, 2)))
    for i, (x, t) in enumerate(zip(xs, ts)):
        e("v_exp_f32 v%d, v%d" % (t, t))
        (e_d if i & 1 else e)("v_exp_f32 v%d, v%d" % (t + 1, t + 1))
    for x, t in zip(xs, ts):
        e("v_pk_add_f32 %s, %s, %s" % (vr(t, 2), vr(t, 2), sr(S_ONE)))
    for i, (x, t) in enumerate(zip(xs, ts)):
        e("v_rcp_f32 v%d, v%d" % (t, t))
        (e_d if i & 1 else e)("v_rcp_f32 v%d, v%d" % (t + 1, t + 1))
    for x, t in zip(xs, ts):
        e("v_pk_mul_f32 %s, %s, %s" % (vr(t, 2), vr(x, 2), vr(t, 2)))
    assert not DEFER


def stamp():
    if not PROF:
        return
    i = NSTAMP[0]
    NSTAMP[0] += 1
    assert i < 60
    e("s_memtime s[98:99]")
    e("s_waitcnt lgkmcnt(0)")
    e("v_writelane_b32 v19, s98, %d" % i)


def stamp_store():
    if not PROF:
        return
    e("s_waitcnt vmcnt(0)")
    stamp()
    e("s_lshl_b32 s98, s2, 10")
    e("s_lshl_b32 s99, s%d, 8" % S_W)
    e("s_add_u32 s98, s98, s99")
    e("s_add_u32 s98, s98, 0x100000")
    e("v_lshlrev_b32 v17, 2, v%d" % V_LANE)
    e("v_add_u32 v17, s98, v17")
    e("global_store_dword v17, v19, %s" % sr(S_WSP))


V_XL = 13


def x_slice(sl_):
    sv = a.noins
    a.noins = 1
    for i in range(4):
        e("s_add_u32 s94, s92, %d" % (sl_ * 128 + i * 16384))
        e("s_add_u32 s95, s93, %d" % (sl_ * XS + i * 4 * XBP))
        e("v_add_u32 v%d, s94, v%d" % (V_W0 + (i & 1), V_XL))
        e("s_mov_b32 m0, s95")
        e("s_nop 0")
        a.vm("buffer_load_dwordx4 v%d, %s, 0 offen nt lds" % (V_W0 + (i & 1), sr(SRD_X, 4)))
    a.op("mark", "x%d" % sl_)
    a.noins = sv


def w1warm():
    e("s_lshr_b32 s94, s2, 3")
    e("s_and_b32 s94, s94, 31")
    e("s_lshl_b32 s94, s94, 2")
    e("s_add_u32 s94, s94, s%d" % S_W)
    e("s_mul_i32 s95, s94, 3072")
    e("v_lshlrev_b32 v28, 4, v%d" % V_LANE)
    e("v_add_u32 v28, s95, v28")
    for i in range(3):
        a.vm("global_load_dwordx4 a[252:255], v28, %s offset:%d" % (sr(S_W1), i * 1024))
    if WARM == 2:
        for i in range(3):
            a.vm("global_load_dwordx4 a[252:255], v28, %s offset:%d" % (sr(S_W2), i * 1024))
        e("s_lshl_b32 s95, s94, 10")
        e("v_lshlrev_b32 v28, 4, v%d" % V_LANE)
        e("v_add_u32 v28, s95, v28")
        a.vm("global_load_dwordx4 a[252:255], v28, %s" % sr(S_WF))
        a.vm("global_load_dwordx4 a[252:255], v28, %s" % sr(S_WO))


def prologue():
    a.noins = 1
    e("s_cmp_ge_u32 s2, 254")
    e("s_cbranch_scc1 L_end")
    stamp()
    e("s_load_dwordx16 s[4:19], s[0:1], 0")
    e("s_load_dwordx2 %s, s[0:1], 64" % sr(S_DBG))
    e("s_load_dwordx2 %s, s[0:1], 72" % sr(S_WSP))
    e("v_lshrrev_b32 v20, 6, v0")
    e("v_and_b32 v%d, 63, v0" % V_LANE)
    e("s_sub_u32 s%d, s2, 4" % S_TILE)
    e("s_cmp_ge_u32 s%d, 125" % S_TILE)
    e("v_readfirstlane_b32 s%d, v20" % S_W)
    e("s_cselect_b32 s%d, 1, 0" % S_B)
    e("s_mul_i32 s%d, s%d, 125" % (S_T, S_B))
    e("s_sub_u32 s%d, s%d, s%d" % (S_T0, S_TILE, S_T))
    e("s_lshl_b32 s%d, s%d, 5" % (S_T0, S_T0))
    e("s_and_b32 s%d, s%d, 1" % (S_NH, S_W))
    e("s_lshr_b32 s%d, s%d, 1" % (S_KH, S_W))
    if CODEPF:
        e("s_getpc_b64 s[96:97]")
        a.lab("L_pc")
        e("s_lshr_b32 s94, s2, 3")
        e("s_and_b32 s94, s94, 31")
        e("s_lshl_b32 s94, s94, 2")
        e("s_add_u32 s94, s94, s%d" % S_W)
        e("s_min_u32 s94, s94, (L_end - L_pc) / 1024")
        e("s_lshl_b32 s94, s94, 10")
        e("v_lshlrev_b32 v21, 4, v%d" % V_LANE)
        e("v_add_u32 v21, s94, v21")
        a.vm("global_load_dwordx4 a[252:255], v21, s[96:97]")
    e("s_mov_b32 s%d, 0x05040100" % S_SELLO)
    e("s_mov_b32 s%d, 0x07060302" % S_SELHI)
    e("s_mov_b32 s%d, 0x%x" % (S_SCL, f32bits(TSC)))
    e("v_lshrrev_b32 v21, 4, v%d" % V_LANE)
    e("v_and_b32 v22, 15, v%d" % V_LANE)
    e("v_lshrrev_b32 v23, 5, v%d" % V_LANE)
    e("v_and_b32 v24, 31, v%d" % V_LANE)
    e("s_lshl_b32 s%d, s%d, 8" % (S_T, S_NH))
    e("s_lshl_b32 s%d, s%d, 14" % (S_T + 1, S_KH))
    e("s_add_u32 s%d, s%d, s%d" % (S_T, S_T, S_T + 1))
    e("v_lshlrev_b32 v25, 12, v21")
    e("v_lshl_add_u32 v25, v22, 4, v25")
    e("v_add_u32 v%d, s%d, v25" % (V_OFF16, S_T))
    e("v_lshrrev_b32 v26, 3, v%d" % V_LANE)
    e("v_and_b32 v25, 6, v26")
    e("v_and_b32 v27, 7, v%d" % V_LANE)
    e("v_xor_b32 v25, v25, v27")
    e("v_lshlrev_b32 v26, 9, v26")
    e("v_lshl_add_u32 v26, v25, 4, v26")
    e("v_lshlrev_b32 v25, 4, v%d" % V_LANE)
    e("s_mul_i32 s%d, s%d, %d" % (S_T, S_W, EX1S))
    e("s_add_u32 s%d, s%d, %d" % (S_T, S_T, EXB))
    e("v_add_u32 v%d, s%d, v25" % (V_EXW, S_T))
    e("s_xor_b32 s%d, s%d, 2" % (S_T + 1, S_W))
    e("s_mul_i32 s%d, s%d, %d" % (S_T, S_T + 1, EX1S))
    e("s_add_u32 s%d, s%d, %d" % (S_T, S_T, EXB))
    e("v_add_u32 v%d, s%d, v25" % (V_EXR, S_T))
    e("s_cmp_lt_u32 s2, 4")
    e("s_cbranch_scc1 L_prod")
    e("s_lshl_b32 s%d, s%d, 11" % (S_T, S_T0))
    e("s_sub_u32 s%d, s%d, 1536" % (S_T, S_T))
    e("s_lshl_b32 s%d, s%d, 7" % (S_T + 3, S_W))
    e("s_add_u32 s%d, s%d, s%d" % (S_T + 3, S_T + 3, S_T))
    e("s_add_u32 s%d, s%d, 65536" % (S_T + 3, S_T + 3))
    e("s_mul_i32 s%d, s%d, %d" % (S_T + 4, S_W, XS))
    e("s_add_u32 s%d, s%d, %d" % (S_T + 4, S_T + 4, 16 * XBP))
    e("s_lshl_b32 s%d, s%d, 12" % (S_T + 1, S_W))
    e("s_add_u32 s%d, s%d, s%d" % (S_T, S_T, S_T + 1))
    e("s_mul_i32 s%d, s%d, %d" % (S_T + 1, S_W, XBP))
    e("s_mul_i32 s%d, s%d, 8192000" % (S_T + 2, S_B))
    e("s_waitcnt lgkmcnt(0)")
    e("s_add_u32 s%d, s%d, s%d" % (SRD_X, S_X, S_T + 2))
    e("s_addc_u32 s%d, s%d, 0" % (SRD_X + 1, S_X + 1))
    e("s_and_b32 s%d, s%d, 0xffff" % (SRD_X + 1, SRD_X + 1))
    e("s_mov_b32 s%d, 8192000" % (SRD_X + 2))
    e("s_mov_b32 s%d, 0x00020000" % (SRD_X + 3))
    stamp()
    if W1WARM == 1:
        w1warm()
    e("v_add_u32 v27, s%d, v26" % (S_T + 3))
    e("s_mov_b32 m0, s%d" % (S_T + 4))
    e("s_nop 0")
    a.vm("buffer_load_dwordx4 v27, %s, 0 offen nt lds" % sr(SRD_X, 4))
    e("s_mov_b32 s92, s%d" % S_T)
    e("s_mov_b32 s93, s%d" % (S_T + 1))
    e("v_mov_b32 v%d, v26" % V_XL)
    x_slice(0)
    if W1WARM == 2:
        w1warm()
    a.op("flush", 0)
    stamp()
    a.noins = 0
    e("s_mov_b32 s%d, s%d" % (SRD_O, S_OUT))
    e("s_and_b32 s%d, s%d, 0xffff" % (SRD_O + 1, S_OUT + 1))
    e("s_mov_b32 s%d, 32768000" % (SRD_O + 2))
    e("s_mov_b32 s%d, 0x00020000" % (SRD_O + 3))
    e("s_mov_b32 s%d, s%d" % (SRD_WS, S_WSP))
    e("s_and_b32 s%d, s%d, 0xffff" % (SRD_WS + 1, S_WSP + 1))
    e("s_mov_b32 s%d, %d" % (SRD_WS + 2, WSZ))
    e("s_mov_b32 s%d, 0x00020000" % (SRD_WS + 3))
    e("s_mov_b32 s%d, 0x%x" % (S_C1, f32bits(GC1)))
    e("s_mov_b32 s%d, 0x%x" % (S_C1 + 1, f32bits(GC1)))
    e("s_mov_b32 s%d, 1.0" % S_ONE)
    e("s_mov_b32 s%d, 1.0" % (S_ONE + 1))
    e("s_mov_b32 s%d, 0" % S_FLAG)
    e("v_lshlrev_b32 v25, 4, v%d" % V_LANE)
    e("s_lshl_b32 s%d, s%d, 12" % (S_T, S_W))
    e("v_add_u32 v%d, s%d, v25" % (V_OFF32, S_T))
    e("s_lshl_b32 s%d, s%d, 11" % (S_T, S_W))
    e("s_add_u32 s%d, s%d, %d" % (S_T, S_T, FRO))
    e("v_add_u32 v%d, s%d, v25" % (V_OFF32W, S_T))
    for i in range(4):
        e("v_mov_b32 v%d, 0" % (28 + i))
    e("s_nop 1")
    zero_acc(A_ACC1, 160, 28)
    e("s_or_b32 s%d, s%d, s%d" % (S_T, S_T0, S_KH))
    e("v_or_b32 v25, s%d, v21" % S_T)
    e("v_cmp_eq_u32 vcc, 0, v25")
    e("v_mov_b32 v25, 1.0")
    e("s_nop 1")
    e("v_cndmask_b32 v%d, v25, 0, vcc" % V_MASK)
    e("s_lshl_b32 s%d, s%d, 2" % (S_T, S_KH))
    e("v_add_u32 v25, s%d, v21" % S_T)
    e("s_mul_i32 s%d, s%d, 9216" % (S_T, S_KH))
    e("s_sub_u32 s%d, 9216, s%d" % (S_T + 1, S_T))
    for cls, dst in ((0, V_A0), (1, 15)):
        e("v_add_u32 v26, %d, v22" % cls)
        e("v_and_b32 v27, 3, v26")
        e("v_lshlrev_b32 v27, 1, v27")
        e("v_lshrrev_b32 v26, 2, v26")
        e("v_mul_u32_u24 v26, %d, v26" % XBP)
        e("v_lshl_add_u32 v26, v27, 7, v26")
        e("v_xor_b32 v27, v27, v25")
        e("v_lshl_add_u32 v26, v27, 4, v26")
        e("v_add_u32 v%d, s%d, v26" % (dst, S_T))
        e("v_add_u32 v%d, s%d, v26" % (dst + 1, S_T + 1))
        e("v_add_u32 v%d, 0x%x, v26" % (dst + 2, 18432))
    a.op("needmark", "x0")
    e("s_barrier")


def warmup():
    if not WARM:
        return
    e("s_lshr_b32 s94, s2, 3")
    e("s_and_b32 s94, s94, 31")
    e("s_lshl_b32 s94, s94, 2")
    e("s_add_u32 s94, s94, s%d" % S_W)
    e("v_lshlrev_b32 v%d, 4, v%d" % (V_W1, V_LANE))
    e("s_mul_i32 s95, s94, 3072")
    e("v_add_u32 v%d, s95, v%d" % (V_W0, V_W1))
    for i in range(3):
        a.vm("global_load_dwordx4 a[252:255], v%d, %s offset:%d" % (V_W0, sr(S_W2), i * 1024))
    e("s_lshl_b32 s95, s94, 10")
    e("v_add_u32 v%d, s95, v%d" % (V_W0, V_W1))
    a.vm("global_load_dwordx4 a[252:255], v%d, %s" % (V_W0, sr(S_WF)))
    a.vm("global_load_dwordx4 a[252:255], v%d, %s" % (V_W0, sr(S_WO)))


def producer():
    a.lab("L_prod")
    e("s_lshl_b32 s92, s2, 2")
    e("s_add_u32 s92, s92, s%d" % S_W)
    e("s_lshr_b32 s93, s92, 1")
    e("s_lshl_b32 s94, s93, 14")
    e("s_lshl_b32 s95, s%d, 8" % S_NH)
    e("s_add_u32 s95, s94, s95")
    e("v_lshlrev_b32 v30, 12, v21")
    e("v_lshl_add_u32 v30, v22, 4, v30")
    e("v_add_u32 v30, s95, v30")
    e("s_lshl_b32 s95, s%d, 13" % S_NH)
    e("s_add_u32 s95, s94, s95")
    e("v_lshlrev_b32 v32, 4, v%d" % V_LANE)
    e("v_add_u32 v32, s95, v32")
    e("s_waitcnt lgkmcnt(0)")
    for i in range(3):
        e("v_add_u32 v%d, 0x%x, v30" % (V_LD, i * 131072))
        for k_ in range(8):
            e("global_load_dwordx4 %s, v%d, %s offset:%d" % (vr(slot(i) + 4 * k_), V_LD, sr(S_W2), k_ * 512))
    for i in range(3):
        e("s_waitcnt vmcnt(16)")
        e("v_add_u32 v34, 0x%x, v32" % (FR2 + i * 131072))
        e("v_add_u32 v35, 0x1000, v34")
        for jj in range(8):
            d = 36 + 4 * (jj & 3)
            for s_ in perms(i, jj, d):
                e(s_)
            e("global_store_dwordx4 v%d, %s, %s offset:%d sc0 sc1" % (34 + (jj >> 2), vr(d), sr(S_WSP), (jj & 3) * 1024))
    e("s_lshl_b32 s94, s92, 2")
    e("s_add_u32 s94, s94, 64")
    e("v_mov_b32 v34, s94")
    e("v_mov_b32 v35, 1")
    e("s_waitcnt vmcnt(0)")
    e("s_mov_b32 exec_lo, 1")
    e("s_mov_b32 exec_hi, 0")
    e("global_store_dword v34, v35, %s sc0 sc1" % sr(S_DBG))
    e("s_mov_b64 exec, -1")
    e("s_cmp_lt_u32 s2, 2")
    e("s_cbranch_scc1 L_prodg")
    e("s_sub_u32 s92, s2, 2")
    e("s_lshl_b32 s92, s92, 2")
    e("s_add_u32 s92, s92, s%d" % S_W)
    e("s_lshl_b32 s94, s92, 14")
    e("v_lshlrev_b32 v30, 12, v21")
    e("v_lshl_add_u32 v30, v22, 4, v30")
    e("v_add_u32 v30, s94, v30")
    e("v_lshlrev_b32 v31, 12, v23")
    e("v_lshl_add_u32 v31, v24, 4, v31")
    e("v_add_u32 v31, s94, v31")
    e("v_lshlrev_b32 v32, 4, v%d" % V_LANE)
    e("v_add_u32 v32, s94, v32")
    e("s_waitcnt lgkmcnt(0)")
    for i in range(4):
        if i < 2:
            e("v_add_u32 v%d, 0x%x, v30" % (V_LD, i * 256))
        else:
            e("v_add_u32 v%d, 0x%x, v31" % (V_LD, (i - 2) * 8192))
        for k_ in range(8):
            e("global_load_dwordx4 %s, v%d, %s offset:%d" % (vr(slot(i) + 4 * k_), V_LD, sr(S_WF if i < 2 else S_WO), k_ * 512))
    for i in range(4):
        e("s_waitcnt vmcnt(24)")
        e("v_add_u32 v34, 0x%x, v32" % ((FRF if i < 2 else FRO) + (i & 1) * 8192))
        e("v_add_u32 v35, 0x1000, v34")
        for jj in range(8):
            d = 36 + 4 * (jj & 3)
            for s_ in perms(i, jj, d):
                e(s_)
            e("global_store_dwordx4 v%d, %s, %s offset:%d sc0 sc1" % (34 + (jj >> 2), vr(d), sr(S_WSP), (jj & 3) * 1024))
    e("s_lshl_b32 s94, s92, 2")
    e("s_add_u32 s94, s94, 32")
    e("v_mov_b32 v34, s94")
    e("v_mov_b32 v35, 1")
    e("s_waitcnt vmcnt(0)")
    e("s_mov_b32 exec_lo, 1")
    e("s_mov_b32 exec_hi, 0")
    e("global_store_dword v34, v35, %s sc0 sc1" % sr(S_DBG))
    e("s_endpgm")
    a.lab("L_prodg")
    e("s_lshl_b32 s%d, s2, 12" % S_T)
    e("s_lshl_b32 s%d, s%d, 6" % (S_T + 1, S_KH))
    e("s_add_u32 s%d, s%d, s%d" % (S_T, S_T, S_T + 1))
    e("v_lshlrev_b32 v25, 9, v22")
    e("v_lshl_add_u32 v25, v21, 4, v25")
    e("v_add_u32 v25, s%d, v25" % S_T)
    e("s_waitcnt lgkmcnt(0)")
    e("s_mov_b32 s%d, s%d" % (SRD_G, S_G))
    e("s_and_b32 s%d, s%d, 0xffff" % (SRD_G + 1, S_G + 1))
    e("s_mov_b32 s%d, 8192" % (SRD_G + 2))
    e("s_mov_b32 s%d, 0x00020000" % (SRD_G + 3))
    for u in range(4):
        e("buffer_load_dwordx4 %s, v25, %s, 0 offen offset:%d" % (ar(A_GF + 4 * u), sr(SRD_G, 4), u * 128))
    for u in range(4):
        e("v_add_u32 v%d, 0x%x, v%d" % (V_LD, u * 32768, V_OFF16))
        for i in range(8):
            e("global_load_dwordx4 %s, v%d, %s offset:%d" % (vr(slot(u) + 4 * i), V_LD, sr(S_WG), i * 512))
    for i in range(4):
        e("v_mov_b32 v%d, 0" % (28 + i))
    e("s_nop 1")
    zero_acc(A_ACCG, 32, 28)
    e("s_nop 3")
    e("s_waitcnt vmcnt(0)")
    for u in range(4):
        for j in range(8):
            for s_ in perms(u, j, FBUF + 4 * (j & 3)):
                e(s_)
            e("s_nop 1")
            d = A_ACCG + 4 * j
            e("v_mfma_f32_16x16x32_bf16 %s, %s, %s, %s" % (ar(d), ar(A_GF + 4 * u), vr(FBUF + 4 * (j & 3)), ar(d)))
    e("s_nop 7")
    e("s_nop 1")
    for j in range(8):
        e("ds_write_b128 v%d, %s offset:%d" % (V_EXW, ar(A_ACCG + 4 * j), j * 1024))
    e("v_lshrrev_b32 v20, 4, v%d" % V_LANE)
    e("v_and_b32 v21, 15, v%d" % V_LANE)
    e("v_and_b32 v20, 1, v20")
    e("v_lshlrev_b32 v20, 12, v20")
    e("v_lshl_add_u32 v20, v21, 5, v20")
    e("s_lshl_b32 s%d, s%d, 9" % (S_T, S_NH))
    e("s_lshl_b32 s%d, s2, 14" % (S_T + 1))
    e("s_add_u32 s%d, s%d, s%d" % (S_T, S_T, S_T + 1))
    e("v_add_u32 v%d, s%d, v20" % (V_W0, S_T))
    e("v_add_u32 v%d, 0x2000, v%d" % (V_A0, V_W0))
    e("v_mov_b32 v%d, 0" % V_W1)
    e("s_waitcnt lgkmcnt(0)")
    e("s_barrier")
    for j in range(8):
        e("ds_read_b128 %s, v%d offset:%d" % (vr(TMP + 4 * j), V_EXR, j * 1024))
    T = TMP + 32
    R = RING
    e("s_waitcnt lgkmcnt(0)")
    for j in range(8):
        P = TMP + 4 * j
        for r in range(4):
            e("v_accvgpr_read_b32 v%d, a%d" % (T + r, A_ACCG + 4 * j + r))
        e("v_pk_add_f32 %s, %s, %s" % (vr(P, 2), vr(P, 2), vr(T, 2)))
        e("v_pk_add_f32 %s, %s, %s" % (vr(P + 2, 2), vr(P + 2, 2), vr(T + 2, 2)))
        e("v_cvt_pk_bf16_f32 v%d, v%d, v%d" % (T, P, P + 1))
        e("v_cvt_pk_bf16_f32 v%d, v%d, v%d" % (T + 1, P + 2, P + 3))
        e("v_lshlrev_b32 v%d, 16, v%d" % (P, T))
        e("v_and_b32 v%d, 0xffff0000, v%d" % (P + 1, T))
        e("v_lshlrev_b32 v%d, 16, v%d" % (P + 2, T + 1))
        e("v_and_b32 v%d, 0xffff0000, v%d" % (P + 3, T + 1))
        for r in range(4):
            e("v_mul_f32 v%d, s%d, v%d" % (R + 8 * r + j, S_SCL, P + r))
        e("v_max3_f32 v%d, |v%d|, |v%d|, v%d" % (V_W1, R + j, R + 8 + j, V_W1))
        e("v_max3_f32 v%d, |v%d|, |v%d|, v%d" % (V_W1, R + 16 + j, R + 24 + j, V_W1))
        for r in range(4):
            e("v_exp_f32 v%d, v%d" % (R + 32 + 8 * r + j, R + 8 * r + j))
    e("v_mov_b32 v%d, 0x42fa0000" % T)
    e("s_mov_b32 exec_hi, 0")
    e("v_cmp_nle_f32 vcc, v%d, v%d" % (V_W1, T))
    for r in range(4):
        for hh in range(2):
            e("global_store_dwordx4 v%d, %s, %s offset:%d sc0 sc1" % (V_W0, vr(R + 32 + 8 * r + 4 * hh), sr(S_WSP), r * 1024 + hh * 16))
            e("global_store_dwordx4 v%d, %s, %s offset:%d sc0 sc1" % (V_A0, vr(R + 8 * r + 4 * hh), sr(S_WSP), r * 1024 + hh * 16))
    e("s_mov_b64 exec, -1")
    e("s_or_b32 s%d, vcc_lo, vcc_hi" % S_FLAG)
    e("s_cmp_lg_u32 s%d, 0" % S_FLAG)
    e("s_cselect_b32 s%d, 3, 1" % S_FLAG)
    e("s_lshl_b32 s%d, s2, 4" % S_T)
    e("s_lshl_b32 s%d, s%d, 2" % (S_T + 1, S_W))
    e("s_add_u32 s%d, s%d, s%d" % (S_T, S_T, S_T + 1))
    e("v_mov_b32 v20, s%d" % S_T)
    e("v_mov_b32 v21, s%d" % S_FLAG)
    e("s_waitcnt vmcnt(0)")
    e("s_mov_b32 exec_lo, 1")
    e("s_mov_b32 exec_hi, 0")
    e("global_store_dword v20, v21, %s sc0 sc1" % sr(S_DBG))
    e("s_endpgm")


def flag_issue():
    e("s_lshl_b32 s%d, s%d, 4" % (S_T, S_B))
    e("v_mov_b32 v15, s%d" % S_T)
    e("v_mov_b32 v16, 32")
    a.vm("global_load_dwordx4 v[60:63], v15, %s sc0 sc1" % sr(S_DBG))
    a.vm("global_load_dwordx4 v[56:59], v16, %s sc0 sc1" % sr(S_DBG))
    a.vm("global_load_dwordx4 v[52:55], v16, %s offset:16 sc0 sc1" % sr(S_DBG))
    a.op("mark", "flag")


def wflag_issue():
    e("v_and_b32 v41, 15, v%d" % V_LANE)
    e("v_lshlrev_b32 v41, 2, v41")
    a.vm("global_load_dword v0, v41, %s offset:64 sc0 sc1" % sr(S_DBG))
    a.op("mark", "wflag")


def wflag_check():
    a.op("needmark", "wflag")
    sv = a.noins
    a.noins = 1
    a.lab("L_wf_chk")
    e("v_cmp_eq_u32 vcc, 0, v0")
    e("s_nop 1")
    e("s_cmp_eq_u64 vcc, 0")
    e("s_cbranch_scc1 L_wf_ok")
    a.op("rare", 1)
    e("s_sleep 12")
    e("global_load_dword v0, v41, %s offset:64 sc0 sc1" % sr(S_DBG))
    e("s_waitcnt vmcnt(0)")
    e("s_branch L_wf_chk")
    a.op("rare", 0)
    a.lab("L_wf_ok")
    a.op("gate", "W")
    a.noins = sv


def eb_dma(wsoff):
    e("s_lshl_b32 s%d, s%d, 14" % (S_T, S_B))
    e("s_lshl_b32 s%d, s%d, 11" % (S_T + 1, S_W))
    e("s_add_u32 s%d, s%d, s%d" % (S_T, S_T, S_T + 1))
    e("s_add_u32 s%d, s%d, %d" % (S_T, S_T, wsoff))
    e("v_lshlrev_b32 v16, 4, v%d" % V_LANE)
    e("v_add_u32 v16, s%d, v16" % S_T)
    e("s_add_u32 s%d, s%d, %d" % (S_T + 1, S_T + 1, EBB))
    e("s_mov_b32 m0, s%d" % (S_T + 1))
    e("s_nop 0")


def flag_check():
    a.op("needmark", "flag")
    sv = a.noins
    a.noins = 1
    a.lab("L_flag_chk")
    e("v_min_u32 v17, v60, v61")
    e("v_min3_u32 v17, v62, v63, v17")
    e("v_min3_u32 v17, v56, v57, v17")
    e("v_min3_u32 v17, v58, v59, v17")
    e("v_min3_u32 v17, v52, v53, v17")
    e("v_min3_u32 v51, v54, v55, v17")
    e("v_or3_b32 v17, v60, v61, v62")
    e("v_or_b32 v17, v17, v63")
    e("v_readfirstlane_b32 s%d, v51" % (S_T))
    e("v_readfirstlane_b32 s%d, v17" % (S_T + 1))
    e("s_nop 3")
    e("s_cmp_lg_u32 s%d, 0" % S_T)
    e("s_cbranch_scc1 L_flag_ok")
    a.op("rare", 1)
    e("s_sleep 4")
    e("global_load_dwordx4 v[60:63], v15, %s sc0 sc1" % sr(S_DBG))
    e("global_load_dwordx4 v[56:59], v16, %s sc0 sc1" % sr(S_DBG))
    e("global_load_dwordx4 v[52:55], v16, %s offset:16 sc0 sc1" % sr(S_DBG))
    e("s_waitcnt vmcnt(0)")
    e("s_branch L_flag_chk")
    a.op("rare", 0)
    a.lab("L_flag_ok")
    e("s_and_b32 s%d, s%d, 2" % (S_FLAG, S_T + 1))
    eb_dma(0)
    a.vm("buffer_load_dwordx4 v16, %s, 0 offen sc0 sc1 lds" % sr(SRD_WS, 4))
    a.vm("buffer_load_dwordx4 v16, %s, 0 offen offset:1024 sc0 sc1 lds" % sr(SRD_WS, 4))
    a.op("mark", "eb")
    a.op("gate", "T")
    a.noins = sv


TAPH = [0, HP, 2 * HP]


def c1_areads(k, aset):
    tap = k % 3
    out = []
    for sl in range(5):
        b0 = V_A0 if tap < 2 else 15
        base = b0 if sl < 2 else (b0 + 1 if sl < 4 else b0 + 2)
        off = ((sl & 1) * 4608 if sl < 4 else 0) + (128 if tap == 1 else 0)
        out.append("ds_read_b128 %s, v%d offset:%d" % (ar(aset + 4 * sl), base, off))
    return out


def c2_areads(k, aset):
    tap, sl_ = k % 3, k // 3
    return ["ds_read_b128 %s, v%d offset:%d" % (ar(aset + 4 * sl), V_A0 + sl, HB + TAPH[tap] + sl_ * 128)
            for sl in range(2)]


def conv_phase(u0, nM, acc, areads_fn, isx):
    A_AF, AST = (160, 20) if isx else (232, 8)
    for s in areads_fn(0, A_AF):
        e(s)
    prime(u0)
    units = []
    for k in range(12):
        nk = k + 1
        pre = []
        if isx and k % 3 == 2 and k < 11:
            pre = [("needmark", "x%d" % (k // 3 + 1)), "s_barrier"]
            pre += ["v_add_u32 v%d, 0x%x, v%d" % (r, XS, r) for r in (V_A0, V_A1, V_A2)]
        if isx and k % 3 == 0 and k > 0:
            pre = ["v_add_u32 v%d, 0x%x, v%d" % (r, XS, r) for r in (15, 16, 17)]
        if isx and k == TGW - 2:
            pre = pre + [("call", wflag_issue)]
        if isx and k == TGW:
            pre = pre + [("call", wflag_check)]
        if isx and PROF == "2":
            pre = pre + [("call", stamp)]
        units.append(dict(unit=u0 + k, aset=[A_AF + AST * (k & 1) + 4 * s for s in range(nM)], last=(k == 11), pre=pre,
                          areads=(areads_fn(nk, A_AF + AST * (nk & 1)) if k < 11 else [])))
    emit_units(units, nM, acc)


def lane_fields():
    e("v_lshrrev_b32 v16, 4, v%d" % V_LANE)
    e("v_and_b32 v17, 15, v%d" % V_LANE)


P0, P1 = TMP, TMP + 8
TT = TMP + 16
OWN = TMP + 24
OUTR = TMP + 28


def add_own(P, accbase):
    for i in range(0, 8, 4):
        for k in range(4):
            e("v_accvgpr_read_b32 v%d, a%d" % (OWN + k, accbase + i + k))
        e("v_pk_add_f32 %s, %s, %s" % (vr(P + i, 2), vr(P + i, 2), vr(OWN, 2)))
        e("v_pk_add_f32 %s, %s, %s" % (vr(P + i + 2, 2), vr(P + i + 2, 2), vr(OWN + 2, 2)))


def epi_gelu_slot(accbase, rdoff, nblocks_after, wr, mask):
    for jp in range(4):
        P = P0 if (jp & 1) == 0 else P1
        Pn = P1 if (jp & 1) == 0 else P0
        nxt = rdoff + (2 * jp + 2) * 1024
        more = jp < 3 or nblocks_after
        if more:
            e("ds_read_b128 %s, v%d offset:%d" % (vr(Pn), V_EXR, nxt))
            e("ds_read_b128 %s, v%d offset:%d" % (vr(Pn + 4), V_EXR, nxt + 1024))
            e("s_waitcnt lgkmcnt(2)")
        else:
            e("s_waitcnt lgkmcnt(0)")
        add_own(P, accbase + 8 * jp)
        gelu_pairs([P, P + 2, P + 4, P + 6], [TT, TT + 2, TT + 4, TT + 6])
        if mask:
            e("v_mul_f32 v%d, v%d, v%d" % (TT, V_MASK, TT))
            e("v_mul_f32 v%d, v%d, v%d" % (TT + 4, V_MASK, TT + 4))
        for r in range(4):
            e("v_cvt_pk_bf16_f32 v%d, v%d, v%d" % (OUTR + 4 * r + jp, TT + r, TT + 4 + r))
    for r in range(4):
        if nblocks_after:
            DEFER.append(wr(r))
        else:
            e(wr(r))


def epi1():
    a.c("---- epilogue conv1 ----")
    a.op("gate", "C1END")
    a.op("pace", PACE)
    e("v_mov_b32 v%d, 0x%x" % (V_C0, f32bits(GC0)))
    e("v_mov_b32 v%d, 0x%x" % (V_C0 + 1, f32bits(GC0)))
    e("s_nop 7")
    e("s_nop 1")
    for j in range(8):
        e("v_accvgpr_read_b32 v%d, a%d" % (TMP + j, A_ACC1 + 128 + 4 * j))
    for i in range(16):
        e("ds_write_b128 v%d, %s offset:%d" % (V_EXW, ar(A_ACC1 + 64 + 4 * i), i * 1024))
    e("ds_write_b128 v%d, %s offset:%d" % (V_EXW, vr(TMP), 16384))
    e("ds_write_b128 v%d, %s offset:%d" % (V_EXW, vr(TMP + 4), 17408))
    lane_fields()
    e("s_mul_i32 s%d, s%d, %d" % (S_T, S_KH, 32 * HP))
    e("s_lshl_b32 s%d, s%d, 8" % (S_T + 1, S_NH))
    e("v_mul_u32_u24 v16, %d, v16" % (4 * HP))
    e("v_lshl_add_u32 v17, v17, 4, s%d" % (S_T + 1))
    e("v_add3_u32 v%d, v16, v17, s%d" % (V_W0, S_T))
    e("v_add_u32 v%d, 0x%x, v17" % (V_W1, HB + 64 * HP))
    for i in range(4):
        e("v_mov_b32 v%d, 0" % (TT + i))
    e("s_waitcnt lgkmcnt(0)")
    e("s_nop 1")
    zero_acc(A_ACC2, 64, TT)
    e("s_barrier")
    e("ds_read_b128 %s, v%d offset:0" % (vr(P0), V_EXR))
    e("ds_read_b128 %s, v%d offset:1024" % (vr(P0 + 4), V_EXR))
    for sl in range(2):
        epi_gelu_slot(A_ACC1 + 32 * sl, sl * 8192, True,
                      lambda r, sl=sl: "ds_write_b128 v%d, %s offset:%d" % (V_W0, vr(OUTR + 4 * r), HB + (16 * sl + r) * HP),
                      sl == 0)
    e("s_waitcnt lgkmcnt(0)")
    for j in range(8):
        e("v_accvgpr_read_b32 v%d, a%d" % (TT + j, A_ACC1 + 128 + 4 * j))
    for i in range(0, 8, 2):
        e("v_pk_add_f32 %s, %s, %s" % (vr(P0 + i, 2), vr(P0 + i, 2), vr(TT + i, 2)))
    a.op("gate", "HALO")
    gelu_pairs([P0, P0 + 2, P0 + 4, P0 + 6], [TT, TT + 2, TT + 4, TT + 6])
    for i in range(4):
        e("v_cvt_pk_bf16_f32 v%d, v%d, v%d" % (P1 + i, TT + 2 * i, TT + 2 * i + 1))
    a.noins = 1
    e("s_mov_b32 exec_lo, 0xffff")
    e("s_mov_b32 exec_hi, 0")
    e("ds_write_b128 v%d, %s" % (V_W1, vr(P1)))
    e("s_mov_b64 exec, -1")
    a.noins = 0
    lane_fields()
    e("v_mul_u32_u24 v%d, %d, v17" % (V_A0, 2 * HP))
    e("v_lshl_add_u32 v%d, v16, 4, v%d" % (V_A0, V_A0))
    e("v_mul_u32_u24 v%d, %d, v17" % (V_A1, FP))
    e("v_lshl_add_u32 v%d, v16, 4, v%d" % (V_A1, V_A1))
    e("v_add_u32 v%d, 0x%x, v%d" % (V_A1, FB, V_A1))
    e("s_waitcnt lgkmcnt(0)")
    e("s_barrier")


A_C2, A_C3, A_AF2 = 64, 32, 0


def epi2():
    a.c("---- epilogue conv2 ----")
    for i in range(4):
        e("v_mov_b32 v%d, 0" % (60 + i))
    e("s_nop 1")
    zero_acc(A_C3, 32, 60)
    e("s_nop 3")
    lane_fields()
    e("s_lshl_b32 s%d, s%d, 8" % (S_T, S_KH))
    e("s_lshl_b32 s%d, s%d, 3" % (S_T + 1, S_NH))
    e("s_add_u32 s%d, s%d, s%d" % (S_T, S_T, S_T + 1))
    e("s_add_u32 s%d, s%d, %d" % (S_T, S_T, FB))
    e("v_mul_u32_u24 v16, %d, v16" % (4 * FP))
    e("v_lshl_add_u32 v16, v17, 4, v16")
    e("v_add_u32 v%d, s%d, v16" % (V_W0, S_T))
    for mt in range(2):
        for i in range(16):
            e("v_accvgpr_read_b32 v%d, a%d" % (20 + i, A_C2 + 16 * mt + i))
        gelu_pairs([20, 22, 24, 26], [36, 38, 40, 42])
        gelu_pairs([28, 30, 32, 34], [44, 46, 48, 50])
        for r in range(4):
            e("v_cvt_pk_bf16_f32 v%d, v%d, v%d" % (52 + 2 * r, 36 + r, 40 + r))
            e("v_cvt_pk_bf16_f32 v%d, v%d, v%d" % (53 + 2 * r, 44 + r, 48 + r))
        for r in range(4):
            w_ = "ds_write_b64 v%d, %s offset:%d" % (V_W0, vr(52 + 2 * r, 2), (16 * mt + r) * FP)
            if mt == 0:
                DEFER.append(w_)
            else:
                e(w_)
    e("s_waitcnt lgkmcnt(0)")
    e("s_barrier")
    a.op("gate", "O")


def c2_aread(k, aset):
    tap, cb = k // 8, k % 8
    return ["ds_read_b128 %s, v%d offset:%d" % (ar(aset + 4 * mt), V_A0, HB + mt * 32 * HP + tap * HP + cb * 64) for mt in range(2)]


def frag_phase(g0, nks, accb, aread):
    for s_ in aread(0, A_AF2):
        e(s_)
    for k in range(nks):
        g = g0 + k
        if g == FCHK:
            flag_check()
        a.op("needf", g)
        e("s_waitcnt lgkmcnt(0)")
        nxt = aread(k + 1, A_AF2 + 8 * ((k + 1) & 1)) if k + 1 < nks else []
        i = 0
        for j in range(4):
            for mt in range(2):
                d = accb + (mt * 4 + j) * 4
                e("v_mfma_f32_16x16x32_bf16 %s, %s, %s, %s" % (ar(d), ar(A_AF2 + 8 * (k & 1) + 4 * mt), fsl(g, j), ar(d)))
                if i < len(nxt):
                    e(nxt[i]); i += 1
        a.op("freef", g)


def f_aread(k, aset):
    return ["ds_read_b128 %s, v%d offset:%d" % (ar(aset + 4 * mt), V_A1, mt * 16 * FP + k * 64) for mt in range(2)]


def epi3_body(raw):
    for mt in range(2):
        for i in range(16):
            e("v_accvgpr_read_b32 v%d, a%d" % (20 + i, A_C3 + 16 * mt + i))
        for i in range(8):
            e("v_cvt_pk_bf16_f32 v%d, v%d, v%d" % (36 + i, 20 + 2 * i, 21 + 2 * i))
        for i in range(8):
            e("v_lshlrev_b32 v%d, 16, v%d" % (20 + 2 * i, 36 + i))
            e("v_and_b32 v%d, 0xffff0000, v%d" % (21 + 2 * i, 36 + i))
        for i in range(16):
            e("v_mul_f32 v%d, s%d, v%d" % (20 + i, S_SCL, 20 + i))
        if not raw:
            for i in range(8):
                e("v_max3_f32 v%d, |v%d|, |v%d|, v%d" % (V_W1, 20 + 2 * i, 21 + 2 * i, V_W1))
        o = 44
        for j in range(4):
            for r in range(4):
                e(("v_mov_b32 v%d, v%d" if raw else "v_exp_f32 v%d, v%d") % (o + 4 * r + j, 20 + 4 * j + r))
        if mt == 0 and not raw:
            e("s_barrier")
        e("s_nop 0")
        for r in range(4):
            e("ds_write_b128 v%d, %s offset:%d" % (V_W0, vr(o + 4 * r), (16 * mt + r) * EAP))


def epi3():
    a.c("---- epilogue fe ----")
    lane_fields()
    e("s_lshl_b32 s%d, s%d, 9" % (S_T, S_KH))
    e("s_lshl_b32 s%d, s%d, 4" % (S_T + 1, S_NH))
    e("s_add_u32 s%d, s%d, s%d" % (S_T, S_T, S_T + 1))
    e("s_add_u32 s%d, s%d, %d" % (S_T, S_T, EAB))
    e("v_mul_u32_u24 v16, %d, v16" % (4 * EAP))
    e("v_lshl_add_u32 v16, v17, 5, v16")
    e("v_add_u32 v%d, s%d, v16" % (V_W0, S_T))
    e("v_mov_b32 v%d, 0" % V_W1)
    e("s_nop 4")
    epi3_body(False)
    e("v_mov_b32 v16, 0x42fa0000")
    e("v_cmp_nle_f32 vcc, v%d, v16" % V_W1)
    e("s_lshl_b32 s%d, s%d, 2" % (S_T, S_W))
    e("s_add_u32 s%d, s%d, %d" % (S_T, S_T, FLG))
    e("s_or_b32 s%d, s%d, vcc_lo" % (S_FLAG, S_FLAG))
    e("s_or_b32 s%d, s%d, vcc_hi" % (S_FLAG, S_FLAG))
    e("v_mov_b32 v16, s%d" % S_T)
    e("v_mov_b32 v17, s%d" % S_FLAG)
    e("ds_write_b32 v16, v17")
    for i in range(4):
        e("v_mov_b32 v%d, 0" % (60 + i))
    a.op("flushall", 0)
    a.noins = 1
    e("s_nop 1")
    for n in range(8):
        e("v_mfma_f32_32x32x16_bf16 %s, %s, %s, 0" % (vr(OACC + 16 * n, 16), vr(60), vr(60)))
    for n in range(8):
        e("v_mfma_f32_32x32x16_bf16 %s, %s, %s, 0" % (ar(OACC + 16 * n, 16), vr(60), vr(60)))
    e("s_waitcnt vmcnt(0) lgkmcnt(0)")
    e("s_barrier")
    e("v_mov_b32 v16, 0x%x" % FLG)
    e("ds_read_b128 %s, v16" % vr(TMP))
    e("s_waitcnt lgkmcnt(0)")
    e("v_or3_b32 v16, v%d, v%d, v%d" % (TMP, TMP + 1, TMP + 2))
    e("v_or_b32 v16, v16, v%d" % (TMP + 3))
    e("s_nop 0")
    e("v_readfirstlane_b32 s%d, v16" % S_FLAG)
    e("s_nop 3")
    e("s_cmp_eq_u32 s%d, 0" % S_FLAG)
    e("s_cbranch_scc1 L_fast1")
    a.op("rare", 1)
    epi3_body(True)
    eb_dma(8192)
    e("buffer_load_dwordx4 v16, %s, 0 offen sc0 sc1 lds" % sr(SRD_WS, 4))
    e("buffer_load_dwordx4 v16, %s, 0 offen offset:1024 sc0 sc1 lds" % sr(SRD_WS, 4))
    e("s_waitcnt vmcnt(0) lgkmcnt(0)")
    e("s_barrier")
    a.op("rare", 0)
    a.lab("L_fast1")


ZL = []
OACC = 64


EA = [20, 28]
EB = [36, 44]
JF = [52, 56]
V_EA, V_EB, V_B, V_ST = 4, 5, 6, 7
BB = [0, 32]
STG = [8, 60]


def out_valu(par, slow):
    ea, eb, jf = EA[par], EB[par], JF[par]
    v = []
    if os.environ.get("EXP") == "novalu":
        return ["v_cvt_pk_bf16_f32 v%d, v%d, v%d" % (jf + i, ea + 2 * i, ea + 2 * i + 1) for i in range(4)]
    if slow:
        for i in range(8):
            v.append("v_add_f32 v%d, v%d, v%d" % (ea + i, ea + i, eb + i))
        for i in range(8):
            v.append("v_exp_f32 v%d, v%d" % (ea + i, ea + i))
        for i in range(8):
            v.append("v_add_f32 v%d, 1.0, v%d" % (ea + i, ea + i))
    elif PK:
        for i in range(0, 8, 2):
            v.append("v_pk_fma_f32 %s, %s, %s, %s" % (vr(ea + i, 2), vr(ea + i, 2), vr(eb + i, 2), sr(S_ONE)))
    else:
        for i in range(8):
            v.append("v_fma_f32 v%d, v%d, v%d, 1.0" % (ea + i, ea + i, eb + i))
    for i in range(8):
        v.append("v_rcp_f32 v%d, v%d" % (ea + i, ea + i))
    if PK:
        for i in range(0, 8, 2):
            v.append("v_pk_fma_f32 %s, %s, %s, %s" % (vr(ea + i, 2), vr(ea + i, 2), vr(V_C0, 2), sr(S_ONE)))
    else:
        for i in range(8):
            v.append("v_fma_f32 v%d, v%d, -2.0, 1.0" % (ea + i, ea + i))
    for i in range(4):
        v.append("v_cvt_pk_bf16_f32 v%d, v%d, v%d" % (jf + i, ea + 2 * i, ea + 2 * i + 1))
    return v


def out_eloads(par, off):
    return ["ds_read_b128 %s, v%d offset:%d" % (vr(EA[par]), V_EA, off),
            "ds_read_b128 %s, v%d offset:%d" % (vr(EA[par] + 4), V_EA, off + 16),
            "ds_read_b128 %s, v%d offset:%d" % (vr(EB[par]), V_EB, off),
            "ds_read_b128 %s, v%d offset:%d" % (vr(EB[par] + 4), V_EB, off + 16)]


def out_bloads(par, off):
    if os.environ.get("EXP") == "halfb":
        return ["ds_read_b64 %s, v%d offset:%d" % (ar(BB[par] + 4 * n, 2), V_B, off + n * 1024) for n in range(8)]
    if os.environ.get("EXP") == "vb":
        return ["ds_read_b128 %s, v%d offset:%d" % (vr(192 + 32 * par + 4 * n), V_B, off + n * 1024) for n in range(8)]
    return ["ds_read_b128 %s, v%d offset:%d" % (ar(BB[par] + 4 * n), V_B, off + n * 1024) for n in range(8)]


def store_group(par, rstatic=None):
    st = STG[par]
    g = []
    if rstatic is None:
        g.append("s_set_gpr_idx_on s%d, 0x3" % S_R)
        g.append("s_nop 0")
        r = 0
    else:
        r = rstatic
    for i in range(4):
        g.append("v_cvt_pk_bf16_f32 v%d, v%d, v%d" % (st + i, OACC + 16 * (2 * i) + r, OACC + 16 * (2 * i + 1) + r))
    if rstatic is None:
        g.append("s_set_gpr_idx_off")
        g.append("s_add_u32 s%d, s%d, 1" % (S_R, S_R))
    g.append("buffer_store_dwordx4 %s, v%d, %s, s%d offen%s" % (vr(st), V_ST, sr(SRD_O, 4), S_SO, STMOD))
    return g


def out_kstep(par, bsrc, accf, valu, loads, stg=None, prev_b=8):
    gaps = [[] for _ in range(8)]
    nl = [2, 1, 2, 1, 2, 1, 2, 1]
    li = 0
    issued = [0] * 9
    for n in range(8):
        for _ in range(nl[n]):
            if li < len(loads):
                gaps[n].append(loads[li]); li += 1
        issued[n + 1] = li
    budget = [24 - 4 * len(gaps[n]) for n in range(8)]
    if stg:
        gaps[3] = gaps[3] + list(stg)
        budget[3] = 0
    vi = 0
    for n in range(8):
        c = 0
        while vi < len(valu) and (c < budget[n] or n == 7):
            gaps[n].append(valu[vi]); c += a.cost(valu[vi]); vi += 1
    for n in range(8):
        if n % 2 == 0:
            if prev_b:
                e("s_waitcnt lgkmcnt(%d)" % (prev_b - (n + 2) + issued[n]))
            elif n == 0:
                e("s_waitcnt lgkmcnt(0)")
            if n == 0:
                e("s_nop 0")
        d = accf(n)
        e("v_mfma_f32_32x32x16_bf16 %s, %s, %s, %s" % (d, vr(JF[par]), bsrc(n), d))
        for s in gaps[n]:
            e(s)


def out_pass(tag, slow, second):
    accf = (lambda n: ar(OACC + 16 * n, 16)) if second else (lambda n: vr(OACC + 16 * n, 16))
    if not second:
        e("v_lshrrev_b32 v16, 5, v%d" % V_LANE)
        e("v_and_b32 v17, 31, v%d" % V_LANE)
        e("v_mul_u32_u24 v%d, %d, v17" % (V_EA, EAP))
        e("v_lshl_add_u32 v%d, v16, 5, v%d" % (V_EA, V_EA))
        e("v_add_u32 v%d, 0x%x, v%d" % (V_EA, EAB, V_EA))
        e("s_lshl_b32 s%d, s%d, 11" % (S_T, S_W))
        e("s_add_u32 s%d, s%d, %d" % (S_T, S_T, EBB))
        e("v_lshlrev_b32 v%d, 5, v16" % V_EB)
        e("v_add_u32 v%d, s%d, v%d" % (V_EB, S_T, V_EB))
        e("v_lshlrev_b32 v%d, 4, v%d" % (V_B, V_LANE))
        for s in out_eloads(0, 0) + out_eloads(1, 64):
            e(s)
        e("s_waitcnt lgkmcnt(4)")
        for s in out_bloads(0, 0):
            e(s)
        for s in ZL:
            e(s)
        for s in out_valu(0, slow):
            e(s)
    e("s_mov_b32 s%d, 0" % S_CNT)
    if second:
        e("s_mov_b32 s%d, 0" % S_R)
        e("s_mov_b32 s%d, s%d" % (S_SO, S_OBASE))
    lab = "L_ok_%s%d" % (tag, int(second))
    a.lab(lab)
    sg0 = sg1 = None
    if second:
        sg0 = store_group(0) + ["s_add_u32 s%d, s%d, 4096" % (S_SO, S_SO)]
        sg1 = store_group(1) + ["s_and_b32 s%d, s%d, 1" % (S_T, S_CNT), "s_lshl_b32 s%d, s%d, 14" % (S_T, S_T),
                                "s_add_u32 s%d, s%d, s%d" % (S_SO, S_SO, S_T), "s_add_u32 s%d, s%d, 4096" % (S_SO, S_SO)]
    out_kstep(0, lambda n: ar(BB[0] + 4 * n), accf, out_valu(1, slow), out_eloads(0, 128) + out_bloads(1, 8192), sg0)
    out_kstep(1, lambda n: ar(BB[1] + 4 * n), accf, out_valu(0, slow), out_eloads(1, 192) + out_bloads(0, 16384), sg1)
    e("v_add_u32 v%d, 0x80, v%d" % (V_EA, V_EA))
    e("v_add_u32 v%d, 0x80, v%d" % (V_EB, V_EB))
    e("v_add_u32 v%d, 0x4000, v%d" % (V_B, V_B))
    e("s_add_u32 s%d, s%d, 1" % (S_CNT, S_CNT))
    e("s_cmp_lt_u32 s%d, 7" % S_CNT)
    e("s_cbranch_scc1 %s" % lab)
    if second:
        sg0 = store_group(0, 14) + ["s_add_u32 s%d, s%d, 4096" % (S_SO, S_SO)]
        sg1 = store_group(1, 15)
    if second:
        out_kstep(0, lambda n: ar(192 + 4 * n), accf, out_valu(1, slow), [], sg0, 0)
        out_kstep(1, lambda n: ar(224 + 4 * n), accf, [], [], sg1, 0)
    else:
        e("v_subrev_u32 v%d, 0x380, v%d" % (V_EA, V_EA))
        e("v_add_u32 v%d, 0x80, v%d" % (V_EB, V_EB))
        e("v_lshlrev_b32 v%d, 4, v%d" % (V_B, V_LANE))
        out_kstep(0, lambda n: ar(192 + 4 * n), accf, out_valu(1, slow), out_eloads(0, 0), None, 0)
        out_kstep(1, lambda n: ar(224 + 4 * n), accf, out_valu(0, slow), out_eloads(1, 64) + out_bloads(0, 0), None, 0)


def phase_out(slow):
    tag = "s" if slow else "f"
    a.c("---- out phase (%s) ----" % tag)
    e("v_mov_b32 v%d, -2.0" % V_C0)
    e("v_mov_b32 v%d, -2.0" % (V_C0 + 1))
    e("v_lshrrev_b32 v16, 5, v%d" % V_LANE)
    e("v_and_b32 v17, 31, v%d" % V_LANE)
    e("v_lshlrev_b32 v%d, 14, v16" % V_ST)
    e("v_lshl_add_u32 v%d, v17, 4, v%d" % (V_ST, V_ST))
    e("s_mul_i32 s%d, s%d, 4000" % (S_T, S_B))
    e("s_add_u32 s%d, s%d, s%d" % (S_T, S_T, S_T0))
    e("s_lshl_b32 s%d, s%d, 12" % (S_OBASE, S_T))
    e("s_lshl_b32 s%d, s%d, 10" % (S_T, S_W))
    e("s_add_u32 s%d, s%d, s%d" % (S_OBASE, S_OBASE, S_T))
    out_pass(tag, slow, False)
    if not slow:
        stamp()
    out_pass(tag, slow, True)
    if not slow:
        stamp()
    e("s_nop 7")
    e("s_nop 3")
    e("s_add_u32 s%d, s%d, 512" % (S_T, S_OBASE))
    stq = [20, 36]
    for r in range(16):
        tq = stq[r & 1]
        st = tq + 8 + 4 * ((r >> 1) & 1)
        t = 8 * (r >> 2) + (r & 3)
        for n in range(8):
            e("v_accvgpr_read_b32 v%d, a%d" % (tq + n, OACC + 16 * n + r))
        for i in range(4):
            e("v_cvt_pk_bf16_f32 v%d, v%d, v%d" % (st + i, tq + 2 * i, tq + 2 * i + 1))
        e("s_add_u32 s%d, s%d, %d" % (S_SO, S_T, t * 4096))
        e("buffer_store_dwordx4 %s, v%d, %s, s%d offen%s" % (vr(st), V_ST, sr(SRD_O, 4), S_SO, STMOD))
    if not slow:
        stamp()
        stamp_store()
    e("s_endpgm")


def x_item(sl_, i):
    return ["s_add_u32 s94, s92, %d" % (sl_ * 128 + i * 16384),
            "s_add_u32 s95, s93, %d" % (sl_ * XS + i * 4 * XBP),
            "v_add_u32 v%d, s94, v%d" % (V_W0, V_XL),
            "s_mov_b32 m0, s95",
            "s_nop 0",
            "buffer_load_dwordx4 v%d, %s, 0 offen nt lds" % (V_W0, sr(SRD_X, 4))]


def w_item(i):
    pre = []
    if i == 0:
        pre = ["s_lshr_b32 s94, s2, 3", "s_and_b32 s94, s94, 31", "s_lshl_b32 s94, s94, 2",
               "s_add_u32 s94, s94, s%d" % S_W, "s_mul_i32 s95, s94, 3072", "s_add_u32 s95, s95, %d" % FR2,
               "v_lshlrev_b32 v41, 4, v%d" % V_LANE, "v_add_u32 v41, s95, v41"]
    return pre + ["global_load_dwordx4 a[252:255], v41, %s offset:%d sc1" % (sr(S_WSP), i * 1024)]


def o_item(i):
    ks, h_ = i >> 1, i & 1
    return ["s_lshl_b32 s95, s%d, 11" % S_W,
            "s_add_u32 m0, s95, %d" % (ks * 8192 + h_ * 1024),
            "s_mov_b32 s94, %d" % (ks * 8192 + h_ * 1024),
            "buffer_load_dwordx4 v%d, %s, s94 offen sc1 lds" % (V_OFF32W, sr(SRD_WS, 4))]


def schedule(entries):
    out = []
    pend = []
    for u in range(len(UNITS)):
        for i in range(8):
            pend.append(("u", u, i))
        for si, pos in enumerate(XPOS):
            if u == pos:
                pend += [("x", si + 1, i) for i in range(4)]
    pend += [("w", 0, i) for i in range(3)]
    for g in range(32):
        pend += [("f", g, j) for j in range(4)]
    pend += [("o", 0, i) for i in range(10, 28)]
    pend += [("r", 0, i) for i in range(16)]
    pend += [("o", 0, i) for i in range(0, 10)]
    freedf = set()
    pi = 0
    freed = set()
    gates = set()
    lastf = {}
    vcount = 0
    last = {}
    marks = {}
    t = 0
    next_t = 0
    rare = 0
    forced = {}
    over = []
    enabled = []
    pace = [PACE1]

    afree = []
    where = {}

    def can(it):
        if it[0] == "w":
            return "W" in gates
        if it[0] == "f":
            g_ = it[1]
            if ("W" if g_ < 24 else "T") not in gates:
                return False
            if g_ >= NF:
                return (g_ - NF) in freedf
            c_ = FSL[g_][2]
            return c_ is None or (c_[1] in freed if c_[0] == "u" else c_[1] in gates)
        if it[0] == "r":
            return "T" in gates and 19 in freedf
        if it[0] == "o":
            return ("T" if 10 <= it[2] < 28 else "O") in gates
        if it[0] != "u" or it[1] in where:
            return True
        u = it[1]
        if u < 6 or (u - 6) in freed:
            where[u] = None
            return True
        if afree and NASLOT and u < len(UNITS) - ATAIL:
            where[u] = afree.pop(0)
            return True
        return False

    def issue():
        nonlocal pi, vcount, t, next_t
        k, u, i = pend[pi]
        if k == "u":
            sb, vo, cst = UNITS[u]
            if i == 0:
                out.append("  v_add_u32 v%d, 0x%x, v%d" % (V_LD, cst, vo))
                t += 4
            dst = vr(slot(u) + 4 * i) if where[u] is None else ar(where[u] + 4 * i)
            out.append("  global_load_dwordx4 %s, v%d, %s offset:%d" % (dst, V_LD, sr(sb), i * 512))
            vcount += 1
            last[u] = vcount
        elif k == "f":
            if i == 0:
                out.append("  v_add_u32 v%d, 0x%x, v%d" % (V_LD, FR2 + u * 16384, V_OFF32))
            out.append("  global_load_dwordx4 %s, v%d, %s offset:%d sc1" % (fsl(u, i), V_LD, sr(S_WSP), i * 1024))
            vcount += 1
            lastf[u] = vcount
        elif k == "r":
            if i % 4 == 0:
                out.append("  v_lshlrev_b32 v%d, 4, v%d" % (V_LD, V_LANE))
                out.append("  v_add_u32 v%d, 0x%x, v%d" % (V_LD, FRO + 14 * 8192 + i * 1024, V_LD))
            out.append("  global_load_dwordx4 %s, v%d, %s offset:%d sc1" % (ar(192 + 4 * i), V_LD, sr(S_WSP), (i & 3) * 1024))
            vcount += 1
        else:
            for s_ in (x_item(u, i) if k == "x" else (w_item(i) if k == "w" else o_item(i))):
                out.append("  " + s_)
            vcount += 1
            if k == "x":
                marks["x%d" % u] = vcount
        pi += 1
        t += 8
        next_t = max(next_t, t - 8) + (PACE0 if pi < NFAST else pace[0])

    for k, arg, cost, noins in entries:
        if not noins and k in ("i",):
            while pi < len(pend) and t >= next_t and can(pend[pi]):
                issue()
        if k == "i":
            out.append("  " + arg)
            if not rare:
                t += cost
        elif k == "v":
            out.append("  " + arg)
            vcount += 1
            t += PACE
            next_t = max(next_t, t)
        elif k == "l":
            out.append(arg + ":")
        elif k == "c":
            out.append("  ; %s  [t=%d, loads issued %d]" % (arg, t, pi))
        elif k == "free":
            freed.add(arg)
        elif k == "rare":
            rare = arg
        elif k in ("need", "flush"):
            while ("u", arg, 7) in pend[pi:]:
                assert can(pend[pi]), ("slot not free", pend[pi], arg)
                if k == "need":
                    forced[arg] = forced.get(arg, 0) + 1
                t = max(t, next_t)
                issue()
            if k == "need":
                n = vcount - last[arg]
                out.append("  s_waitcnt vmcnt(%d)" % min(n, 63))
                if where[arg] is not None:
                    assert (arg - 6) in freed
                    for r_ in range(32):
                        out.append("  v_accvgpr_read_b32 v%d, a%d" % (slot(arg) + r_, where[arg] + r_))
                    t += 128
                    afree.append(where[arg])
                    over.append(arg)
        elif k == "gate":
            gates.add(arg)
        elif k == "freef":
            freedf.add(arg)
        elif k == "needf":
            while ("f", arg, 3) in pend[pi:]:
                assert can(pend[pi]), ("blocked", pend[pi])
                forced["f%d" % arg] = forced.get("f%d" % arg, 0) + 1
                t = max(t, next_t)
                issue()
            out.append("  s_waitcnt vmcnt(%d)" % min(vcount - lastf[arg], 63))
        elif k == "flushall":
            while pi < len(pend):
                assert can(pend[pi]), ("blocked", pend[pi])
                t = max(t, next_t)
                issue()
        elif k == "pace":
            pace[0] = arg
        elif k == "aslot":
            if len(enabled) < NASLOT:
                enabled.append(arg)
                afree.append(arg)
        elif k == "mark":
            marks[arg] = vcount
        elif k == "needmark":
            while arg not in marks or (pi < len(pend) and pend[pi][0] == "x" and "x%d" % pend[pi][1] == arg):
                t = max(t, next_t)
                issue()
            out.append("  s_waitcnt vmcnt(%d)" % min(vcount - marks[arg], 63))
    assert pi == len(pend)
    sys.stderr.write("est front cycles %d, forced: %s overflow units %s\n" % (t, forced, over))
    return out


def main():
    prologue()
    stamp()
    if os.environ.get("EARLYFLAG"):
        a.noins = 1
        e("s_lshl_b32 s%d, s%d, 4" % (S_T, S_B))
        e("v_mov_b32 v40, s%d" % S_T)
        e("s_mov_b32 s94, 0")
        a.lab("L_ef")
        e("global_load_dwordx4 v[60:63], v40, %s sc0 sc1" % sr(S_DBG))
        e("s_waitcnt vmcnt(0)")
        e("v_min_u32 v41, v60, v61")
        e("v_min3_u32 v41, v62, v63, v41")
        e("s_nop 0")
        e("v_readfirstlane_b32 s95, v41")
        e("s_add_u32 s94, s94, 1")
        e("s_cmp_gt_u32 s94, 100000")
        e("s_cbranch_scc1 L_ef_done")
        e("s_cmp_eq_u32 s95, 0")
        e("s_cbranch_scc1 L_ef")
        a.lab("L_ef_done")
        e("v_mov_b32 v40, 0x80")
        e("v_mov_b32 v41, s94")
        e("global_atomic_umax v40, v41, %s" % sr(S_DBG))
        e("s_waitcnt vmcnt(0)")
        a.noins = 0
    a.c("---- conv1 ----")
    conv_phase(U_C1, 5, lambda sl, j: A_ACC1 + (sl * 8 + j) * 4, c1_areads, True)
    stamp()
    epi1()
    stamp()
    a.c("---- conv2 ----")
    flag_issue()
    frag_phase(0, 24, A_C2, c2_aread)
    stamp()
    epi2()
    stamp()
    a.c("---- fe ----")
    frag_phase(24, 8, A_C3, f_aread)
    stamp()
    epi3()
    stamp()
    a.noins = 1
    front = schedule(a.l)
    a.l = []
    e("s_cmp_lg_u32 s%d, 0" % S_FLAG)
    e("s_cbranch_scc1 L_slow")
    phase_out(False)
    a.lab("L_slow")
    phase_out(True)
    producer()
    a.lab("L_end")
    e("s_endpgm")
    for _ in range(300):
        e("s_endpgm")
    back = []
    for k, arg, cost, noins in a.l:
        back.append(arg + ":" if k == "l" else ("  ; " + arg if k == "c" else "  " + arg))

    hdr = open("standalone__seq2seq_rnn_t_joint__speech.s.ref").read().split("\n")
    top = [l for l in hdr if l.startswith(";") and "@launch" not in l and "Override" not in l and "grid=ceil" not in l]
    out = "\n".join(top) + "\n"
    out += "; @launch grid=(254,1,1) block=(256,1,1) lds=%d\n" % LDS_TOTAL
    out += '.amdgcn_target "amdgcn-amd-amdhsa--gfx950"\n.text\n.globl %s\n.p2align 8\n.type %s,@function\n%s:\n' % (KN, KN, KN)
    out += "\n".join(front + back) + "\n"
    out += """.section .rodata,"a"
.p2align 6
.amdhsa_kernel %s
  .amdhsa_next_free_vgpr 512
  .amdhsa_next_free_sgpr 102
  .amdhsa_accum_offset 256
  .amdhsa_group_segment_fixed_size 0
  .amdhsa_kernarg_size 80
  .amdhsa_user_sgpr_count 2
  .amdhsa_user_sgpr_kernarg_segment_ptr 1
  .amdhsa_system_sgpr_workgroup_id_x 1
.end_amdhsa_kernel
""" % KN
    dst = sys.argv[1] if len(sys.argv) > 1 else "standalone__seq2seq_rnn_t_joint__speech.s"
    open(dst, "w").write(out)
    if PROF:
        sys.stderr.write("stamps %d\n" % NSTAMP[0])


main()
```
